```python
import torch

def _softmax(x, axis=-1):
    return torch.softmax(x, dim=axis)
def _gelu(x):
    return torch.nn.functional.gelu(x, approximate="tanh")
def _silu(x):
    return torch.nn.functional.silu(x)
def _sigmoid(x):
    return torch.sigmoid(x)
def _layernorm(x, axis=-1, eps=1e-5):
    m = x.mean(dim=axis, keepdim=True)
    v = x.var(dim=axis, keepdim=True, unbiased=False)
    return (x - m) / torch.sqrt(v + eps)
def _scatter_add(tgt, idx, src, axis=0):
    return tgt.clone().index_add_(axis, idx, src)
def _segment_sum(src, seg, n):
    out = torch.zeros((n,) + src.shape[1:], dtype=src.dtype)
    return out.index_add_(0, seg, src)
def _pad(x, pw):
    flat = tuple(v for pair in reversed(pw) for v in pair)
    return torch.nn.functional.pad(x, flat)

kernel_name = 'concat_heads__gqa_block_cached__mha_block_cached__near_ridge'

def setup_inputs():

    _w = (lambda a: (lambda t: t.to(torch.bfloat16) if t.is_floating_point() else t)(torch.as_tensor(a)))
    def _A_setup():
        B, Sq, D = 32, 32, 512
        Hq, Hkv, Sk, Dh = 32, 32, 32, 128
        assert Hq % Hkv == 0, (Hq, Hkv)
        return {
            "x": _w((lambda *s: torch.randn(*s, dtype=torch.bfloat16) * 0.8)(B, Sq, D)),
            "k_cache": _w((lambda *s: torch.randn(*s, dtype=torch.bfloat16) * 0.8)(B, Hkv, Sk, Dh)),
            "v_cache": _w((lambda *s: torch.randn(*s, dtype=torch.bfloat16) * 0.05)(B, Hkv, Sk, Dh)),
            "wq": _w((lambda *s: torch.randn(*s, dtype=torch.bfloat16) * 0.8)(D, Hq * Dh) * (D ** -0.5)),
            "wo": _w((lambda *s: torch.randn(*s, dtype=torch.bfloat16) * 0.05)(Hq * Dh, D) * ((Hq * Dh) ** -0.5)),
        }
    _A_in = _A_setup()

    def _B_setup():
        B, Sq, D = 32, 32, 512
        H, Sk, Dh = 32, 32, 128
        return {
            "x": _w((lambda *s: torch.randn(*s, dtype=torch.bfloat16) * 0.8)(B, Sq, D)),
            "k_cache": _w((lambda *s: torch.randn(*s, dtype=torch.bfloat16) * 0.8)(B, H, Sk, Dh)),
            "v_cache": _w((lambda *s: torch.randn(*s, dtype=torch.bfloat16) * 0.05)(B, H, Sk, Dh)),
            "wq": _w((lambda *s: torch.randn(*s, dtype=torch.bfloat16) * 0.8)(D, H * Dh) * (D ** -0.5)),
            "wo": _w((lambda *s: torch.randn(*s, dtype=torch.bfloat16) * 0.05)(H * Dh, D) * ((H * Dh) ** -0.5)),
        }
    _B_in = _B_setup()

    return {
        "A_x": _A_in["x"],
        "A_k_cache": _A_in["k_cache"],
        "A_v_cache": _A_in["v_cache"],
        "A_wq": _A_in["wq"],
        "A_wo": _A_in["wo"],
        "B_x": _B_in["x"],
        "B_k_cache": _B_in["k_cache"],
        "B_v_cache": _B_in["v_cache"],
        "B_wq": _B_in["wq"],
        "B_wo": _B_in["wo"],
    }

def reference(A_x, A_k_cache, A_v_cache, A_wq, A_wo, B_x, B_k_cache, B_v_cache, B_wq, B_wo):
    def _A_ref(x, k_cache, v_cache, wq, wo):
        B, Sq, D = x.shape
        Hq, Dh = 32, 128
        Hkv = k_cache.shape[1]
        rep = Hq // Hkv
        q = (lambda x, *d: x.permute(*d))((x @ wq).reshape(B, Sq, Hq, Dh), 0, 2, 1, 3)
        k = (lambda x, n, axis: torch.repeat_interleave(x, n, dim=axis))(k_cache, rep, axis=1)
        v = (lambda x, n, axis: torch.repeat_interleave(x, n, dim=axis))(v_cache, rep, axis=1)
        scores = torch.einsum("bhqd,bhkd->bhqk", q, k) * (Dh ** -0.5)
        p = _softmax(scores, axis=-1)
        o = torch.einsum("bhqk,bhkd->bhqd", p, v)
        return (lambda x, *d: x.permute(*d))(o, 0, 2, 1, 3).reshape(B, Sq, Hq * Dh) @ wo

    def _B_ref(x, k_cache, v_cache, wq, wo):
        B, Sq, D = x.shape
        H, Dh = 32, 128
        q = (lambda x, *d: x.permute(*d))((x @ wq).reshape(B, Sq, H, Dh), 0, 2, 1, 3)
        scores = torch.einsum("bhqd,bhkd->bhqk", q, k_cache) * (Dh ** -0.5)
        p = _softmax(scores, axis=-1)
        o = torch.einsum("bhqk,bhkd->bhqd", p, v_cache)
        return (lambda x, *d: x.permute(*d))(o, 0, 2, 1, 3).reshape(B, Sq, H * Dh) @ wo

    a = _A_ref(A_x, A_k_cache, A_v_cache, A_wq, A_wo)
    b = _B_ref(B_x, B_k_cache, B_v_cache, B_wq, B_wo)
    return torch.concatenate([a, b], axis=-1)
```

```python
import struct, sys

NAME = "concat_heads__gqa_block_cached__mha_block_cached__near_ridge"


def f32bits(x):
    return struct.unpack("<I", struct.pack("<f", x))[0]


class Emit:
    def __init__(self):
        self.lines = []
        self.state = 0
        self.last_w = {}
        self.last_cread = {}
        self.last_stdata = {}
        self.vm = []
        self.lgkm = []

    def raw(self, text):
        self.lines.append("    " + text)

    def label(self, name):
        self.lines.append(name + ":")

    def comment(self, text):
        self.lines.append("    ; " + text)

    def nop(self, n):
        while n > 0:
            k = min(n, 16)
            self.lines.append("    s_nop %d" % (k - 1))
            self.state += k
            n -= k

    def _need(self, prod_state, n):
        have = self.state - prod_state - 1
        return max(0, n - have)

    def ins(self, text, kind, reads=(), writes=(), creads=(), tag=None):
        need = 0
        for r in reads:
            lw = self.last_w.get(r)
            if lw is None:
                continue
            wk, ws = lw
            if kind == "mfma":
                if wk in ("valu", "trans", "permlane"):
                    need = max(need, self._need(ws, 2))
                elif wk == "mfma" and r not in creads:
                    need = max(need, self._need(ws, 8))
            elif kind in ("valu", "trans", "permlane", "rfl", "vstore", "dswrite", "vload", "dsread"):
                if wk == "mfma":
                    need = max(need, self._need(ws, 8))
                if wk == "trans" and kind in ("valu", "permlane", "rfl"):
                    need = max(need, self._need(ws, 1))
                if kind == "permlane" and wk in ("valu", "trans"):
                    need = max(need, self._need(ws, 2))
                if kind == "rfl" and wk in ("valu", "trans"):
                    need = max(need, self._need(ws, 1))
                if r[0] == "s" and wk == "rfl":
                    if kind in ("vload", "vstore"):
                        need = max(need, self._need(ws, 5))
                    else:
                        need = max(need, self._need(ws, 2))
        for w in writes:
            lw = self.last_w.get(w)
            if lw is not None and lw[0] == "mfma" and kind != "mfma":
                need = max(need, self._need(lw[1], 8))
            if lw is not None and lw[0] == "mfma" and kind == "mfma" and w not in creads:
                need = max(need, self._need(lw[1], 8))
            if kind in ("valu", "trans", "permlane"):
                cr = self.last_cread.get(w)
                if cr is not None:
                    need = max(need, self._need(cr, 3))
                sd = self.last_stdata.get(w)
                if sd is not None:
                    need = max(need, self._need(sd, 2))
        if need:
            self.nop(need)
        self.lines.append("    " + text)
        me = self.state
        self.state += 1
        for w in writes:
            self.last_w[w] = (kind, me)
        for c in creads:
            self.last_cread[c] = me
        if kind in ("vstore", "dswrite"):
            for r in reads:
                self.last_stdata[r] = me
        if kind in ("vload", "vstore"):
            self.vm.append(tag)
        if kind in ("dsread", "dswrite"):
            self.lgkm.append(tag)

    def wait_vm(self, tag):
        idx = None
        for i, t in enumerate(self.vm):
            if t == tag:
                idx = i
        if idx is None:
            return
        n = len(self.vm) - 1 - idx
        assert n <= 63
        self.lines.append("    s_waitcnt vmcnt(%d)" % n)
        self.state += 1
        self.vm = self.vm[idx + 1:]

    def wait_lgkm(self, tag=None):
        if tag is None:
            if not self.lgkm:
                return
            self.lines.append("    s_waitcnt lgkmcnt(0)")
            self.state += 1
            self.lgkm = []
            return
        idx = None
        for i, t in enumerate(self.lgkm):
            if t == tag:
                idx = i
        if idx is None:
            return
        n = len(self.lgkm) - 1 - idx
        assert n <= 15
        self.lines.append("    s_waitcnt lgkmcnt(%d)" % n)
        self.state += 1
        self.lgkm = self.lgkm[idx + 1:]

    def salu(self, text):
        self.lines.append("    " + text)
        self.state += 1


def V(n, cnt=1):
    return [("v", n + i) for i in range(cnt)]


def A(n, cnt=1):
    return [("a", n + i) for i in range(cnt)]


def vr(n, cnt):
    return "v[%d:%d]" % (n, n + cnt - 1) if cnt > 1 else "v%d" % n


def ar(n, cnt):
    return "a[%d:%d]" % (n, n + cnt - 1) if cnt > 1 else "a%d" % n


D = 3
vL = 1
vWQ = 2
vWO = 10
vXr = 12
vRAW = 16
vFRAG = 112
vVRAW = 176
vK = 240
vV = 241
vOw = 242
vSt = 246
vT = 247

aACC = 0
aXF = 128
aKF = 160

sBR, sHG, sRB, sW = 4, 5, 6, 7
SRD_X, SRD_K, SRD_V, SRD_WQ, SRD_WO, SRD_WS = 40, 44, 48, 52, 56, 60
sWQo, sWOo = 64, 65
sKV = 66
sSelLo, sSelHi = 70, 71
sSt = 72
sScale, sLog2e, sMask = 73, 74, 75
sXo = 76
sH = 77

LDS_O = 65536


def srd(n):
    return "s[%d:%d]" % (n, n + 3)


def acc(rb, c):
    return aACC + (rb * 8 + c) * 4


def gen_main():
    e = Emit()
    e.label("main_kernel")
    e.salu("s_cmp_ge_u32 s2, 256")
    e.salu("s_cbranch_scc1 main_done")
    e.salu("s_load_dwordx16 s[16:31], s[0:1], 0")
    e.salu("s_load_dwordx4 s[32:35], s[0:1], 64")
    e.salu("s_load_dwordx2 s[36:37], s[0:1], 96")
    e.ins("v_lshrrev_b32 v2, 6, v0", "valu", V(0), V(2))
    e.ins("v_and_b32 v%d, 63, v0" % vL, "valu", V(0), V(vL))
    e.ins("v_readfirstlane_b32 s%d, v2" % sW, "rfl", V(2), [("s", sW)])
    e.salu("s_and_b32 s3, s2, 7")
    e.salu("s_lshr_b32 s8, s2, 3")
    e.salu("s_lshr_b32 s%d, s3, 2" % sBR)
    e.salu("s_and_b32 s%d, s3, 3" % sHG)
    e.salu("s_lshl_b32 s%d, s%d, 1" % (sHG, sHG))
    e.salu("s_and_b32 s9, s8, 1")
    e.salu("s_or_b32 s%d, s%d, s9" % (sHG, sHG))
    e.salu("s_lshr_b32 s%d, s8, 1" % sRB)
    e.salu("s_mov_b32 s%d, 0x05040100" % sSelLo)
    e.salu("s_mov_b32 s%d, 0x07060302" % sSelHi)
    e.salu("s_mov_b32 s%d, 0x%08x" % (sScale, f32bits(128 ** -0.5)))
    e.salu("s_mov_b32 s%d, 0x%08x" % (sLog2e, f32bits(1.4426950408889634)))
    e.salu("s_mov_b32 s%d, 0xffff0000" % sMask)
    ti, tg, tt = vT, vT + 1, vT + 2
    e.ins("v_and_b32 v%d, 15, v%d" % (ti, vL), "valu", V(vL), V(ti))
    e.ins("v_lshrrev_b32 v%d, 4, v%d" % (tg, vL), "valu", V(vL), V(tg))
    e.ins("v_lshlrev_b32 v%d, 4, v%d" % (tt, ti), "valu", V(ti), V(tt))
    e.ins("v_lshl_add_u32 v%d, v%d, 16, v%d" % (vWQ, tg, tt), "valu", V(tg) + V(tt), V(vWQ))
    for j in range(1, 8):
        e.ins("v_add_u32 v%d, 0x%x, v%d" % (vWQ + j, j * 8192, vWQ), "valu", V(vWQ), V(vWQ + j))
    e.ins("v_lshl_add_u32 v%d, v%d, 13, v%d" % (vWO, tg, tt), "valu", V(tg) + V(tt), V(vWO))
    e.ins("v_add_u32 v%d, 0x1000, v%d" % (vWO + 1, vWO), "valu", V(vWO), V(vWO + 1))
    e.ins("v_lshlrev_b32 v%d, 8, v%d" % (vK, ti), "valu", V(ti), V(vK))
    e.ins("v_lshl_add_u32 v%d, v%d, 6, v%d" % (vK, tg, vK), "valu", V(tg) + V(vK), V(vK))
    e.ins("v_lshl_add_u32 v%d, v%d, 10, v%d" % (vV, tg, tt), "valu", V(tg) + V(tt), V(vV))
    e.ins("v_lshlrev_b32 v%d, 4, v%d" % (vSt, vL), "valu", V(vL), V(vSt))
    for slo in range(4):
        t3 = vT + 3
        e.ins("v_add_u32 v%d, %d, v%d" % (t3, 4 * slo, tg), "valu", V(tg), V(t3))
        e.ins("v_xor_b32 v%d, v%d, v%d" % (t3, t3, ti), "valu", V(t3) + V(ti), V(t3))
        e.ins("v_lshlrev_b32 v%d, 4, v%d" % (t3, t3), "valu", V(t3), V(t3))
        e.ins("v_lshl_add_u32 v%d, v%d, 10, v%d" % (vXr + slo, ti, t3), "valu", V(ti) + V(t3), V(vXr + slo))
    e.salu("s_waitcnt lgkmcnt(0)")
    e.salu("s_cmp_eq_u32 s%d, 0" % sBR)
    e.salu("s_cselect_b64 s[%d:%d], s[16:17], s[26:27]" % (SRD_X, SRD_X + 1))
    e.salu("s_cselect_b64 s[%d:%d], s[18:19], s[28:29]" % (SRD_K, SRD_K + 1))
    e.salu("s_cselect_b64 s[%d:%d], s[20:21], s[30:31]" % (SRD_V, SRD_V + 1))
    e.salu("s_cselect_b64 s[%d:%d], s[22:23], s[32:33]" % (SRD_WQ, SRD_WQ + 1))
    e.salu("s_cselect_b64 s[%d:%d], s[24:25], s[34:35]" % (SRD_WO, SRD_WO + 1))
    e.salu("s_mov_b64 s[%d:%d], s[36:37]" % (SRD_WS, SRD_WS + 1))
    for base, size in ((SRD_X, 1 << 20), (SRD_K, 8 << 20), (SRD_V, 8 << 20), (SRD_WQ, 4 << 20), (SRD_WO, 4 << 20), (SRD_WS, 32 << 20)):
        e.salu("s_mov_b32 s%d, 0x%x" % (base + 2, size))
        e.salu("s_mov_b32 s%d, 0x00020000" % (base + 3))
    e.salu("s_lshl_b32 s%d, s%d, 2" % (sH, sHG))
    e.salu("s_add_u32 s%d, s%d, s%d" % (sH, sH, sW))
    e.salu("s_lshl_b32 s%d, s%d, 8" % (sWQo, sH))
    e.salu("s_lshl_b32 s%d, s%d, 19" % (sWOo, sHG))
    e.salu("s_lshl_b32 s3, s%d, 8" % sW)
    e.salu("s_add_u32 s%d, s%d, s3" % (sWOo, sWOo))
    e.salu("s_lshl_b32 s3, s%d, 6" % sRB)
    e.salu("s_add_u32 s3, s3, s%d" % sH)
    e.salu("s_lshl_b32 s%d, s3, 13" % sKV)
    e.salu("s_add_u32 s%d, s%d, 0x1000" % (sKV + 1, sKV))
    e.salu("s_add_u32 s%d, s%d, 0x40000" % (sKV + 2, sKV))
    e.salu("s_add_u32 s%d, s%d, 0x41000" % (sKV + 3, sKV))
    e.salu("s_lshl_b32 s%d, s%d, 16" % (sXo, sRB))
    e.salu("s_lshl_b32 s3, s%d, 14" % sW)
    e.salu("s_add_u32 s%d, s%d, s3" % (sXo, sXo))
    e.salu("s_lshl_b32 s3, s%d, 4" % sBR)
    e.salu("s_add_u32 s3, s3, s%d" % sRB)
    e.salu("s_lshl_b32 s3, s3, 3")
    e.salu("s_add_u32 s3, s3, s%d" % sHG)
    e.salu("s_lshl_b32 s3, s3, 2")
    e.salu("s_add_u32 s3, s3, s%d" % sW)
    e.salu("s_lshl_b32 s%d, s3, 15" % sSt)

    for r in range(16):
        if r and r % 4 == 0:
            e.salu("s_add_u32 s%d, s%d, 0x1000" % (sXo, sXo))
        d = vVRAW + 4 * r
        e.ins("buffer_load_dwordx4 %s, v%d, %s, s%d offen offset:%d" % (vr(d, 4), vSt, srd(SRD_X), sXo, (r % 4) * 1024),
              "vload", V(vSt), V(d, 4), tag="x")

    def wload_instrs(t):
        out = []
        buf = vRAW + (t % D) * 32
        for j in range(8):
            d = buf + 4 * j
            if t < 16:
                def f(d=d, j=j):
                    e.ins("buffer_load_dwordx4 %s, v%d, %s, s%d offen" % (vr(d, 4), vWQ + j, srd(SRD_WQ), sWQo),
                          "vload", V(vWQ + j), V(d, 4), tag=("w", t))
            else:
                def f(d=d, j=j):
                    e.ins("buffer_load_dwordx4 %s, v%d, %s, s%d offen offset:%d" % (vr(d, 4), vWO + j // 4, srd(SRD_WO), sWOo, (j % 4) * 1024),
                          "vload", V(vWO + j // 4), V(d, 4), tag=("w", t))
            out.append(f)

        def adv():
            if t < 16:
                e.salu("s_add_u32 s%d, s%d, 0x40000" % (sWQo, sWQo))
            else:
                e.salu("s_add_u32 s%d, s%d, 0x8000" % (sWOo, sWOo))
        out.append(adv)
        return out

    for t in range(D):
        for f in wload_instrs(t):
            f()

    tb = vT + 4
    e.ins("v_mov_b32 v%d, s%d" % (tb, sW), "valu", [("s", sW)], V(tb))
    e.ins("v_lshlrev_b32 v%d, 14, v%d" % (tb, tb), "valu", V(tb), V(tb))
    e.wait_vm("x")
    for r in range(16):
        ta = vT + 5 + (r % 2)
        e.ins("v_xor_b32 v%d, %d, v%d" % (ta, r, vL), "valu", V(vL), V(ta))
        e.ins("v_lshl_add_u32 v%d, v%d, 4, v%d" % (ta, ta, tb), "valu", V(ta) + V(tb), V(ta))
        d = vVRAW + 4 * r
        e.ins("ds_write_b128 v%d, %s offset:%d" % (ta, vr(d, 4), r * 1024), "dswrite", V(ta) + V(d, 4), (), tag="xw")
    e.wait_lgkm()
    e.salu("s_barrier")

    def xf_reads(s, xbase_off):
        out = []
        for rb in range(4):
            d = aXF + (s % 2) * 16 + rb * 4
            off = rb * 16384 + (s // 4) * 256
            def f(d=d, off=off):
                e.ins("ds_read_b128 %s, v%d offset:%d" % (ar(d, 4), vXr + (s % 4), off), "dsread", V(vXr + (s % 4)), A(d, 4), tag=("xf", s))
            out.append(f)
        return out

    def perm_instrs(t):
        out = []
        buf = vRAW + (t % D) * 32
        fr = vFRAG + (t % 2) * 32
        for c in range(8):
            for p in range(4):
                s0 = buf + 4 * (2 * p + 1) + (c >> 1)
                s1 = buf + 4 * (2 * p) + (c >> 1)
                dd = fr + c * 4 + p
                sel = sSelHi if (c & 1) else sSelLo
                def f(dd=dd, s0=s0, s1=s1, sel=sel):
                    e.ins("v_perm_b32 v%d, v%d, v%d, s%d" % (dd, s0, s1, sel), "valu", V(s0) + V(s1), V(dd))
                out.append(f)
        return out

    def kv_loads(idx):
        bb = idx // 16
        isv = (idx // 8) % 2
        n = idx % 8
        if not isv:
            kt, sp = n // 4, n % 4
            d = aKF + bb * 32 + (kt * 4 + sp) * 4
            def f():
                e.ins("buffer_load_dwordx4 %s, v%d, %s, s%d offen offset:%d" % (ar(d, 4), vK, srd(SRD_K), sKV + bb * 2 + kt, sp * 16),
                      "vload", V(vK), A(d, 4), tag=("kv", bb, 0))
        else:
            d = vVRAW + bb * 32 + n * 4
            def f():
                e.ins("buffer_load_dwordx4 %s, v%d, %s, s%d offen offset:%d" % (vr(d, 4), vV, srd(SRD_V), sKV + bb * 2 + n // 4, (n % 4) * 256),
                      "vload", V(vV), V(d, 4), tag=("kv", bb, 1))
        return f

    def gemm_step(phase, s):
        t = phase * 16 + s
        last = s == 15
        e.comment("phase %d step %d" % (phase, s))
        e.wait_lgkm(("xf", s))
        mf = []
        fr = vFRAG + (t % 2) * 32
        for c in range(8):
            for rb in range(4):
                ac = acc(rb, c)
                xf = aXF + (s % 2) * 16 + rb * 4
                def f(ac=ac, xf=xf, c=c):
                    if s == 0:
                        e.ins("v_mfma_f32_16x16x32_bf16 %s, %s, %s, 0" % (ar(ac, 4), vr(fr + c * 4, 4), ar(xf, 4)), "mfma",
                              V(fr + c * 4, 4) + A(xf, 4), A(ac, 4))
                    else:
                        e.ins("v_mfma_f32_16x16x32_bf16 %s, %s, %s, %s" % (ar(ac, 4), vr(fr + c * 4, 4), ar(xf, 4), ar(ac, 4)), "mfma",
                              V(fr + c * 4, 4) + A(xf, 4) + A(ac, 4), A(ac, 4), creads=A(ac, 4))
                mf.append(f)
        extras = [[] for _ in range(32)]
        if t + D < 32:
            wl = wload_instrs(t + D)
            for i, f in enumerate(wl):
                extras[i].append(f)
        if phase == 0:
            extras[9].append(kv_loads(2 * s))
            extras[10].append(kv_loads(2 * s + 1))
        if not last:
            for i, f in enumerate(xf_reads(s + 1, 0)):
                extras[i].append(f)
            extras[12].append(lambda: e.wait_vm(("w", t + 1)))
            pm = perm_instrs(t + 1)
            slots = list(range(12, 32))
            k = 0
            for i, f in enumerate(pm):
                extras[slots[i * len(slots) // len(pm)]].append(f)
        for m in range(32):
            mf[m]()
            for f in extras[m]:
                f()

    for f in xf_reads(0, 0):
        f()
    e.wait_vm(("w", 0))
    for f in perm_instrs(0):
        f()
    for s in range(16):
        gemm_step(0, s)

    ti, tg, t3 = vT, vT + 1, vT + 2
    e.ins("v_and_b32 v%d, 15, v%d" % (ti, vL), "valu", V(vL), V(ti))
    e.ins("v_lshrrev_b32 v%d, 4, v%d" % (tg, vL), "valu", V(vL), V(tg))
    e.salu("s_lshl_b32 s3, s%d, 8" % sW)
    e.salu("s_add_u32 s3, s3, 0x%x" % LDS_O)
    for r in range(4):
        e.ins("v_lshl_add_u32 v%d, v%d, 2, %d" % (t3, tg, r), "valu", V(tg), V(t3))
        e.ins("v_xor_b32 v%d, v%d, v%d" % (t3, t3, ti), "valu", V(t3) + V(ti), V(t3))
        e.ins("v_lshlrev_b32 v%d, 4, v%d" % (t3, t3), "valu", V(t3), V(t3))
        e.ins("v_lshl_add_u32 v%d, v%d, 10, v%d" % (t3, ti, t3), "valu", V(ti) + V(t3), V(t3))
        e.ins("v_add_u32 v%d, s3, v%d" % (vOw + r, t3), "valu", V(t3), V(vOw + r))
    for slo in range(4):
        e.ins("v_add_u32 v%d, 0x%x, v%d" % (vXr + slo, LDS_O, vXr + slo), "valu", V(vXr + slo), V(vXr + slo))

    QF = vFRAG
    SS = vFRAG + 32
    PF = vFRAG + 48
    TT = vFRAG + 56
    for bb in range(2):
        for qt in range(2):
            rb = 2 * bb + qt
            for sp in range(4):
                for p in range(4):
                    t0 = vT + (p % 2) * 2
                    t1 = t0 + 1
                    a0 = acc(rb, 2 * p) + sp
                    a1 = acc(rb, 2 * p + 1) + sp
                    e.ins("v_accvgpr_read_b32 v%d, a%d" % (t0, a0), "valu", A(a0), V(t0))
                    e.ins("v_accvgpr_read_b32 v%d, a%d" % (t1, a1), "valu", A(a1), V(t1))
                    dd = QF + (qt * 4 + sp) * 4 + p
                    e.ins("v_cvt_pk_bf16_f32 v%d, v%d, v%d" % (dd, t0, t1), "valu", V(t0) + V(t1), V(dd))
        e.wait_vm(("kv", bb, 0))
        for sp in range(4):
            for kt in range(2):
                for qt in range(2):
                    sd = SS + (kt * 2 + qt) * 4
                    kf = aKF + bb * 32 + (kt * 4 + sp) * 4
                    qf = QF + (qt * 4 + sp) * 4
                    if sp == 0:
                        e.ins("v_mfma_f32_16x16x32_bf16 %s, %s, %s, 0" % (vr(sd, 4), ar(kf, 4), vr(qf, 4)), "mfma",
                              A(kf, 4) + V(qf, 4), V(sd, 4))
                    else:
                        e.ins("v_mfma_f32_16x16x32_bf16 %s, %s, %s, %s" % (vr(sd, 4), ar(kf, 4), vr(qf, 4), vr(sd, 4)), "mfma",
                              A(kf, 4) + V(qf, 4) + V(sd, 4), V(sd, 4), creads=V(sd, 4))
        e.wait_vm(("kv", bb, 1))
        vb = vVRAW + bb * 32
        for c in range(8):
            for p in range(4):
                s0 = vb + 4 * (2 * p + 1) + (c >> 1)
                s1 = vb + 4 * (2 * p) + (c >> 1)
                dd = QF + c * 4 + p
                sel = sSelHi if (c & 1) else sSelLo
                e.ins("v_perm_b32 v%d, v%d, v%d, s%d" % (dd, s0, s1, sel), "valu", V(s0) + V(s1), V(dd))
        for qt in range(2):
            vals = [SS + (kt * 2 + qt) * 4 + r for kt in range(2) for r in range(4)]
            for rnd in range(2):
                for k in range(0, 8, 2):
                    x0, x1 = vals[k], vals[k + 1]
                    tp = TT
                    e.ins("v_cvt_pk_bf16_f32 v%d, v%d, v%d" % (tp, x0, x1), "valu", V(x0) + V(x1), V(tp))
                    e.ins("v_lshlrev_b32 v%d, 16, v%d" % (x0, tp), "valu", V(tp), V(x0))
                    e.ins("v_and_b32 v%d, s%d, v%d" % (x1, sMask, tp), "valu", V(tp), V(x1))
                    if rnd == 0:
                        e.ins("v_mul_f32 v%d, s%d, v%d" % (x0, sScale, x0), "valu", V(x0), V(x0))
                        e.ins("v_mul_f32 v%d, s%d, v%d" % (x1, sScale, x1), "valu", V(x1), V(x1))
            mx, m2 = TT + 1, TT + 2
            e.ins("v_max3_f32 v%d, v%d, v%d, v%d" % (mx, vals[0], vals[1], vals[2]), "valu", V(vals[0]) + V(vals[1]) + V(vals[2]), V(mx))
            e.ins("v_max3_f32 v%d, v%d, v%d, v%d" % (mx, mx, vals[3], vals[4]), "valu", V(mx) + V(vals[3]) + V(vals[4]), V(mx))
            e.ins("v_max3_f32 v%d, v%d, v%d, v%d" % (mx, mx, vals[5], vals[6]), "valu", V(mx) + V(vals[5]) + V(vals[6]), V(mx))
            e.ins("v_max_f32 v%d, v%d, v%d" % (mx, mx, vals[7]), "valu", V(mx) + V(vals[7]), V(mx))
            for sw in ("v_permlane16_swap_b32", "v_permlane32_swap_b32"):
                e.ins("v_mov_b32 v%d, v%d" % (m2, mx), "valu", V(mx), V(m2))
                e.ins("%s v%d, v%d" % (sw, mx, m2), "permlane", V(mx) + V(m2), V(mx) + V(m2))
                e.ins("v_max_f32 v%d, v%d, v%d" % (mx, mx, m2), "valu", V(mx) + V(m2), V(mx))
            for x in vals:
                e.ins("v_sub_f32 v%d, v%d, v%d" % (x, x, mx), "valu", V(x) + V(mx), V(x))
            for x in vals:
                e.ins("v_mul_f32 v%d, s%d, v%d" % (x, sLog2e, x), "valu", V(x), V(x))
            for x in vals:
                e.ins("v_exp_f32 v%d, v%d" % (x, x), "trans", V(x), V(x))
            sm, s2_ = TT + 3, TT + 4
            e.ins("v_add_f32 v%d, v%d, v%d" % (sm, vals[0], vals[1]), "valu", V(vals[0]) + V(vals[1]), V(sm))
            e.ins("v_add_f32 v%d, v%d, v%d" % (s2_, vals[2], vals[3]), "valu", V(vals[2]) + V(vals[3]), V(s2_))
            e.ins("v_add_f32 v%d, v%d, v%d" % (sm, sm, s2_), "valu", V(sm) + V(s2_), V(sm))
            e.ins("v_add_f32 v%d, v%d, v%d" % (s2_, vals[4], vals[5]), "valu", V(vals[4]) + V(vals[5]), V(s2_))
            e.ins("v_add_f32 v%d, v%d, v%d" % (sm, sm, s2_), "valu", V(sm) + V(s2_), V(sm))
            e.ins("v_add_f32 v%d, v%d, v%d" % (s2_, vals[6], vals[7]), "valu", V(vals[6]) + V(vals[7]), V(s2_))
            e.ins("v_add_f32 v%d, v%d, v%d" % (sm, sm, s2_), "valu", V(sm) + V(s2_), V(sm))
            for sw in ("v_permlane16_swap_b32", "v_permlane32_swap_b32"):
                e.ins("v_mov_b32 v%d, v%d" % (s2_, sm), "valu", V(sm), V(s2_))
                e.ins("%s v%d, v%d" % (sw, sm, s2_), "permlane", V(sm) + V(s2_), V(sm) + V(s2_))
                e.ins("v_add_f32 v%d, v%d, v%d" % (sm, sm, s2_), "valu", V(sm) + V(s2_), V(sm))
            e.ins("v_rcp_f32 v%d, v%d" % (sm, sm), "trans", V(sm), V(sm))
            for x in vals:
                e.ins("v_mul_f32 v%d, v%d, v%d" % (x, x, sm), "valu", V(x) + V(sm), V(x))
            for p in range(4):
                dd = PF + qt * 4 + p
                e.ins("v_cvt_pk_bf16_f32 v%d, v%d, v%d" % (dd, vals[2 * p], vals[2 * p + 1]), "valu", V(vals[2 * p]) + V(vals[2 * p + 1]), V(dd))
        for qt in range(2):
            for c in range(8):
                ac = acc(2 * bb + qt, c)
                e.ins("v_mfma_f32_16x16x32_bf16 %s, %s, %s, 0" % (ar(ac, 4), vr(QF + c * 4, 4), vr(PF + qt * 4, 4)), "mfma",
                      V(QF + c * 4, 4) + V(PF + qt * 4, 4), A(ac, 4))
        n = 0
        for qt in range(2):
            for r in range(4):
                dq = SS + (n % 4) * 4
                n += 1
                for p in range(4):
                    t0 = vT + (p % 2) * 2
                    t1 = t0 + 1
                    a0 = acc(2 * bb + qt, 2 * p) + r
                    a1 = acc(2 * bb + qt, 2 * p + 1) + r
                    e.ins("v_accvgpr_read_b32 v%d, a%d" % (t0, a0), "valu", A(a0), V(t0))
                    e.ins("v_accvgpr_read_b32 v%d, a%d" % (t1, a1), "valu", A(a1), V(t1))
                    e.ins("v_cvt_pk_bf16_f32 v%d, v%d, v%d" % (dq + p, t0, t1), "valu", V(t0) + V(t1), V(dq + p))
                e.ins("ds_write_b128 v%d, %s offset:%d" % (vOw + r, vr(dq, 4), (32 * bb + 16 * qt) * 1024), "dswrite",
                      V(vOw + r) + V(dq, 4), (), tag="ow")
    e.wait_lgkm()
    e.salu("s_barrier")

    for f in xf_reads(0, 0):
        f()
    e.wait_vm(("w", 16))
    for f in perm_instrs(16):
        f()
    for s in range(16):
        gemm_step(1, s)

    n = 0
    for rb in range(4):
        for c in range(8):
            if n and n % 4 == 0:
                e.salu("s_add_u32 s%d, s%d, 0x1000" % (sSt, sSt))
            ac = acc(rb, c)
            e.ins("buffer_store_dwordx4 %s, v%d, %s, s%d offen offset:%d" % (ar(ac, 4), vSt, srd(SRD_WS), sSt, (n % 4) * 1024),
                  "vstore", A(ac, 4) + V(vSt), (), tag="st")
            n += 1
    e.label("main_done")
    e.salu("s_endpgm")
    return e.lines


def gen_reduce():
    e = Emit()
    e.label("reduce_kernel")
    e.salu("s_cmp_ge_u32 s2, 256")
    e.salu("s_cbranch_scc1 reduce_done")
    e.salu("s_load_dwordx2 s[8:9], s[0:1], 80")
    e.salu("s_load_dwordx2 s[12:13], s[0:1], 96")
    e.ins("v_lshrrev_b32 v2, 6, v0", "valu", V(0), V(2))
    e.ins("v_and_b32 v1, 63, v0", "valu", V(0), V(1))
    e.ins("v_readfirstlane_b32 s7, v2", "rfl", V(2), [("s", 7)])
    e.ins("v_lshlrev_b32 v3, 4, v1", "valu", V(1), V(3))
    e.ins("v_and_b32 v4, 15, v1", "valu", V(1), V(4))
    e.ins("v_lshrrev_b32 v5, 4, v1", "valu", V(1), V(5))
    e.ins("v_lshlrev_b32 v5, 6, v5", "valu", V(5), V(5))
    e.ins("v_lshl_add_u32 v4, v4, 11, v5", "valu", V(4) + V(5), V(4))
    e.salu("s_nop 2")
    e.salu("s_lshl_b32 s3, s2, 2")
    e.salu("s_add_u32 s3, s3, s7")
    e.salu("s_and_b32 s20, s3, 1")
    e.salu("s_lshr_b32 s21, s3, 1")
    e.salu("s_and_b32 s21, s21, 3")
    e.salu("s_lshr_b32 s22, s3, 3")
    e.salu("s_and_b32 s22, s22, 3")
    e.salu("s_lshr_b32 s23, s3, 5")
    e.salu("s_and_b32 s23, s23, 15")
    e.salu("s_lshr_b32 s24, s3, 9")
    e.salu("s_lshl_b32 s25, s24, 4")
    e.salu("s_add_u32 s25, s25, s23")
    e.salu("s_lshl_b32 s25, s25, 5")
    e.salu("s_add_u32 s25, s25, s22")
    e.salu("s_lshl_b32 s25, s25, 15")
    e.salu("s_lshl_b32 s26, s21, 13")
    e.salu("s_add_u32 s25, s25, s26")
    e.salu("s_lshl_b32 s26, s20, 12")
    e.salu("s_add_u32 s25, s25, s26")
    e.salu("s_lshl_b32 s27, s23, 17")
    e.salu("s_lshl_b32 s26, s21, 15")
    e.salu("s_add_u32 s27, s27, s26")
    e.salu("s_lshl_b32 s26, s24, 10")
    e.salu("s_add_u32 s27, s27, s26")
    e.salu("s_lshl_b32 s26, s22, 8")
    e.salu("s_add_u32 s27, s27, s26")
    e.salu("s_lshl_b32 s26, s20, 3")
    e.salu("s_add_u32 s27, s27, s26")
    e.salu("s_waitcnt lgkmcnt(0)")
    e.salu("s_mov_b32 s10, 0x200000")
    e.salu("s_mov_b32 s11, 0x00020000")
    e.salu("s_mov_b32 s14, 0x2000000")
    e.salu("s_mov_b32 s15, 0x00020000")
    base = 16
    for hg in range(8):
        for cc in range(4):
            d = base + (hg * 4 + cc) * 4
            e.ins("buffer_load_dwordx4 %s, v3, s[12:15], s25 offen offset:%d" % (vr(d, 4), cc * 1024), "vload", V(3), V(d, 4), tag=("p", hg))
        if hg < 7:
            e.salu("s_add_u32 s25, s25, 0x20000")
    for hg in range(1, 8):
        e.wait_vm(("p", hg))
        for cc in range(4):
            for r in range(0, 4, 2):
                a_ = base + cc * 4 + r
                b_ = base + (hg * 4 + cc) * 4 + r
                e.ins("v_pk_add_f32 %s, %s, %s" % (vr(a_, 2), vr(a_, 2), vr(b_, 2)), "valu", V(a_, 2) + V(b_, 2), V(a_, 2))
    for r in range(4):
        d = 8 + (r % 2) * 2
        e.ins("v_cvt_pk_bf16_f32 v%d, v%d, v%d" % (d, base + r, base + 4 + r), "valu", V(base + r) + V(base + 4 + r), V(d))
        e.ins("v_cvt_pk_bf16_f32 v%d, v%d, v%d" % (d + 1, base + 8 + r, base + 12 + r), "valu", V(base + 8 + r) + V(base + 12 + r), V(d + 1))
        e.ins("buffer_store_dwordx2 %s, v4, s[8:11], s27 offen offset:%d" % (vr(d, 2), r * 16), "vstore", V(d, 2) + V(4), (), tag="o")
    e.label("reduce_done")
    e.salu("s_endpgm")
    return e.lines


HEADER = """; Fused two-branch attention block: Q-proj + attention + out-proj partials, then a reduce kernel.
; @launch kernel=main_kernel grid=(256,1,1) block=(256,1,1) lds=131072
; @launch kernel=reduce_kernel grid=(256,1,1) block=(256,1,1) lds=0
.amdgcn_target "amdgcn-amd-amdhsa--gfx950"
.text
"""


def kd(name, vgpr, sgpr, accum):
    return """.p2align 6
.amdhsa_kernel %s
  .amdhsa_next_free_vgpr %d
  .amdhsa_next_free_sgpr %d
  .amdhsa_accum_offset %d
  .amdhsa_group_segment_fixed_size 0
  .amdhsa_kernarg_size 104
  .amdhsa_user_sgpr_count 2
  .amdhsa_user_sgpr_kernarg_segment_ptr 1
  .amdhsa_system_sgpr_workgroup_id_x 1
.end_amdhsa_kernel
""" % (name, vgpr, sgpr, accum)


def main():
    out = [HEADER]
    for name, lines in (("main_kernel", gen_main()), ("reduce_kernel", gen_reduce())):
        out.append(".globl %s\n.p2align 8\n.type %s,@function\n" % (name, name))
        out.append("\n".join(lines) + "\n")
    out.append('.section .rodata,"a"\n')
    out.append(kd("main_kernel", 512, 96, 256))
    out.append(kd("reduce_kernel", 144, 32, 144))
    text = "".join(out)
    path = sys.argv[1] if len(sys.argv) > 1 else "cdna_kernels/%s.s" % NAME
    open(path, "w").write(text)
    print("wrote", path, len(text), "bytes")


if __name__ == "__main__":
    main()
```

```python
import struct, sys

NAME = "concat_heads__gqa_block_cached__mha_block_cached__near_ridge"


def f32bits(x):
    return struct.unpack("<I", struct.pack("<f", x))[0]


class Emit:
    def __init__(self):
        self.lines = []
        self.state = 0
        self.last_w = {}
        self.last_cread = {}
        self.last_stdata = {}
        self.vm = []
        self.lgkm = []

    def raw(self, text):
        self.lines.append("    " + text)

    def label(self, name):
        self.lines.append(name + ":")

    def comment(self, text):
        self.lines.append("    ; " + text)

    def nop(self, n):
        while n > 0:
            k = min(n, 16)
            self.lines.append("    s_nop %d" % (k - 1))
            self.state += k
            n -= k

    def _need(self, prod_state, n):
        have = self.state - prod_state - 1
        return max(0, n - have)

    def ins(self, text, kind, reads=(), writes=(), creads=(), tag=None):
        need = 0
        for r in reads:
            lw = self.last_w.get(r)
            if lw is None:
                continue
            wk, ws = lw
            if kind == "mfma":
                if wk in ("valu", "trans", "permlane"):
                    need = max(need, self._need(ws, 2))
                elif wk == "mfma" and r not in creads:
                    need = max(need, self._need(ws, 8))
            elif kind in ("valu", "trans", "permlane", "rfl", "vstore", "dswrite", "vload", "dsread"):
                if wk == "mfma":
                    need = max(need, self._need(ws, 8))
                if wk == "trans" and kind in ("valu", "permlane", "rfl"):
                    need = max(need, self._need(ws, 1))
                if kind == "permlane" and wk in ("valu", "trans"):
                    need = max(need, self._need(ws, 2))
                if kind == "rfl" and wk in ("valu", "trans"):
                    need = max(need, self._need(ws, 1))
                if r[0] == "s" and wk == "rfl":
                    if kind in ("vload", "vstore"):
                        need = max(need, self._need(ws, 5))
                    else:
                        need = max(need, self._need(ws, 2))
        for w in writes:
            lw = self.last_w.get(w)
            if lw is not None and lw[0] == "mfma" and kind != "mfma":
                need = max(need, self._need(lw[1], 8))
            if lw is not None and lw[0] == "mfma" and kind == "mfma" and w not in creads:
                need = max(need, self._need(lw[1], 8))
            if kind in ("valu", "trans", "permlane"):
                cr = self.last_cread.get(w)
                if cr is not None:
                    need = max(need, self._need(cr, 3))
                sd = self.last_stdata.get(w)
                if sd is not None:
                    need = max(need, self._need(sd, 2))
        if need:
            self.nop(need)
        self.lines.append("    " + text)
        me = self.state
        self.state += 1
        for w in writes:
            self.last_w[w] = (kind, me)
        for c in creads:
            self.last_cread[c] = me
        if kind in ("vstore", "dswrite"):
            for r in reads:
                self.last_stdata[r] = me
        if kind in ("vload", "vstore"):
            self.vm.append(tag)
        if kind in ("dsread", "dswrite"):
            self.lgkm.append(tag)

    def wait_vm(self, tag):
        idx = None
        for i, t in enumerate(self.vm):
            if t == tag:
                idx = i
        if idx is None:
            return
        n = len(self.vm) - 1 - idx
        assert n <= 63
        self.lines.append("    s_waitcnt vmcnt(%d)" % n)
        self.state += 1
        self.vm = self.vm[idx + 1:]

    def wait_lgkm(self, tag=None):
        if tag is None:
            if not self.lgkm:
                return
            self.lines.append("    s_waitcnt lgkmcnt(0)")
            self.state += 1
            self.lgkm = []
            return
        idx = None
        for i, t in enumerate(self.lgkm):
            if t == tag:
                idx = i
        if idx is None:
            return
        n = len(self.lgkm) - 1 - idx
        assert n <= 15
        self.lines.append("    s_waitcnt lgkmcnt(%d)" % n)
        self.state += 1
        self.lgkm = self.lgkm[idx + 1:]

    def salu(self, text):
        self.lines.append("    " + text)
        self.state += 1


def V(n, cnt=1):
    return [("v", n + i) for i in range(cnt)]


def A(n, cnt=1):
    return [("a", n + i) for i in range(cnt)]


def vr(n, cnt):
    return "v[%d:%d]" % (n, n + cnt - 1) if cnt > 1 else "v%d" % n


def ar(n, cnt):
    return "a[%d:%d]" % (n, n + cnt - 1) if cnt > 1 else "a%d" % n


D = 3
vL = 1
vWQ = 2
vWO = 10
vXr = 12
vRAW = 16
vFRAG = 112
vVRAW = 176
vK = 240
vV = 241
vOw = 242
vSt = 246
vT = 247

aACC = 0
aXF = 128
aKF = 160

sBR, sHG, sRB, sW = 4, 5, 6, 7
SRD_X, SRD_K, SRD_V, SRD_WQ, SRD_WO, SRD_WS = 40, 44, 48, 52, 56, 60
sWQo, sWOo = 64, 65
sKV = 66
sSelLo, sSelHi = 70, 71
sSt = 72
sScale, sLog2e, sMask = 73, 74, 75
sXo = 76
sH = 77

LDS_O = 65536


def srd(n):
    return "s[%d:%d]" % (n, n + 3)


def acc(rb, c):
    return aACC + (rb * 8 + c) * 4


STAMP = False

def gen_main():
    e = Emit()
    nst = [0]
    def stamp():
        if not STAMP:
            return
        e.salu("s_memtime s[%d:%d]" % (80 + 2*nst[0], 81 + 2*nst[0]))
        nst[0] += 1
    e.label("main_kernel")
    e.salu("s_cmp_ge_u32 s2, 256")
    e.salu("s_cbranch_scc1 main_done")
    stamp()
    e.salu("s_load_dwordx16 s[16:31], s[0:1], 0")
    e.salu("s_load_dwordx2 s[38:39], s[0:1], 88")
    e.salu("s_load_dwordx4 s[32:35], s[0:1], 64")
    e.salu("s_load_dwordx2 s[36:37], s[0:1], 96")
    e.ins("v_lshrrev_b32 v2, 6, v0", "valu", V(0), V(2))
    e.ins("v_and_b32 v%d, 63, v0" % vL, "valu", V(0), V(vL))
    e.ins("v_readfirstlane_b32 s%d, v2" % sW, "rfl", V(2), [("s", sW)])
    e.salu("s_and_b32 s3, s2, 7")
    e.salu("s_lshr_b32 s8, s2, 3")
    e.salu("s_lshr_b32 s%d, s3, 2" % sBR)
    e.salu("s_and_b32 s%d, s3, 3" % sHG)
    e.salu("s_lshl_b32 s%d, s%d, 1" % (sHG, sHG))
    e.salu("s_and_b32 s9, s8, 1")
    e.salu("s_or_b32 s%d, s%d, s9" % (sHG, sHG))
    e.salu("s_lshr_b32 s%d, s8, 1" % sRB)
    e.salu("s_mov_b32 s%d, 0x05040100" % sSelLo)
    e.salu("s_mov_b32 s%d, 0x07060302" % sSelHi)
    e.salu("s_mov_b32 s%d, 0x%08x" % (sScale, f32bits(128 ** -0.5)))
    e.salu("s_mov_b32 s%d, 0x%08x" % (sLog2e, f32bits(1.4426950408889634)))
    e.salu("s_mov_b32 s%d, 0xffff0000" % sMask)
    ti, tg, tt = vT, vT + 1, vT + 2
    e.ins("v_and_b32 v%d, 15, v%d" % (ti, vL), "valu", V(vL), V(ti))
    e.ins("v_lshrrev_b32 v%d, 4, v%d" % (tg, vL), "valu", V(vL), V(tg))
    e.ins("v_lshlrev_b32 v%d, 4, v%d" % (tt, ti), "valu", V(ti), V(tt))
    e.ins("v_lshl_add_u32 v%d, v%d, 16, v%d" % (vWQ, tg, tt), "valu", V(tg) + V(tt), V(vWQ))
    for j in range(1, 8):
        e.ins("v_add_u32 v%d, 0x%x, v%d" % (vWQ + j, j * 8192, vWQ), "valu", V(vWQ), V(vWQ + j))
    e.ins("v_lshl_add_u32 v%d, v%d, 13, v%d" % (vWO, tg, tt), "valu", V(tg) + V(tt), V(vWO))
    e.ins("v_add_u32 v%d, 0x1000, v%d" % (vWO + 1, vWO), "valu", V(vWO), V(vWO + 1))
    e.ins("v_lshlrev_b32 v%d, 8, v%d" % (vK, ti), "valu", V(ti), V(vK))
    e.ins("v_lshl_add_u32 v%d, v%d, 6, v%d" % (vK, tg, vK), "valu", V(tg) + V(vK), V(vK))
    e.ins("v_lshl_add_u32 v%d, v%d, 10, v%d" % (vV, tg, tt), "valu", V(tg) + V(tt), V(vV))
    e.ins("v_lshlrev_b32 v%d, 4, v%d" % (vSt, vL), "valu", V(vL), V(vSt))
    for slo in range(4):
        t3 = vT + 3
        e.ins("v_add_u32 v%d, %d, v%d" % (t3, 4 * slo, tg), "valu", V(tg), V(t3))
        e.ins("v_xor_b32 v%d, v%d, v%d" % (t3, t3, ti), "valu", V(t3) + V(ti), V(t3))
        e.ins("v_lshlrev_b32 v%d, 4, v%d" % (t3, t3), "valu", V(t3), V(t3))
        e.ins("v_lshl_add_u32 v%d, v%d, 10, v%d" % (vXr + slo, ti, t3), "valu", V(ti) + V(t3), V(vXr + slo))
    e.salu("s_waitcnt lgkmcnt(0)")
    e.salu("s_cmp_eq_u32 s%d, 0" % sBR)
    e.salu("s_cselect_b64 s[%d:%d], s[16:17], s[26:27]" % (SRD_X, SRD_X + 1))
    e.salu("s_cselect_b64 s[%d:%d], s[18:19], s[28:29]" % (SRD_K, SRD_K + 1))
    e.salu("s_cselect_b64 s[%d:%d], s[20:21], s[30:31]" % (SRD_V, SRD_V + 1))
    e.salu("s_cselect_b64 s[%d:%d], s[22:23], s[32:33]" % (SRD_WQ, SRD_WQ + 1))
    e.salu("s_cselect_b64 s[%d:%d], s[24:25], s[34:35]" % (SRD_WO, SRD_WO + 1))
    e.salu("s_mov_b64 s[%d:%d], s[36:37]" % (SRD_WS, SRD_WS + 1))
    for base, size in ((SRD_X, 1 << 20), (SRD_K, 8 << 20), (SRD_V, 8 << 20), (SRD_WQ, 4 << 20), (SRD_WO, 4 << 20), (SRD_WS, 32 << 20)):
        e.salu("s_mov_b32 s%d, 0x%x" % (base + 2, size))
        e.salu("s_mov_b32 s%d, 0x00020000" % (base + 3))
    e.salu("s_lshl_b32 s%d, s%d, 2" % (sH, sHG))
    e.salu("s_add_u32 s%d, s%d, s%d" % (sH, sH, sW))
    e.salu("s_lshl_b32 s%d, s%d, 8" % (sWQo, sH))
    e.salu("s_lshl_b32 s%d, s%d, 19" % (sWOo, sHG))
    e.salu("s_lshl_b32 s3, s%d, 8" % sW)
    e.salu("s_add_u32 s%d, s%d, s3" % (sWOo, sWOo))
    e.salu("s_lshl_b32 s3, s%d, 6" % sRB)
    e.salu("s_add_u32 s3, s3, s%d" % sH)
    e.salu("s_lshl_b32 s%d, s3, 13" % sKV)
    e.salu("s_add_u32 s%d, s%d, 0x1000" % (sKV + 1, sKV))
    e.salu("s_add_u32 s%d, s%d, 0x40000" % (sKV + 2, sKV))
    e.salu("s_add_u32 s%d, s%d, 0x41000" % (sKV + 3, sKV))
    e.salu("s_lshl_b32 s%d, s%d, 16" % (sXo, sRB))
    e.salu("s_lshl_b32 s3, s%d, 14" % sW)
    e.salu("s_add_u32 s%d, s%d, s3" % (sXo, sXo))
    e.salu("s_lshl_b32 s3, s%d, 4" % sBR)
    e.salu("s_add_u32 s3, s3, s%d" % sRB)
    e.salu("s_lshl_b32 s3, s3, 3")
    e.salu("s_add_u32 s3, s3, s%d" % sHG)
    e.salu("s_lshl_b32 s3, s3, 2")
    e.salu("s_add_u32 s3, s3, s%d" % sW)
    e.salu("s_lshl_b32 s%d, s3, 15" % sSt)

    for r in range(16):
        if r and r % 4 == 0:
            e.salu("s_add_u32 s%d, s%d, 0x1000" % (sXo, sXo))
        d = vVRAW + 4 * r
        e.ins("buffer_load_dwordx4 %s, v%d, %s, s%d offen offset:%d" % (vr(d, 4), vSt, srd(SRD_X), sXo, (r % 4) * 1024),
              "vload", V(vSt), V(d, 4), tag="x")

    def wload_instrs(t):
        out = []
        buf = vRAW + (t % D) * 32
        for j in range(8):
            d = buf + 4 * j
            if t < 16:
                def f(d=d, j=j):
                    e.ins("buffer_load_dwordx4 %s, v%d, %s, s%d offen" % (vr(d, 4), vWQ + j, srd(SRD_WQ), sWQo),
                          "vload", V(vWQ + j), V(d, 4), tag=("w", t))
            else:
                def f(d=d, j=j):
                    e.ins("buffer_load_dwordx4 %s, v%d, %s, s%d offen offset:%d" % (vr(d, 4), vWO + j // 4, srd(SRD_WO), sWOo, (j % 4) * 1024),
                          "vload", V(vWO + j // 4), V(d, 4), tag=("w", t))
            out.append(f)

        def adv():
            if t < 16:
                e.salu("s_add_u32 s%d, s%d, 0x40000" % (sWQo, sWQo))
            else:
                e.salu("s_add_u32 s%d, s%d, 0x8000" % (sWOo, sWOo))
        out.append(adv)
        return out

    for t in range(D):
        for f in wload_instrs(t):
            f()

    tb = vT + 4
    e.ins("v_mov_b32 v%d, s%d" % (tb, sW), "valu", [("s", sW)], V(tb))
    e.ins("v_lshlrev_b32 v%d, 14, v%d" % (tb, tb), "valu", V(tb), V(tb))
    e.wait_vm("x")
    for r in range(16):
        ta = vT + 5 + (r % 2)
        e.ins("v_xor_b32 v%d, %d, v%d" % (ta, r, vL), "valu", V(vL), V(ta))
        e.ins("v_lshl_add_u32 v%d, v%d, 4, v%d" % (ta, ta, tb), "valu", V(ta) + V(tb), V(ta))
        d = vVRAW + 4 * r
        e.ins("ds_write_b128 v%d, %s offset:%d" % (ta, vr(d, 4), r * 1024), "dswrite", V(ta) + V(d, 4), (), tag="xw")
    e.wait_lgkm()
    stamp()
    e.salu("s_barrier")
    stamp()

    def xf_reads(s, xbase_off):
        out = []
        for rb in range(4):
            d = aXF + (s % 2) * 16 + rb * 4
            off = rb * 16384 + (s // 4) * 256
            def f(d=d, off=off):
                e.ins("ds_read_b128 %s, v%d offset:%d" % (ar(d, 4), vXr + (s % 4), off), "dsread", V(vXr + (s % 4)), A(d, 4), tag=("xf", s))
            out.append(f)
        return out

    def perm_instrs(t):
        out = []
        buf = vRAW + (t % D) * 32
        fr = vFRAG + (t % 2) * 32
        for c in range(8):
            for p in range(4):
                s0 = buf + 4 * (2 * p + 1) + (c >> 1)
                s1 = buf + 4 * (2 * p) + (c >> 1)
                dd = fr + c * 4 + p
                sel = sSelHi if (c & 1) else sSelLo
                def f(dd=dd, s0=s0, s1=s1, sel=sel):
                    e.ins("v_perm_b32 v%d, v%d, v%d, s%d" % (dd, s0, s1, sel), "valu", V(s0) + V(s1), V(dd))
                out.append(f)
        return out

    def kv_loads(idx):
        bb = idx // 16
        isv = (idx // 8) % 2
        n = idx % 8
        if not isv:
            kt, sp = n // 4, n % 4
            d = aKF + bb * 32 + (kt * 4 + sp) * 4
            def f():
                e.ins("buffer_load_dwordx4 %s, v%d, %s, s%d offen offset:%d" % (ar(d, 4), vK, srd(SRD_K), sKV + bb * 2 + kt, sp * 16),
                      "vload", V(vK), A(d, 4), tag=("kv", bb, 0))
        else:
            d = vVRAW + bb * 32 + n * 4
            def f():
                e.ins("buffer_load_dwordx4 %s, v%d, %s, s%d offen offset:%d" % (vr(d, 4), vV, srd(SRD_V), sKV + bb * 2 + n // 4, (n % 4) * 256),
                      "vload", V(vV), V(d, 4), tag=("kv", bb, 1))
        return f

    def gemm_step(phase, s):
        t = phase * 16 + s
        last = s == 15
        e.comment("phase %d step %d" % (phase, s))
        e.wait_lgkm(("xf", s))
        mf = []
        fr = vFRAG + (t % 2) * 32
        for c in range(8):
            for rb in range(4):
                ac = acc(rb, c)
                xf = aXF + (s % 2) * 16 + rb * 4
                def f(ac=ac, xf=xf, c=c):
                    if s == 0:
                        e.ins("v_mfma_f32_16x16x32_bf16 %s, %s, %s, 0" % (ar(ac, 4), vr(fr + c * 4, 4), ar(xf, 4)), "mfma",
                              V(fr + c * 4, 4) + A(xf, 4), A(ac, 4))
                    else:
                        e.ins("v_mfma_f32_16x16x32_bf16 %s, %s, %s, %s" % (ar(ac, 4), vr(fr + c * 4, 4), ar(xf, 4), ar(ac, 4)), "mfma",
                              V(fr + c * 4, 4) + A(xf, 4) + A(ac, 4), A(ac, 4), creads=A(ac, 4))
                mf.append(f)
        extras = [[] for _ in range(32)]
        if t + D < 32:
            wl = wload_instrs(t + D)
            for i, f in enumerate(wl):
                extras[i].append(f)
        if phase == 0:
            extras[9].append(kv_loads(2 * s))
            extras[10].append(kv_loads(2 * s + 1))
        if not last:
            for i, f in enumerate(xf_reads(s + 1, 0)):
                extras[i].append(f)
            extras[12].append(lambda: e.wait_vm(("w", t + 1)))
            pm = perm_instrs(t + 1)
            slots = list(range(12, 32))
            k = 0
            for i, f in enumerate(pm):
                extras[slots[i * len(slots) // len(pm)]].append(f)
        for m in range(32):
            mf[m]()
            for f in extras[m]:
                f()

    for f in xf_reads(0, 0):
        f()
    e.wait_vm(("w", 0))
    for f in perm_instrs(0):
        f()
    for s in range(16):
        gemm_step(0, s)

    stamp()
    ti, tg, t3 = vT, vT + 1, vT + 2
    e.ins("v_and_b32 v%d, 15, v%d" % (ti, vL), "valu", V(vL), V(ti))
    e.ins("v_lshrrev_b32 v%d, 4, v%d" % (tg, vL), "valu", V(vL), V(tg))
    e.salu("s_lshl_b32 s3, s%d, 8" % sW)
    e.salu("s_add_u32 s3, s3, 0x%x" % LDS_O)
    for r in range(4):
        e.ins("v_lshl_add_u32 v%d, v%d, 2, %d" % (t3, tg, r), "valu", V(tg), V(t3))
        e.ins("v_xor_b32 v%d, v%d, v%d" % (t3, t3, ti), "valu", V(t3) + V(ti), V(t3))
        e.ins("v_lshlrev_b32 v%d, 4, v%d" % (t3, t3), "valu", V(t3), V(t3))
        e.ins("v_lshl_add_u32 v%d, v%d, 10, v%d" % (t3, ti, t3), "valu", V(ti) + V(t3), V(t3))
        e.ins("v_add_u32 v%d, s3, v%d" % (vOw + r, t3), "valu", V(t3), V(vOw + r))
    for slo in range(4):
        e.ins("v_add_u32 v%d, 0x%x, v%d" % (vXr + slo, LDS_O, vXr + slo), "valu", V(vXr + slo), V(vXr + slo))

    QF = vFRAG
    SS = vFRAG + 32
    PF = vFRAG + 48
    TT = vFRAG + 56
    for bb in range(2):
        for qt in range(2):
            rb = 2 * bb + qt
            for sp in range(4):
                for p in range(4):
                    t0 = vT + (p % 2) * 2
                    t1 = t0 + 1
                    a0 = acc(rb, 2 * p) + sp
                    a1 = acc(rb, 2 * p + 1) + sp
                    e.ins("v_accvgpr_read_b32 v%d, a%d" % (t0, a0), "valu", A(a0), V(t0))
                    e.ins("v_accvgpr_read_b32 v%d, a%d" % (t1, a1), "valu", A(a1), V(t1))
                    dd = QF + (qt * 4 + sp) * 4 + p
                    e.ins("v_cvt_pk_bf16_f32 v%d, v%d, v%d" % (dd, t0, t1), "valu", V(t0) + V(t1), V(dd))
        e.wait_vm(("kv", bb, 0))
        for sp in range(4):
            for kt in range(2):
                for qt in range(2):
                    sd = SS + (kt * 2 + qt) * 4
                    kf = aKF + bb * 32 + (kt * 4 + sp) * 4
                    qf = QF + (qt * 4 + sp) * 4
                    if sp == 0:
                        e.ins("v_mfma_f32_16x16x32_bf16 %s, %s, %s, 0" % (vr(sd, 4), ar(kf, 4), vr(qf, 4)), "mfma",
                              A(kf, 4) + V(qf, 4), V(sd, 4))
                    else:
                        e.ins("v_mfma_f32_16x16x32_bf16 %s, %s, %s, %s" % (vr(sd, 4), ar(kf, 4), vr(qf, 4), vr(sd, 4)), "mfma",
                              A(kf, 4) + V(qf, 4) + V(sd, 4), V(sd, 4), creads=V(sd, 4))
        e.wait_vm(("kv", bb, 1))
        vb = vVRAW + bb * 32
        for c in range(8):
            for p in range(4):
                s0 = vb + 4 * (2 * p + 1) + (c >> 1)
                s1 = vb + 4 * (2 * p) + (c >> 1)
                dd = QF + c * 4 + p
                sel = sSelHi if (c & 1) else sSelLo
                e.ins("v_perm_b32 v%d, v%d, v%d, s%d" % (dd, s0, s1, sel), "valu", V(s0) + V(s1), V(dd))
        for qt in range(2):
            vals = [SS + (kt * 2 + qt) * 4 + r for kt in range(2) for r in range(4)]
            for rnd in range(2):
                for k in range(0, 8, 2):
                    x0, x1 = vals[k], vals[k + 1]
                    tp = TT
                    e.ins("v_cvt_pk_bf16_f32 v%d, v%d, v%d" % (tp, x0, x1), "valu", V(x0) + V(x1), V(tp))
                    e.ins("v_lshlrev_b32 v%d, 16, v%d" % (x0, tp), "valu", V(tp), V(x0))
                    e.ins("v_and_b32 v%d, s%d, v%d" % (x1, sMask, tp), "valu", V(tp), V(x1))
                    if rnd == 0:
                        e.ins("v_mul_f32 v%d, s%d, v%d" % (x0, sScale, x0), "valu", V(x0), V(x0))
                        e.ins("v_mul_f32 v%d, s%d, v%d" % (x1, sScale, x1), "valu", V(x1), V(x1))
            mx, m2 = TT + 1, TT + 2
            e.ins("v_max3_f32 v%d, v%d, v%d, v%d" % (mx, vals[0], vals[1], vals[2]), "valu", V(vals[0]) + V(vals[1]) + V(vals[2]), V(mx))
            e.ins("v_max3_f32 v%d, v%d, v%d, v%d" % (mx, mx, vals[3], vals[4]), "valu", V(mx) + V(vals[3]) + V(vals[4]), V(mx))
            e.ins("v_max3_f32 v%d, v%d, v%d, v%d" % (mx, mx, vals[5], vals[6]), "valu", V(mx) + V(vals[5]) + V(vals[6]), V(mx))
            e.ins("v_max_f32 v%d, v%d, v%d" % (mx, mx, vals[7]), "valu", V(mx) + V(vals[7]), V(mx))
            for sw in ("v_permlane16_swap_b32", "v_permlane32_swap_b32"):
                e.ins("v_mov_b32 v%d, v%d" % (m2, mx), "valu", V(mx), V(m2))
                e.ins("%s v%d, v%d" % (sw, mx, m2), "permlane", V(mx) + V(m2), V(mx) + V(m2))
                e.ins("v_max_f32 v%d, v%d, v%d" % (mx, mx, m2), "valu", V(mx) + V(m2), V(mx))
            for x in vals:
                e.ins("v_sub_f32 v%d, v%d, v%d" % (x, x, mx), "valu", V(x) + V(mx), V(x))
            for x in vals:
                e.ins("v_mul_f32 v%d, s%d, v%d" % (x, sLog2e, x), "valu", V(x), V(x))
            for x in vals:
                e.ins("v_exp_f32 v%d, v%d" % (x, x), "trans", V(x), V(x))
            sm, s2_ = TT + 3, TT + 4
            e.ins("v_add_f32 v%d, v%d, v%d" % (sm, vals[0], vals[1]), "valu", V(vals[0]) + V(vals[1]), V(sm))
            e.ins("v_add_f32 v%d, v%d, v%d" % (s2_, vals[2], vals[3]), "valu", V(vals[2]) + V(vals[3]), V(s2_))
            e.ins("v_add_f32 v%d, v%d, v%d" % (sm, sm, s2_), "valu", V(sm) + V(s2_), V(sm))
            e.ins("v_add_f32 v%d, v%d, v%d" % (s2_, vals[4], vals[5]), "valu", V(vals[4]) + V(vals[5]), V(s2_))
            e.ins("v_add_f32 v%d, v%d, v%d" % (sm, sm, s2_), "valu", V(sm) + V(s2_), V(sm))
            e.ins("v_add_f32 v%d, v%d, v%d" % (s2_, vals[6], vals[7]), "valu", V(vals[6]) + V(vals[7]), V(s2_))
            e.ins("v_add_f32 v%d, v%d, v%d" % (sm, sm, s2_), "valu", V(sm) + V(s2_), V(sm))
            for sw in ("v_permlane16_swap_b32", "v_permlane32_swap_b32"):
                e.ins("v_mov_b32 v%d, v%d" % (s2_, sm), "valu", V(sm), V(s2_))
                e.ins("%s v%d, v%d" % (sw, sm, s2_), "permlane", V(sm) + V(s2_), V(sm) + V(s2_))
                e.ins("v_add_f32 v%d, v%d, v%d" % (sm, sm, s2_), "valu", V(sm) + V(s2_), V(sm))
            e.ins("v_rcp_f32 v%d, v%d" % (sm, sm), "trans", V(sm), V(sm))
            for x in vals:
                e.ins("v_mul_f32 v%d, v%d, v%d" % (x, x, sm), "valu", V(x) + V(sm), V(x))
            for p in range(4):
                dd = PF + qt * 4 + p
                e.ins("v_cvt_pk_bf16_f32 v%d, v%d, v%d" % (dd, vals[2 * p], vals[2 * p + 1]), "valu", V(vals[2 * p]) + V(vals[2 * p + 1]), V(dd))
        for qt in range(2):
            for c in range(8):
                ac = acc(2 * bb + qt, c)
                e.ins("v_mfma_f32_16x16x32_bf16 %s, %s, %s, 0" % (ar(ac, 4), vr(QF + c * 4, 4), vr(PF + qt * 4, 4)), "mfma",
                      V(QF + c * 4, 4) + V(PF + qt * 4, 4), A(ac, 4))
        n = 0
        for qt in range(2):
            for r in range(4):
                dq = SS + (n % 4) * 4
                n += 1
                for p in range(4):
                    t0 = vT + (p % 2) * 2
                    t1 = t0 + 1
                    a0 = acc(2 * bb + qt, 2 * p) + r
                    a1 = acc(2 * bb + qt, 2 * p + 1) + r
                    e.ins("v_accvgpr_read_b32 v%d, a%d" % (t0, a0), "valu", A(a0), V(t0))
                    e.ins("v_accvgpr_read_b32 v%d, a%d" % (t1, a1), "valu", A(a1), V(t1))
                    e.ins("v_cvt_pk_bf16_f32 v%d, v%d, v%d" % (dq + p, t0, t1), "valu", V(t0) + V(t1), V(dq + p))
                e.ins("ds_write_b128 v%d, %s offset:%d" % (vOw + r, vr(dq, 4), (32 * bb + 16 * qt) * 1024), "dswrite",
                      V(vOw + r) + V(dq, 4), (), tag="ow")
    e.wait_lgkm()
    stamp()
    e.salu("s_barrier")
    stamp()

    for f in xf_reads(0, 0):
        f()
    e.wait_vm(("w", 16))
    for f in perm_instrs(16):
        f()
    for s in range(16):
        gemm_step(1, s)

    stamp()
    n = 0
    for rb in range(4):
        for c in range(8):
            if n and n % 4 == 0:
                e.salu("s_add_u32 s%d, s%d, 0x1000" % (sSt, sSt))
            ac = acc(rb, c)
            e.ins("buffer_store_dwordx4 %s, v%d, %s, s%d offen offset:%d" % (ar(ac, 4), vSt, srd(SRD_WS), sSt, (n % 4) * 1024),
                  "vstore", A(ac, 4) + V(vSt), (), tag="st")
            n += 1
    if STAMP:
        e.salu("s_waitcnt vmcnt(0)")
        stamp()
        e.salu("s_waitcnt lgkmcnt(0)")
        e.salu("s_cmp_ge_u32 s2, 2")
        e.salu("s_cbranch_scc1 main_done")
        e.salu("s_mov_b32 s%d, s38" % SRD_X)
        e.salu("s_mov_b32 s%d, s39" % (SRD_X + 1))
        e.salu("s_mov_b32 s%d, 256" % (SRD_X + 2))
        e.salu("s_lshl_b32 s3, s2, 2")
        e.salu("s_add_u32 s3, s3, s%d" % sW)
        e.salu("s_lshl_b32 s3, s3, 5")
        e.raw("v_mov_b32 v2, 0")
        for k in range(nst[0]):
            e.salu("s_sub_u32 s9, s%d, s80" % (80 + 2*k))
            e.raw("v_mov_b32 v3, s9")
            e.raw("buffer_store_dword v3, v2, s[%d:%d], s3 offen offset:%d" % (SRD_X, SRD_X + 3, 4*k))
    e.label("main_done")
    e.salu("s_endpgm")
    return e.lines


def gen_reduce():
    e = Emit()
    e.label("reduce_kernel")
    e.salu("s_cmp_ge_u32 s2, 256")
    e.salu("s_cbranch_scc1 reduce_done")
    e.salu("s_load_dwordx2 s[8:9], s[0:1], 80")
    e.salu("s_load_dwordx2 s[12:13], s[0:1], 96")
    e.ins("v_lshrrev_b32 v2, 6, v0", "valu", V(0), V(2))
    e.ins("v_and_b32 v1, 63, v0", "valu", V(0), V(1))
    e.ins("v_readfirstlane_b32 s7, v2", "rfl", V(2), [("s", 7)])
    e.ins("v_lshlrev_b32 v3, 4, v1", "valu", V(1), V(3))
    e.ins("v_and_b32 v4, 15, v1", "valu", V(1), V(4))
    e.ins("v_lshrrev_b32 v5, 4, v1", "valu", V(1), V(5))
    e.ins("v_lshlrev_b32 v5, 6, v5", "valu", V(5), V(5))
    e.ins("v_lshl_add_u32 v4, v4, 11, v5", "valu", V(4) + V(5), V(4))
    e.salu("s_nop 2")
    e.salu("s_lshl_b32 s3, s2, 2")
    e.salu("s_add_u32 s3, s3, s7")
    e.salu("s_and_b32 s20, s3, 1")
    e.salu("s_lshr_b32 s21, s3, 1")
    e.salu("s_and_b32 s21, s21, 3")
    e.salu("s_lshr_b32 s22, s3, 3")
    e.salu("s_and_b32 s22, s22, 3")
    e.salu("s_lshr_b32 s23, s3, 5")
    e.salu("s_and_b32 s23, s23, 15")
    e.salu("s_lshr_b32 s24, s3, 9")
    e.salu("s_lshl_b32 s25, s24, 4")
    e.salu("s_add_u32 s25, s25, s23")
    e.salu("s_lshl_b32 s25, s25, 5")
    e.salu("s_add_u32 s25, s25, s22")
    e.salu("s_lshl_b32 s25, s25, 15")
    e.salu("s_lshl_b32 s26, s21, 13")
    e.salu("s_add_u32 s25, s25, s26")
    e.salu("s_lshl_b32 s26, s20, 12")
    e.salu("s_add_u32 s25, s25, s26")
    e.salu("s_lshl_b32 s27, s23, 17")
    e.salu("s_lshl_b32 s26, s21, 15")
    e.salu("s_add_u32 s27, s27, s26")
    e.salu("s_lshl_b32 s26, s24, 10")
    e.salu("s_add_u32 s27, s27, s26")
    e.salu("s_lshl_b32 s26, s22, 8")
    e.salu("s_add_u32 s27, s27, s26")
    e.salu("s_lshl_b32 s26, s20, 3")
    e.salu("s_add_u32 s27, s27, s26")
    e.salu("s_waitcnt lgkmcnt(0)")
    e.salu("s_mov_b32 s10, 0x200000")
    e.salu("s_mov_b32 s11, 0x00020000")
    e.salu("s_mov_b32 s14, 0x2000000")
    e.salu("s_mov_b32 s15, 0x00020000")
    base = 16
    for hg in range(8):
        for cc in range(4):
            d = base + (hg * 4 + cc) * 4
            e.ins("buffer_load_dwordx4 %s, v3, s[12:15], s25 offen offset:%d" % (vr(d, 4), cc * 1024), "vload", V(3), V(d, 4), tag=("p", hg))
        if hg < 7:
            e.salu("s_add_u32 s25, s25, 0x20000")
    for hg in range(1, 8):
        e.wait_vm(("p", hg))
        for cc in range(4):
            for r in range(0, 4, 2):
                a_ = base + cc * 4 + r
                b_ = base + (hg * 4 + cc) * 4 + r
                e.ins("v_pk_add_f32 %s, %s, %s" % (vr(a_, 2), vr(a_, 2), vr(b_, 2)), "valu", V(a_, 2) + V(b_, 2), V(a_, 2))
    for r in range(4):
        d = 8 + (r % 2) * 2
        e.ins("v_cvt_pk_bf16_f32 v%d, v%d, v%d" % (d, base + r, base + 4 + r), "valu", V(base + r) + V(base + 4 + r), V(d))
        e.ins("v_cvt_pk_bf16_f32 v%d, v%d, v%d" % (d + 1, base + 8 + r, base + 12 + r), "valu", V(base + 8 + r) + V(base + 12 + r), V(d + 1))
        e.ins("buffer_store_dwordx2 %s, v4, s[8:11], s27 offen offset:%d" % (vr(d, 2), r * 16), "vstore", V(d, 2) + V(4), (), tag="o")
    e.label("reduce_done")
    e.salu("s_endpgm")
    return e.lines


HEADER = """; Fused two-branch attention block: Q-proj + attention + out-proj partials, then a reduce kernel.
; @launch kernel=main_kernel grid=(256,1,1) block=(256,1,1) lds=131072
; @launch kernel=reduce_kernel grid=(256,1,1) block=(256,1,1) lds=0
.amdgcn_target "amdgcn-amd-amdhsa--gfx950"
.text
"""


def kd(name, vgpr, sgpr, accum):
    return """.p2align 6
.amdhsa_kernel %s
  .amdhsa_next_free_vgpr %d
  .amdhsa_next_free_sgpr %d
  .amdhsa_accum_offset %d
  .amdhsa_group_segment_fixed_size 0
  .amdhsa_kernarg_size 104
  .amdhsa_user_sgpr_count 2
  .amdhsa_user_sgpr_kernarg_segment_ptr 1
  .amdhsa_system_sgpr_workgroup_id_x 1
.end_amdhsa_kernel
""" % (name, vgpr, sgpr, accum)


def main():
    out = [HEADER]
    for name, lines in (("main_kernel", gen_main()), ("reduce_kernel", gen_reduce())):
        out.append(".globl %s\n.p2align 8\n.type %s,@function\n" % (name, name))
        out.append("\n".join(lines) + "\n")
    out.append('.section .rodata,"a"\n')
    out.append(kd("main_kernel", 512, 100, 256))
    out.append(kd("reduce_kernel", 144, 32, 144))
    text = "".join(out)
    path = sys.argv[1] if len(sys.argv) > 1 else "cdna_kernels/%s.s" % NAME
    open(path, "w").write(text)
    print("wrote", path, len(text), "bytes")


if __name__ == "__main__":
    main()
```

```python
import struct, sys
from gen import Emit, V, A, vr, ar, f32bits, NAME, gen_reduce, kd

STAMP = len(sys.argv) > 2 and sys.argv[2] == "stamp"
OPT = dict(a.split("=") for a in sys.argv[3:])
TOUCH = int(OPT.get("touch", 1))
KVNT = int(OPT.get("kvnt", 1))

D = 4
vL = 1
vWC = 2
vXr = 10
vK = 14
vV = 15
vRAW = 16
vFRAG = 144
vVRAW = 176
vOw = 240
vSt = 244
vT = 245

aACC = 0
aXF = 128
aKF = 160
aS = 224

sBR, sHG, sRB, sW = 4, 5, 6, 7
SRD_X, SRD_K, SRD_V, SRD_WQ, SRD_WO, SRD_WS, SRD_WC = 40, 44, 48, 52, 56, 60, 64
sWCo, sWCinc = 68, 69
sKV = 70
sSelLo, sSelHi = 74, 75
sSt = 76
sScale, sLog2e, sMask = 77, 78, 79
sXo = 8
sH = 9
sIt = 10
sWOo = 11
sR8 = 12
LDS_O = 65536


def srd(n):
    return "s[%d:%d]" % (n, n + 3)


def acc(rb, c):
    return aACC + (rb * 8 + c) * 4


def gen_main():
    e = Emit()
    nst = [0]

    def stamp():
        if not STAMP:
            return
        e.salu("s_memtime s[%d:%d]" % (80 + 2 * nst[0], 81 + 2 * nst[0]))
        nst[0] += 1

    e.label("main_kernel")
    e.salu("s_cmp_ge_u32 s2, 256")
    e.salu("s_cbranch_scc1 main_done")
    stamp()
    e.salu("s_load_dwordx16 s[16:31], s[0:1], 0")
    e.salu("s_load_dwordx4 s[32:35], s[0:1], 64")
    e.salu("s_load_dwordx2 s[36:37], s[0:1], 96")
    if STAMP:
        e.salu("s_load_dwordx2 s[38:39], s[0:1], 88")
    e.ins("v_lshrrev_b32 v2, 6, v0", "valu", V(0), V(2))
    e.ins("v_and_b32 v%d, 63, v0" % vL, "valu", V(0), V(vL))
    e.ins("v_readfirstlane_b32 s%d, v2" % sW, "rfl", V(2), [("s", sW)])
    e.salu("s_and_b32 s3, s2, 7")
    e.salu("s_lshr_b32 s13, s2, 3")
    e.salu("s_lshr_b32 s%d, s3, 2" % sBR)
    e.salu("s_and_b32 s%d, s3, 1" % sHG)
    e.salu("s_lshl_b32 s%d, s%d, 2" % (sHG, sHG))
    e.salu("s_and_b32 s14, s13, 3")
    e.salu("s_or_b32 s%d, s%d, s14" % (sHG, sHG))
    e.salu("s_lshr_b32 s%d, s13, 2" % sR8)
    e.salu("s_lshr_b32 s%d, s3, 1" % sRB)
    e.salu("s_and_b32 s%d, s%d, 1" % (sRB, sRB))
    e.salu("s_lshl_b32 s%d, s%d, 3" % (sRB, sRB))
    e.salu("s_or_b32 s%d, s%d, s%d" % (sRB, sRB, sR8))
    e.salu("s_mov_b32 s%d, 0x05040100" % sSelLo)
    e.salu("s_mov_b32 s%d, 0x07060302" % sSelHi)
    e.salu("s_mov_b32 s%d, 0x%08x" % (sScale, f32bits(128 ** -0.5)))
    e.salu("s_mov_b32 s%d, 0x%08x" % (sLog2e, f32bits(1.4426950408889634)))
    e.salu("s_mov_b32 s%d, 0xffff0000" % sMask)
    ti, tg, tt, t3 = vT, vT + 1, vT + 2, vT + 3
    e.ins("v_and_b32 v%d, 15, v%d" % (ti, vL), "valu", V(vL), V(ti))
    e.ins("v_lshrrev_b32 v%d, 4, v%d" % (tg, vL), "valu", V(vL), V(tg))
    e.ins("v_lshlrev_b32 v%d, 4, v%d" % (tt, ti), "valu", V(ti), V(tt))
    e.ins("v_lshl_add_u32 v%d, v%d, 16, v%d" % (vWC, tg, tt), "valu", V(tg) + V(tt), V(vWC))
    for j in range(1, 8):
        e.ins("v_add_u32 v%d, 0x%x, v%d" % (vWC + j, j * 8192, vWC), "valu", V(vWC), V(vWC + j))
    e.ins("v_lshlrev_b32 v%d, 8, v%d" % (vK, ti), "valu", V(ti), V(vK))
    e.ins("v_lshl_add_u32 v%d, v%d, 6, v%d" % (vK, tg, vK), "valu", V(tg) + V(vK), V(vK))
    e.ins("v_lshl_add_u32 v%d, v%d, 10, v%d" % (vV, tg, tt), "valu", V(tg) + V(tt), V(vV))
    e.ins("v_lshlrev_b32 v%d, 4, v%d" % (vSt, vL), "valu", V(vL), V(vSt))
    for slo in range(4):
        e.ins("v_add_u32 v%d, %d, v%d" % (t3, 4 * slo, tg), "valu", V(tg), V(t3))
        e.ins("v_xor_b32 v%d, v%d, v%d" % (t3, t3, ti), "valu", V(t3) + V(ti), V(t3))
        e.ins("v_lshlrev_b32 v%d, 4, v%d" % (t3, t3), "valu", V(t3), V(t3))
        e.ins("v_lshl_add_u32 v%d, v%d, 10, v%d" % (vXr + slo, ti, t3), "valu", V(ti) + V(t3), V(vXr + slo))
    tq, to = vT + 4, vT + 5
    e.ins("v_lshrrev_b32 v%d, 3, v%d" % (tq, vL), "valu", V(vL), V(tq))
    e.ins("v_and_b32 v%d, 7, v%d" % (t3, vL), "valu", V(vL), V(t3))
    e.ins("v_lshlrev_b32 v%d, 7, v%d" % (t3, t3), "valu", V(t3), V(t3))
    e.ins("v_lshl_add_u32 v%d, v%d, 13, v%d" % (tq, tq, t3), "valu", V(tq) + V(t3), V(tq))
    e.ins("v_lshlrev_b32 v%d, 7, v%d" % (to, vL), "valu", V(vL), V(to))
    e.salu("s_waitcnt lgkmcnt(0)")
    stamp()
    e.salu("s_cmp_eq_u32 s%d, 0" % sBR)
    e.salu("s_cselect_b64 s[%d:%d], s[16:17], s[26:27]" % (SRD_X, SRD_X + 1))
    e.salu("s_cselect_b64 s[%d:%d], s[18:19], s[28:29]" % (SRD_K, SRD_K + 1))
    e.salu("s_cselect_b64 s[%d:%d], s[20:21], s[30:31]" % (SRD_V, SRD_V + 1))
    e.salu("s_cselect_b64 s[%d:%d], s[22:23], s[32:33]" % (SRD_WQ, SRD_WQ + 1))
    e.salu("s_cselect_b64 s[%d:%d], s[24:25], s[34:35]" % (SRD_WO, SRD_WO + 1))
    e.salu("s_cselect_b64 s[%d:%d], s[22:23], s[32:33]" % (SRD_WC, SRD_WC + 1))
    e.salu("s_mov_b64 s[%d:%d], s[36:37]" % (SRD_WS, SRD_WS + 1))
    for base, size in ((SRD_X, 1 << 20), (SRD_K, 8 << 20), (SRD_V, 8 << 20), (SRD_WQ, 4 << 20), (SRD_WO, 4 << 20), (SRD_WS, 32 << 20), (SRD_WC, 4 << 20)):
        e.salu("s_mov_b32 s%d, 0x%x" % (base + 2, size))
        e.salu("s_mov_b32 s%d, 0x00020000" % (base + 3))
    e.salu("s_lshl_b32 s%d, s%d, 2" % (sH, sHG))
    e.salu("s_add_u32 s%d, s%d, s%d" % (sH, sH, sW))
    e.salu("s_lshl_b32 s%d, s%d, 8" % (sWCo, sH))
    e.salu("s_mov_b32 s%d, 0x40000" % sWCinc)
    e.salu("s_lshl_b32 s%d, s%d, 19" % (sWOo, sHG))
    e.salu("s_lshl_b32 s3, s%d, 8" % sW)
    e.salu("s_add_u32 s%d, s%d, s3" % (sWOo, sWOo))
    e.salu("s_lshl_b32 s3, s%d, 6" % sRB)
    e.salu("s_add_u32 s3, s3, s%d" % sH)
    e.salu("s_lshl_b32 s%d, s3, 13" % sKV)
    e.salu("s_add_u32 s%d, s%d, 0x1000" % (sKV + 1, sKV))
    e.salu("s_add_u32 s%d, s%d, 0x40000" % (sKV + 2, sKV))
    e.salu("s_add_u32 s%d, s%d, 0x41000" % (sKV + 3, sKV))
    e.salu("s_lshl_b32 s%d, s%d, 16" % (sXo, sRB))
    e.salu("s_lshl_b32 s3, s%d, 14" % sW)
    e.salu("s_add_u32 s%d, s%d, s3" % (sXo, sXo))
    e.salu("s_lshl_b32 s3, s%d, 4" % sBR)
    e.salu("s_add_u32 s3, s3, s%d" % sRB)
    e.salu("s_lshl_b32 s3, s3, 3")
    e.salu("s_add_u32 s3, s3, s%d" % sHG)
    e.salu("s_lshl_b32 s3, s3, 2")
    e.salu("s_add_u32 s3, s3, s%d" % sW)
    e.salu("s_lshl_b32 s%d, s3, 15" % sSt)
    e.salu("s_lshl_b32 s13, s%d, 2" % sR8)
    e.salu("s_add_u32 s13, s13, s%d" % sW)
    e.salu("s_lshl_b32 s14, s13, 17")
    e.salu("s_lshl_b32 s3, s%d, 10" % sHG)
    e.salu("s_add_u32 s14, s14, s3")
    e.salu("s_add_u32 s15, s14, 0x10000")
    for r in range(16):
        if r and r % 4 == 0:
            e.salu("s_add_u32 s%d, s%d, 0x1000" % (sXo, sXo))
        d = vVRAW + 4 * r
        e.ins("buffer_load_dwordx4 %s, v%d, %s, s%d offen offset:%d" % (vr(d, 4), vSt, srd(SRD_X), sXo, (r % 4) * 1024),
              "vload", V(vSt), V(d, 4), tag="x")
    if TOUCH:
        e.ins("buffer_load_dword v%d, v%d, %s, s14 offen" % (vT + 6, tq, srd(SRD_WQ)), "vload", V(tq), V(vT + 6), tag="touch")
        e.ins("buffer_load_dword v%d, v%d, %s, s15 offen" % (vT + 7, tq, srd(SRD_WQ)), "vload", V(tq), V(vT + 7), tag="touch")
    e.salu("s_lshl_b32 s14, s%d, 19" % sHG)
    e.salu("s_lshl_b32 s3, s13, 14")
    e.salu("s_add_u32 s14, s14, s3")
    e.salu("s_add_u32 s15, s14, 0x2000")

    def wloads(t):
        out = []
        buf = vRAW + (t % D) * 32
        for j in range(8):
            d = buf + 4 * j
            def f(d=d, j=j):
                e.ins("buffer_load_dwordx4 %s, v%d, %s, s%d offen" % (vr(d, 4), vWC + j, srd(SRD_WC), sWCo),
                      "vload", V(vWC + j), V(d, 4), tag=("w", t))
            out.append(f)
        out.append(lambda: e.salu("s_add_u32 s%d, s%d, s%d" % (sWCo, sWCo, sWCinc)))
        return out

    for t in range(D):
        for f in wloads(t):
            f()

    nt = " nt" if KVNT else ""

    def kv_burst(idx):
        bb, isv = idx // 2, idx % 2
        for n in range(8):
            if not isv:
                kt, sp = n // 4, n % 4
                d = aKF + bb * 32 + (kt * 4 + sp) * 4
                e.ins("buffer_load_dwordx4 %s, v%d, %s, s%d offen offset:%d%s" % (ar(d, 4), vK, srd(SRD_K), sKV + bb * 2 + kt, sp * 16, nt),
                      "vload", V(vK), A(d, 4), tag=("kv", bb, 0))
            else:
                d = vVRAW + bb * 32 + n * 4
                e.ins("buffer_load_dwordx4 %s, v%d, %s, s%d offen offset:%d%s" % (vr(d, 4), vV, srd(SRD_V), sKV + bb * 2 + n // 4, (n % 4) * 256, nt),
                      "vload", V(vV), V(d, 4), tag=("kv", bb, 1))

    kv_burst(0)
    for k in range(128):
        e.ins("v_accvgpr_write_b32 a%d, 0" % (aACC + k), "valu", (), A(aACC + k))
    tb = vT + 8
    e.ins("v_mov_b32 v%d, s%d" % (tb, sW), "valu", [("s", sW)], V(tb))
    e.ins("v_lshlrev_b32 v%d, 14, v%d" % (tb, tb), "valu", V(tb), V(tb))
    e.wait_vm("x")
    stamp()
    for r in range(16):
        ta = vT + 9 + (r % 2)
        e.ins("v_xor_b32 v%d, %d, v%d" % (ta, r, vL), "valu", V(vL), V(ta))
        e.ins("v_lshl_add_u32 v%d, v%d, 4, v%d" % (ta, ta, tb), "valu", V(ta) + V(tb), V(ta))
        d = vVRAW + 4 * r
        e.ins("ds_write_b128 v%d, %s offset:%d" % (ta, vr(d, 4), r * 1024), "dswrite", V(ta) + V(d, 4), (), tag="xw")
    e.wait_lgkm()
    e.salu("s_barrier")
    stamp()

    def xf_read(u, rb):
        d = aXF + (u % 2) * 16 + rb * 4
        off = rb * 16384 + (256 if u == 4 else 0)
        e.ins("ds_read_b128 %s, v%d offset:%d" % (ar(d, 4), vXr + (u % 4), off), "dsread", V(vXr + (u % 4)), A(d, 4), tag=("xf", u % 4))

    def perm(t, c, p):
        buf = vRAW + (t % D) * 32
        s0 = buf + 4 * (2 * p + 1) + (c >> 1)
        s1 = buf + 4 * (2 * p) + (c >> 1)
        dd = vFRAG + c * 4 + p
        sel = sSelHi if (c & 1) else sSelLo
        e.ins("v_perm_b32 v%d, v%d, v%d, s%d" % (dd, s0, s1, sel), "valu", V(s0) + V(s1), V(dd))

    def phase_entry():
        for rb in range(4):
            xf_read(0, rb)
        e.wait_vm(("w", 0))
        for c in range(8):
            for p in range(4):
                perm(0, c, p)

    def loop_body():
        for u in range(4):
            e.comment("step %d" % u)
            e.wait_lgkm(("xf", u))
            wl = wloads(u + D)
            m = 0
            for c in range(8):
                for rb in range(4):
                    ac = acc(rb, c)
                    xf = aXF + (u % 2) * 16 + rb * 4
                    e.ins("v_mfma_f32_16x16x32_bf16 %s, %s, %s, %s" % (ar(ac, 4), vr(vFRAG + c * 4, 4), ar(xf, 4), ar(ac, 4)), "mfma",
                          V(vFRAG + c * 4, 4) + A(xf, 4) + A(ac, 4), A(ac, 4), creads=A(ac, 4))
                    if c == 0:
                        wl[2 * rb]()
                        wl[2 * rb + 1]()
                        if rb == 3:
                            wl[8]()
                            e.wait_vm(("w", u + 1))
                    if c >= 1:
                        perm(u + 1, c - 1, rb)
                    if c == 2:
                        xf_read(u + 1, rb)
                    m += 1
            for p in range(4):
                perm(u + 1, 7, p)
        for slo in range(4):
            e.ins("v_add_u32 v%d, 0x100, v%d" % (vXr + slo, vXr + slo), "valu", V(vXr + slo), V(vXr + slo))

    e.salu("s_mov_b32 s%d, 0" % sIt)
    phase_entry()
    e.label("gemm_loop")
    e.vm = [("w", 1)] * 8 + [("w", 2)] * 8 + [("w", 3)] * 8
    e.lgkm = [("xf", 0)] * 4
    e.last_w = {}
    e.nop(2)
    loop_body()
    e.salu("s_add_u32 s%d, s%d, 1" % (sIt, sIt))
    e.salu("s_cmp_eq_u32 s%d, 4" % sIt)
    e.salu("s_cbranch_scc1 attention")
    e.salu("s_cmp_eq_u32 s%d, 8" % sIt)
    e.salu("s_cbranch_scc1 epilogue")
    e.salu("s_cmp_eq_u32 s%d, 7" % sIt)
    e.salu("s_cbranch_scc1 it7")
    e.salu("s_cmp_gt_u32 s%d, 4" % sIt)
    e.salu("s_cbranch_scc1 gemm_loop")
    e.salu("s_cmp_eq_u32 s%d, 2" % sIt)
    e.salu("s_cbranch_scc1 it2")
    e.salu("s_cmp_eq_u32 s%d, 3" % sIt)
    e.salu("s_cbranch_scc1 it3")
    e.label("it1")
    kv_burst(1)
    if TOUCH:
        e.ins("buffer_load_dword v%d, v%d, %s, s14 offen" % (vT + 6, to, srd(SRD_WO)), "vload", V(to), V(vT + 6), tag="touch")
        e.ins("buffer_load_dword v%d, v%d, %s, s15 offen" % (vT + 7, to, srd(SRD_WO)), "vload", V(to), V(vT + 7), tag="touch")
    e.salu("s_branch gemm_loop")
    e.label("it2")
    kv_burst(2)
    e.salu("s_branch gemm_loop")
    e.label("it3")
    kv_burst(3)
    e.salu("s_mov_b64 s[%d:%d], s[%d:%d]" % (SRD_WC, SRD_WC + 1, SRD_WO, SRD_WO + 1))
    e.salu("s_mov_b32 s%d, s%d" % (sWCo, sWOo))
    e.salu("s_mov_b32 s%d, 0x8000" % sWCinc)
    e.ins("v_and_b32 v%d, 15, v%d" % (ti, vL), "valu", V(vL), V(ti))
    e.ins("v_lshrrev_b32 v%d, 4, v%d" % (tg, vL), "valu", V(vL), V(tg))
    e.ins("v_lshlrev_b32 v%d, 4, v%d" % (tt, ti), "valu", V(ti), V(tt))
    e.ins("v_lshl_add_u32 v%d, v%d, 13, v%d" % (vWC, tg, tt), "valu", V(tg) + V(tt), V(vWC))
    for j in range(1, 8):
        e.ins("v_add_u32 v%d, 0x%x, v%d" % (vWC + j, j * 1024, vWC), "valu", V(vWC), V(vWC + j))
    e.salu("s_branch gemm_loop")
    e.label("it7")
    e.salu("s_mov_b32 s%d, 0" % (SRD_WC + 2))
    e.salu("s_branch gemm_loop")

    e.label("attention")
    stamp()
    e.last_w = {}
    e.nop(10)
    e.vm = [("w", 1)] * 8 + [("w", 2)] * 8 + [("w", 3)] * 8
    e.lgkm = [("xf", 0)] * 4
    e.wait_lgkm()
    e.ins("v_and_b32 v%d, 15, v%d" % (ti, vL), "valu", V(vL), V(ti))
    e.ins("v_lshrrev_b32 v%d, 4, v%d" % (tg, vL), "valu", V(vL), V(tg))
    e.salu("s_lshl_b32 s3, s%d, 8" % sW)
    e.salu("s_add_u32 s3, s3, 0x%x" % LDS_O)
    for r in range(4):
        e.ins("v_lshl_add_u32 v%d, v%d, 2, %d" % (t3, tg, r), "valu", V(tg), V(t3))
        e.ins("v_xor_b32 v%d, v%d, v%d" % (t3, t3, ti), "valu", V(t3) + V(ti), V(t3))
        e.ins("v_lshlrev_b32 v%d, 4, v%d" % (t3, t3), "valu", V(t3), V(t3))
        e.ins("v_lshl_add_u32 v%d, v%d, 10, v%d" % (t3, ti, t3), "valu", V(ti) + V(t3), V(t3))
        e.ins("v_add_u32 v%d, s3, v%d" % (vOw + r, t3), "valu", V(t3), V(vOw + r))
    for slo in range(4):
        e.ins("v_add_u32 v%d, 0x%x, v%d" % (vXr + slo, LDS_O - 1024, vXr + slo), "valu", V(vXr + slo), V(vXr + slo))
    QF = vFRAG
    for bb in range(2):
        vb = vVRAW + bb * 32
        for qt in range(2):
            rb = 2 * bb + qt
            for sp in range(4):
                for p in range(4):
                    t0 = vT + (p % 2) * 2
                    t1 = t0 + 1
                    a0 = acc(rb, 2 * p) + sp
                    a1 = acc(rb, 2 * p + 1) + sp
                    e.ins("v_accvgpr_read_b32 v%d, a%d" % (t0, a0), "valu", A(a0), V(t0))
                    e.ins("v_accvgpr_read_b32 v%d, a%d" % (t1, a1), "valu", A(a1), V(t1))
                    dd = QF + (qt * 4 + sp) * 4 + p
                    e.ins("v_cvt_pk_bf16_f32 v%d, v%d, v%d" % (dd, t0, t1), "valu", V(t0) + V(t1), V(dd))
        for sp in range(4):
            for kt in range(2):
                for qt in range(2):
                    sd = aS + (kt * 2 + qt) * 4
                    kf = aKF + bb * 32 + (kt * 4 + sp) * 4
                    qf = QF + (qt * 4 + sp) * 4
                    if sp == 0:
                        e.ins("v_mfma_f32_16x16x32_bf16 %s, %s, %s, 0" % (ar(sd, 4), ar(kf, 4), vr(qf, 4)), "mfma",
                              A(kf, 4) + V(qf, 4), A(sd, 4))
                    else:
                        e.ins("v_mfma_f32_16x16x32_bf16 %s, %s, %s, %s" % (ar(sd, 4), ar(kf, 4), vr(qf, 4), ar(sd, 4)), "mfma",
                              A(kf, 4) + V(qf, 4) + A(sd, 4), A(sd, 4), creads=A(sd, 4))
        for c in range(8):
            for p in range(4):
                s0 = vb + 4 * (2 * p + 1) + (c >> 1)
                s1 = vb + 4 * (2 * p) + (c >> 1)
                dd = QF + c * 4 + p
                sel = sSelHi if (c & 1) else sSelLo
                e.ins("v_perm_b32 v%d, v%d, v%d, s%d" % (dd, s0, s1, sel), "valu", V(s0) + V(s1), V(dd))
        SV = vb
        PF = vb + 16
        TT = vb + 24
        for qt in range(2):
            for kt in range(2):
                for r in range(4):
                    a_ = aS + (kt * 2 + qt) * 4 + r
                    d_ = SV + qt * 8 + kt * 4 + r
                    e.ins("v_accvgpr_read_b32 v%d, a%d" % (d_, a_), "valu", A(a_), V(d_))
        for qt in range(2):
            vals = [SV + qt * 8 + k for k in range(8)]
            for rnd in range(2):
                for k in range(0, 8, 2):
                    x0, x1 = vals[k], vals[k + 1]
                    tp = TT
                    e.ins("v_cvt_pk_bf16_f32 v%d, v%d, v%d" % (tp, x0, x1), "valu", V(x0) + V(x1), V(tp))
                    e.ins("v_lshlrev_b32 v%d, 16, v%d" % (x0, tp), "valu", V(tp), V(x0))
                    e.ins("v_and_b32 v%d, s%d, v%d" % (x1, sMask, tp), "valu", V(tp), V(x1))
                    if rnd == 0:
                        e.ins("v_mul_f32 v%d, s%d, v%d" % (x0, sScale, x0), "valu", V(x0), V(x0))
                        e.ins("v_mul_f32 v%d, s%d, v%d" % (x1, sScale, x1), "valu", V(x1), V(x1))
            mx, m2 = TT + 1, TT + 2
            e.ins("v_max3_f32 v%d, v%d, v%d, v%d" % (mx, vals[0], vals[1], vals[2]), "valu", V(vals[0]) + V(vals[1]) + V(vals[2]), V(mx))
            e.ins("v_max3_f32 v%d, v%d, v%d, v%d" % (mx, mx, vals[3], vals[4]), "valu", V(mx) + V(vals[3]) + V(vals[4]), V(mx))
            e.ins("v_max3_f32 v%d, v%d, v%d, v%d" % (mx, mx, vals[5], vals[6]), "valu", V(mx) + V(vals[5]) + V(vals[6]), V(mx))
            e.ins("v_max_f32 v%d, v%d, v%d" % (mx, mx, vals[7]), "valu", V(mx) + V(vals[7]), V(mx))
            for sw in ("v_permlane16_swap_b32", "v_permlane32_swap_b32"):
                e.ins("v_mov_b32 v%d, v%d" % (m2, mx), "valu", V(mx), V(m2))
                e.ins("%s v%d, v%d" % (sw, mx, m2), "permlane", V(mx) + V(m2), V(mx) + V(m2))
                e.ins("v_max_f32 v%d, v%d, v%d" % (mx, mx, m2), "valu", V(mx) + V(m2), V(mx))
            for x in vals:
                e.ins("v_sub_f32 v%d, v%d, v%d" % (x, x, mx), "valu", V(x) + V(mx), V(x))
            for x in vals:
                e.ins("v_mul_f32 v%d, s%d, v%d" % (x, sLog2e, x), "valu", V(x), V(x))
            for x in vals:
                e.ins("v_exp_f32 v%d, v%d" % (x, x), "trans", V(x), V(x))
            sm, s2_ = TT + 3, TT + 4
            e.ins("v_add_f32 v%d, v%d, v%d" % (sm, vals[0], vals[1]), "valu", V(vals[0]) + V(vals[1]), V(sm))
            e.ins("v_add_f32 v%d, v%d, v%d" % (s2_, vals[2], vals[3]), "valu", V(vals[2]) + V(vals[3]), V(s2_))
            e.ins("v_add_f32 v%d, v%d, v%d" % (sm, sm, s2_), "valu", V(sm) + V(s2_), V(sm))
            e.ins("v_add_f32 v%d, v%d, v%d" % (s2_, vals[4], vals[5]), "valu", V(vals[4]) + V(vals[5]), V(s2_))
            e.ins("v_add_f32 v%d, v%d, v%d" % (sm, sm, s2_), "valu", V(sm) + V(s2_), V(sm))
            e.ins("v_add_f32 v%d, v%d, v%d" % (s2_, vals[6], vals[7]), "valu", V(vals[6]) + V(vals[7]), V(s2_))
            e.ins("v_add_f32 v%d, v%d, v%d" % (sm, sm, s2_), "valu", V(sm) + V(s2_), V(sm))
            for sw in ("v_permlane16_swap_b32", "v_permlane32_swap_b32"):
                e.ins("v_mov_b32 v%d, v%d" % (s2_, sm), "valu", V(sm), V(s2_))
                e.ins("%s v%d, v%d" % (sw, sm, s2_), "permlane", V(sm) + V(s2_), V(sm) + V(s2_))
                e.ins("v_add_f32 v%d, v%d, v%d" % (sm, sm, s2_), "valu", V(sm) + V(s2_), V(sm))
            e.ins("v_rcp_f32 v%d, v%d" % (sm, sm), "trans", V(sm), V(sm))
            for x in vals:
                e.ins("v_mul_f32 v%d, v%d, v%d" % (x, x, sm), "valu", V(x) + V(sm), V(x))
            for p in range(4):
                dd = PF + qt * 4 + p
                e.ins("v_cvt_pk_bf16_f32 v%d, v%d, v%d" % (dd, vals[2 * p], vals[2 * p + 1]), "valu", V(vals[2 * p]) + V(vals[2 * p + 1]), V(dd))
        for qt in range(2):
            for c in range(8):
                ac = acc(2 * bb + qt, c)
                e.ins("v_mfma_f32_16x16x32_bf16 %s, %s, %s, 0" % (ar(ac, 4), vr(QF + c * 4, 4), vr(PF + qt * 4, 4)), "mfma",
                      V(QF + c * 4, 4) + V(PF + qt * 4, 4), A(ac, 4))
        n = 0
        for qt in range(2):
            for r in range(4):
                dq = SV + (n % 4) * 4
                n += 1
                for p in range(4):
                    t0 = vT + (p % 2) * 2
                    t1 = t0 + 1
                    a0 = acc(2 * bb + qt, 2 * p) + r
                    a1 = acc(2 * bb + qt, 2 * p + 1) + r
                    e.ins("v_accvgpr_read_b32 v%d, a%d" % (t0, a0), "valu", A(a0), V(t0))
                    e.ins("v_accvgpr_read_b32 v%d, a%d" % (t1, a1), "valu", A(a1), V(t1))
                    e.ins("v_cvt_pk_bf16_f32 v%d, v%d, v%d" % (dq + p, t0, t1), "valu", V(t0) + V(t1), V(dq + p))
                e.ins("ds_write_b128 v%d, %s offset:%d" % (vOw + r, vr(dq, 4), (32 * bb + 16 * qt) * 1024), "dswrite",
                      V(vOw + r) + V(dq, 4), (), tag="ow")
    for k in range(128):
        e.ins("v_accvgpr_write_b32 a%d, 0" % (aACC + k), "valu", (), A(aACC + k))
    e.wait_lgkm()
    stamp()
    e.salu("s_barrier")
    stamp()
    for rb in range(4):
        xf_read(0, rb)
    for c in range(8):
        for p in range(4):
            perm(0, c, p)
    e.salu("s_branch gemm_loop")

    e.label("epilogue")
    stamp()
    e.last_w = {}
    e.nop(10)
    n = 0
    for rb in range(4):
        for c in range(8):
            if n and n % 4 == 0:
                e.salu("s_add_u32 s%d, s%d, 0x1000" % (sSt, sSt))
            ac = acc(rb, c)
            e.ins("buffer_store_dwordx4 %s, v%d, %s, s%d offen offset:%d" % (ar(ac, 4), vSt, srd(SRD_WS), sSt, (n % 4) * 1024),
                  "vstore", A(ac, 4) + V(vSt), (), tag="st")
            n += 1
    if STAMP:
        e.salu("s_waitcnt vmcnt(0)")
        stamp()
        e.salu("s_waitcnt lgkmcnt(0)")
        e.salu("s_cmp_ge_u32 s2, 2")
        e.salu("s_cbranch_scc1 main_done")
        e.salu("s_mov_b32 s%d, s38" % SRD_X)
        e.salu("s_mov_b32 s%d, s39" % (SRD_X + 1))
        e.salu("s_mov_b32 s%d, 256" % (SRD_X + 2))
        e.salu("s_lshl_b32 s3, s2, 2")
        e.salu("s_add_u32 s3, s3, s%d" % sW)
        e.salu("s_lshl_b32 s3, s3, 5")
        e.raw("v_mov_b32 v2, 0")
        for k in range(1, nst[0]):
            e.salu("s_sub_u32 s13, s%d, s80" % (80 + 2 * k))
            e.raw("v_mov_b32 v3, s13")
            e.raw("buffer_store_dword v3, v2, s[%d:%d], s3 offen offset:%d" % (SRD_X, SRD_X + 3, 4 * (k - 1)))
    e.label("main_done")
    e.salu("s_endpgm")
    return e.lines


HEADER = """; Fused two-branch attention block: Q-proj + attention + out-proj partials, then a reduce kernel.
; @launch kernel=main_kernel grid=(256,1,1) block=(256,1,1) lds=131072
; @launch kernel=reduce_kernel grid=(256,1,1) block=(256,1,1) lds=0
.amdgcn_target "amdgcn-amd-amdhsa--gfx950"
.text
"""


def main():
    out = [HEADER]
    for name, lines in (("main_kernel", gen_main()), ("reduce_kernel", gen_reduce())):
        out.append(".globl %s\n.p2align 8\n.type %s,@function\n" % (name, name))
        out.append("\n".join(lines) + "\n")
    out.append('.section .rodata,"a"\n')
    out.append(kd("main_kernel", 512, 100, 256))
    out.append(kd("reduce_kernel", 144, 32, 144))
    text = "".join(out)
    path = sys.argv[1] if len(sys.argv) > 1 else "cdna_kernels/%s.s" % NAME
    open(path, "w").write(text)
    print("wrote", path, len(text), "bytes")


if __name__ == "__main__":
    main()
```

```python
import struct, sys
from gen import Emit, V, A, vr, ar, f32bits, NAME, gen_reduce, kd

STAMP = len(sys.argv) > 2 and sys.argv[2] == "stamp"
OPT = dict(a.split("=") for a in sys.argv[3:])
NT = " nt" if int(OPT.get("nt", 1)) else ""
KVEARLY = int(OPT.get("kvearly", 0))

sBR, sHG, sRB, sW, sW8, sH = 4, 5, 6, 7, 8, 9
sIt = 10
sT0, sT1, sT2 = 3, 13, 14
SRD_X, SRD_K, SRD_V, SRD_WQ, SRD_WO, SRD_WS, SRD_WC = 40, 44, 48, 52, 56, 60, 64
sWJ = 68
sWinc = 76
sSelLo, sSelHi = 77, 78
sSt = 79
sKV = 68
sScale, sLog2e, sMask = 72, 73, 74
sWOo = 11
sXo = 12
LDS_QO = 65536

gRAW = 0
gFRAG = 64
gXF = 96
gW = 112
gX = 113
gL = 114
gT = 115
hVRAW = 0
hQF = 64
hL = 96
hK = 97
hV = 98
hQ = 99
hO = 100
hT = 101
aKF = 0
aO = 64
aS = 64 + 64 - 16


def srd(n):
    return "s[%d:%d]" % (n, n + 3)


def acc(rb, c):
    return (rb * 8 + c) * 4


def gen_main():
    e = Emit()
    nst = [0]

    def stamp():
        if not STAMP:
            return
        e.salu("s_memtime s[%d:%d]" % (80 + 2 * nst[0], 81 + 2 * nst[0]))
        nst[0] += 1

    def dump_stamps(n):
        e.salu("s_waitcnt vmcnt(0) lgkmcnt(0)")
        e.salu("s_cmp_ge_u32 s2, 1")
        e.salu("s_cbranch_scc1 main_done")
        e.salu("s_mov_b32 s%d, s38" % SRD_X)
        e.salu("s_mov_b32 s%d, s39" % (SRD_X + 1))
        e.salu("s_mov_b32 s%d, 256" % (SRD_X + 2))
        e.salu("s_lshl_b32 s3, s%d, 5" % sW8)
        e.raw("v_mov_b32 v2, 0")
        for k in range(1, n):
            e.salu("s_sub_u32 s13, s%d, s80" % (80 + 2 * k))
            e.raw("v_mov_b32 v3, s13")
            e.raw("buffer_store_dword v3, v2, s[%d:%d], s3 offen offset:%d" % (SRD_X, SRD_X + 3, 4 * (k - 1)))

    e.label("main_kernel")
    e.salu("s_cmp_ge_u32 s2, 256")
    e.salu("s_cbranch_scc1 main_done")
    stamp()
    e.salu("s_load_dwordx16 s[16:31], s[0:1], 0")
    e.salu("s_load_dwordx4 s[32:35], s[0:1], 64")
    e.salu("s_load_dwordx2 s[36:37], s[0:1], 96")
    if STAMP:
        e.salu("s_load_dwordx2 s[38:39], s[0:1], 88")
    cl, ci, cg, c16 = 124, 125, 126, 127
    e.ins("v_lshrrev_b32 v2, 6, v0", "valu", V(0), V(2))
    e.ins("v_and_b32 v%d, 63, v0" % cl, "valu", V(0), V(cl))
    e.ins("v_readfirstlane_b32 s%d, v2" % sW8, "rfl", V(2), [("s", sW8)])
    e.salu("s_and_b32 s3, s2, 7")
    e.salu("s_lshr_b32 s13, s2, 3")
    e.salu("s_lshr_b32 s%d, s3, 2" % sBR)
    e.salu("s_and_b32 s%d, s3, 3" % sHG)
    e.salu("s_lshl_b32 s%d, s%d, 1" % (sHG, sHG))
    e.salu("s_and_b32 s14, s13, 1")
    e.salu("s_or_b32 s%d, s%d, s14" % (sHG, sHG))
    e.salu("s_lshr_b32 s%d, s13, 1" % sRB)
    e.salu("s_and_b32 s%d, s%d, 3" % (sW, sW8))
    e.salu("s_mov_b32 s%d, 0x05040100" % sSelLo)
    e.salu("s_mov_b32 s%d, 0x07060302" % sSelHi)
    e.ins("v_and_b32 v%d, 15, v%d" % (ci, cl), "valu", V(cl), V(ci))
    e.ins("v_lshrrev_b32 v%d, 4, v%d" % (cg, cl), "valu", V(cl), V(cg))
    e.ins("v_lshlrev_b32 v%d, 4, v%d" % (c16, ci), "valu", V(ci), V(c16))
    cx = 123
    e.ins("v_lshlrev_b32 v%d, 4, v%d" % (cx, cg), "valu", V(cg), V(cx))
    e.ins("v_lshl_add_u32 v%d, v%d, 10, v%d" % (cx, ci, cx), "valu", V(ci) + V(cx), V(cx))
    e.salu("s_waitcnt lgkmcnt(0)")
    e.salu("s_cmp_eq_u32 s%d, 0" % sBR)
    e.salu("s_cselect_b64 s[%d:%d], s[16:17], s[26:27]" % (SRD_X, SRD_X + 1))
    e.salu("s_cselect_b64 s[%d:%d], s[18:19], s[28:29]" % (SRD_K, SRD_K + 1))
    e.salu("s_cselect_b64 s[%d:%d], s[20:21], s[30:31]" % (SRD_V, SRD_V + 1))
    e.salu("s_cselect_b64 s[%d:%d], s[22:23], s[32:33]" % (SRD_WQ, SRD_WQ + 1))
    e.salu("s_cselect_b64 s[%d:%d], s[24:25], s[34:35]" % (SRD_WO, SRD_WO + 1))
    e.salu("s_cselect_b64 s[%d:%d], s[22:23], s[32:33]" % (SRD_WC, SRD_WC + 1))
    e.salu("s_mov_b64 s[%d:%d], s[36:37]" % (SRD_WS, SRD_WS + 1))
    for base, size in ((SRD_X, 1 << 20), (SRD_K, 8 << 20), (SRD_V, 8 << 20), (SRD_WQ, 4 << 20), (SRD_WO, 4 << 20), (SRD_WS, 32 << 20), (SRD_WC, 4 << 20)):
        e.salu("s_mov_b32 s%d, 0x%x" % (base + 2, size))
        e.salu("s_mov_b32 s%d, 0x00020000" % (base + 3))
    e.salu("s_lshl_b32 s%d, s%d, 2" % (sH, sHG))
    e.salu("s_add_u32 s%d, s%d, s%d" % (sH, sH, sW))
    e.salu("s_lshl_b32 s%d, s%d, 16" % (sXo, sRB))
    e.salu("s_lshl_b32 s3, s%d, 7" % sW8)
    e.salu("s_add_u32 s%d, s%d, s3" % (sXo, sXo))
    e.salu("s_lshl_b32 s13, s%d, 13" % sW8)
    for rb in range(4):
        for ss in range(2):
            e.salu("s_add_u32 s14, s13, %d" % ((ss * 4 + rb) * 1024))
            e.salu("s_add_u32 s3, s%d, %d" % (sXo, rb * 16384 + ss * 64))
            e.salu("s_mov_b32 m0, s14")
            e.salu("s_nop 0")
            e.ins("buffer_load_dwordx4 v%d, %s, s3 offen%s lds" % (cx, srd(SRD_X), NT), "vload", V(cx), (), tag="x")
    e.salu("s_cmp_ge_u32 s%d, 4" % sW8)
    e.salu("s_cbranch_scc1 h_role")

    e.ins("v_mov_b32 v%d, v%d" % (gL, cl), "valu", V(cl), V(gL))
    e.ins("v_lshl_add_u32 v%d, v%d, 16, v%d" % (gW, cg, c16), "valu", V(cg) + V(c16), V(gW))
    e.ins("v_lshlrev_b32 v%d, 4, v%d" % (gX, cl), "valu", V(cl), V(gX))
    e.salu("s_lshl_b32 s%d, s%d, 8" % (sWJ, sH))
    for j in range(1, 8):
        e.salu("s_add_u32 s%d, s%d, 0x%x" % (sWJ + j, sWJ, j * 8192))
    e.salu("s_mov_b32 s%d, 0x40000" % sWinc)
    e.salu("s_lshl_b32 s%d, s%d, 19" % (sWOo, sHG))
    e.salu("s_lshl_b32 s3, s%d, 8" % sW)
    e.salu("s_add_u32 s%d, s%d, s3" % (sWOo, sWOo))
    e.salu("s_lshl_b32 s3, s%d, 4" % sBR)
    e.salu("s_add_u32 s3, s3, s%d" % sRB)
    e.salu("s_lshl_b32 s3, s3, 3")
    e.salu("s_add_u32 s3, s3, s%d" % sHG)
    e.salu("s_lshl_b32 s3, s3, 2")
    e.salu("s_add_u32 s3, s3, s%d" % sW)
    e.salu("s_lshl_b32 s%d, s3, 15" % sSt)

    def wload(t, j):
        d = gRAW + (t % 2) * 32 + 4 * j
        e.ins("buffer_load_dwordx4 %s, v%d, %s, s%d offen%s" % (vr(d, 4), gW, srd(SRD_WC), sWJ + j, NT),
              "vload", V(gW), V(d, 4), tag=("w", t))
        e.salu("s_add_u32 s%d, s%d, s%d" % (sWJ + j, sWJ + j, sWinc))

    for t in range(2):
        for j in range(8):
            wload(t, j)
    for k in range(128):
        e.ins("v_accvgpr_write_b32 a%d, 0" % k, "valu", (), A(k))
    e.wait_vm("x")
    stamp()
    e.salu("s_barrier")
    stamp()

    def xf_read(u, rb):
        d = gXF + rb * 4
        e.ins("ds_read_b128 %s, v%d offset:%d" % (vr(d, 4), gX, (u * 4 + rb) * 1024), "dsread", V(gX), V(d, 4), tag=("xf", rb))

    def perm(t, c, p):
        buf = gRAW + (t % 2) * 32
        s0 = buf + 4 * (2 * p + 1) + (c >> 1)
        s1 = buf + 4 * (2 * p) + (c >> 1)
        dd = gFRAG + c * 4 + p
        sel = sSelHi if (c & 1) else sSelLo
        e.ins("v_perm_b32 v%d, v%d, v%d, s%d" % (dd, s0, s1, sel), "valu", V(s0) + V(s1), V(dd))

    def mfma(rb, c):
        ac = acc(rb, c)
        xf = gXF + rb * 4
        e.ins("v_mfma_f32_16x16x32_bf16 %s, %s, %s, %s" % (ar(ac, 4), vr(gFRAG + c * 4, 4), vr(xf, 4), ar(ac, 4)), "mfma",
              V(gFRAG + c * 4, 4) + V(xf, 4) + A(ac, 4), A(ac, 4), creads=A(ac, 4))

    e.salu("s_mov_b32 s%d, 0" % sIt)
    xf_read(0, 0)
    xf_read(0, 1)
    e.wait_vm(("w", 0))
    for c in range(8):
        for p in range(4):
            perm(0, c, p)
    e.label("gemm_loop")
    e.vm = [("w", 1)] * 8
    e.lgkm = [("xf", 0), ("xf", 1)]
    e.last_w = {}
    e.nop(2)
    for u in range(2):
        e.comment("step %d half A" % u)
        e.wait_lgkm()
        for c in range(8):
            mfma(0, c)
            if c == 0:
                xf_read(u, 2)
                xf_read(u, 3)
            wload(u + 2, c)
            mfma(1, c)
        e.comment("step %d half B" % u)
        e.wait_lgkm()
        e.wait_vm(("w", u + 1))
        for c in range(8):
            mfma(2, c)
            if c == 0:
                xf_read(u + 1, 0)
            if c >= 1:
                perm(u + 1, c - 1, 0)
                perm(u + 1, c - 1, 1)
            mfma(3, c)
            if c == 0:
                xf_read(u + 1, 1)
            if c >= 1:
                perm(u + 1, c - 1, 2)
                perm(u + 1, c - 1, 3)
        for p in range(4):
            perm(u + 1, 7, p)
    e.ins("v_add_u32 v%d, 0x2000, v%d" % (gX, gX), "valu", V(gX), V(gX))
    e.salu("s_add_u32 s%d, s%d, 1" % (sIt, sIt))
    e.salu("s_cmp_eq_u32 s%d, 7" % sIt)
    e.salu("s_cbranch_scc1 g_switch")
    e.salu("s_cmp_eq_u32 s%d, 8" % sIt)
    e.salu("s_cbranch_scc1 g_handoff")
    e.salu("s_cmp_eq_u32 s%d, 15" % sIt)
    e.salu("s_cbranch_scc1 g_stop")
    e.salu("s_cmp_eq_u32 s%d, 16" % sIt)
    e.salu("s_cbranch_scc1 g_epilogue")
    e.salu("s_branch gemm_loop")
    e.label("g_switch")
    e.salu("s_mov_b64 s[%d:%d], s[%d:%d]" % (SRD_WC, SRD_WC + 1, SRD_WO, SRD_WO + 1))
    e.salu("s_mov_b32 s%d, s%d" % (sWJ, sWOo))
    for j in range(1, 8):
        e.salu("s_add_u32 s%d, s%d, 0x%x" % (sWJ + j, sWJ, j * 1024))
    e.salu("s_mov_b32 s%d, 0x8000" % sWinc)
    t0, t1 = gT, gT + 1
    e.ins("v_and_b32 v%d, 15, v%d" % (t0, gL), "valu", V(gL), V(t0))
    e.ins("v_lshrrev_b32 v%d, 4, v%d" % (t1, gL), "valu", V(gL), V(t1))
    e.ins("v_lshlrev_b32 v%d, 4, v%d" % (t0, t0), "valu", V(t0), V(t0))
    e.ins("v_lshl_add_u32 v%d, v%d, 13, v%d" % (gW, t1, t0), "valu", V(t1) + V(t0), V(gW))
    e.salu("s_branch gemm_loop")
    e.label("g_stop")
    e.salu("s_mov_b32 s%d, 0" % (SRD_WC + 2))
    e.salu("s_branch gemm_loop")

    e.label("g_handoff")
    stamp()
    e.last_w = {}
    e.nop(10)
    e.lgkm = [("xf", 0), ("xf", 1)]
    e.wait_lgkm()
    vq = gT + 2
    e.salu("s_lshl_b32 s3, s%d, 14" % sW)
    e.salu("s_add_u32 s3, s3, 0x%x" % LDS_QO)
    e.ins("v_lshlrev_b32 v%d, 4, v%d" % (vq, gL), "valu", V(gL), V(vq))
    e.ins("v_add_u32 v%d, s3, v%d" % (vq, vq), "valu", V(vq), V(vq))
    n = 0
    for rb in range(4):
        for r in range(4):
            dq = gXF + (n % 4) * 4
            n += 1
            for p in range(4):
                ta = gT + 3 + (p % 2) * 2
                tb = ta + 1
                a0 = acc(rb, 2 * p) + r
                a1 = acc(rb, 2 * p + 1) + r
                e.ins("v_accvgpr_read_b32 v%d, a%d" % (ta, a0), "valu", A(a0), V(ta))
                e.ins("v_accvgpr_read_b32 v%d, a%d" % (tb, a1), "valu", A(a1), V(tb))
                e.ins("v_cvt_pk_bf16_f32 v%d, v%d, v%d" % (dq + p, ta, tb), "valu", V(ta) + V(tb), V(dq + p))
            e.ins("ds_write_b128 v%d, %s offset:%d" % (vq, vr(dq, 4), (r * 4 + rb) * 1024), "dswrite", V(vq) + V(dq, 4), (), tag="qw")
    e.wait_lgkm()
    e.salu("s_barrier")
    stamp()
    for k in range(128):
        e.ins("v_accvgpr_write_b32 a%d, 0" % k, "valu", (), A(k))
    e.ins("v_lshlrev_b32 v%d, 4, v%d" % (gX, gL), "valu", V(gL), V(gX))
    e.ins("v_add_u32 v%d, 0x%x, v%d" % (gX, LDS_QO, gX), "valu", V(gX), V(gX))
    e.salu("s_barrier")
    stamp()
    xf_read(0, 0)
    xf_read(0, 1)
    e.salu("s_branch gemm_loop")

    e.label("g_epilogue")
    stamp()
    e.last_w = {}
    e.nop(10)
    vst = gT
    e.ins("v_lshlrev_b32 v%d, 4, v%d" % (vst, gL), "valu", V(gL), V(vst))
    n = 0
    for rb in range(4):
        for c in range(8):
            if n and n % 4 == 0:
                e.salu("s_add_u32 s%d, s%d, 0x1000" % (sSt, sSt))
            ac = acc(rb, c)
            e.ins("buffer_store_dwordx4 %s, v%d, %s, s%d offen offset:%d" % (ar(ac, 4), vst, srd(SRD_WS), sSt, (n % 4) * 1024),
                  "vstore", A(ac, 4) + V(vst), (), tag="st")
            n += 1
    if STAMP:
        e.salu("s_waitcnt vmcnt(0)")
        stamp()
        dump_stamps(nst[0])
    e.salu("s_endpgm")

    e.label("h_role")
    nst[0] = 1
    e.last_w = {}
    e.vm = ["x"] * 8
    e.lgkm = []
    e.ins("v_mov_b32 v%d, v%d" % (hL, cl), "valu", V(cl), V(hL))
    e.ins("v_lshlrev_b32 v%d, 8, v%d" % (hK, ci), "valu", V(ci), V(hK))
    e.ins("v_lshl_add_u32 v%d, v%d, 6, v%d" % (hK, cg, hK), "valu", V(cg) + V(hK), V(hK))
    e.ins("v_lshl_add_u32 v%d, v%d, 10, v%d" % (hV, cg, c16), "valu", V(cg) + V(c16), V(hV))
    e.salu("s_lshl_b32 s3, s%d, 14" % sW)
    e.salu("s_add_u32 s3, s3, 0x%x" % LDS_QO)
    e.ins("v_lshlrev_b32 v%d, 4, v%d" % (hQ, cl), "valu", V(cl), V(hQ))
    e.ins("v_add_u32 v%d, s3, v%d" % (hQ, hQ), "valu", V(hQ), V(hQ))
    e.ins("v_lshl_add_u32 v%d, v%d, 12, v%d" % (hO, cg, c16), "valu", V(cg) + V(c16), V(hO))
    e.ins("v_add_u32 v%d, s3, v%d" % (hO, hO), "valu", V(hO), V(hO))
    e.salu("s_mov_b32 s%d, 0x%08x" % (sScale, f32bits(128 ** -0.5)))
    e.salu("s_mov_b32 s%d, 0x%08x" % (sLog2e, f32bits(1.4426950408889634)))
    e.salu("s_mov_b32 s%d, 0xffff0000" % sMask)
    e.salu("s_lshl_b32 s3, s%d, 6" % sRB)
    e.salu("s_add_u32 s3, s3, s%d" % sH)
    e.salu("s_lshl_b32 s%d, s3, 13" % sKV)
    e.salu("s_add_u32 s%d, s%d, 0x1000" % (sKV + 1, sKV))
    e.salu("s_add_u32 s%d, s%d, 0x40000" % (sKV + 2, sKV))
    e.salu("s_add_u32 s%d, s%d, 0x41000" % (sKV + 3, sKV))
    tq, to, td = hT, hT + 1, 121
    e.ins("v_lshrrev_b32 v%d, 3, v%d" % (tq, cl), "valu", V(cl), V(tq))
    e.ins("v_and_b32 v%d, 7, v%d" % (to, cl), "valu", V(cl), V(to))
    e.ins("v_lshlrev_b32 v%d, 7, v%d" % (to, to), "valu", V(to), V(to))
    e.ins("v_lshl_add_u32 v%d, v%d, 13, v%d" % (tq, tq, to), "valu", V(tq) + V(to), V(tq))
    e.ins("v_lshlrev_b32 v%d, 7, v%d" % (to, cl), "valu", V(cl), V(to))
    e.salu("s_lshl_b32 s13, s%d, 2" % sRB)
    e.salu("s_add_u32 s13, s13, s%d" % sW)
    e.salu("s_lshl_b32 s14, s13, 16")
    e.salu("s_lshl_b32 s3, s%d, 10" % sHG)
    e.salu("s_add_u32 s14, s14, s3")
    e.ins("buffer_load_dword v%d, v%d, %s, s14 offen%s" % (td, tq, srd(SRD_WQ), NT), "vload", V(tq), V(td), tag="touch")
    e.salu("s_lshl_b32 s14, s%d, 19" % sHG)
    e.salu("s_lshl_b32 s3, s13, 13")
    e.salu("s_add_u32 s14, s14, s3")

    def kv_all():
        for idx in range(4):
            bb, isv = idx // 2, idx % 2
            for n in range(8):
                if not isv:
                    kt, sp = n // 4, n % 4
                    d = aKF + bb * 32 + (kt * 4 + sp) * 4
                    e.ins("buffer_load_dwordx4 %s, v%d, %s, s%d offen offset:%d%s" % (ar(d, 4), hK, srd(SRD_K), sKV + bb * 2 + kt, sp * 16, NT),
                          "vload", V(hK), A(d, 4), tag=("kv", bb, 0))
                else:
                    d = hVRAW + bb * 32 + n * 4
                    e.ins("buffer_load_dwordx4 %s, v%d, %s, s%d offen offset:%d%s" % (vr(d, 4), hV, srd(SRD_V), sKV + bb * 2 + n // 4, (n % 4) * 256, NT),
                          "vload", V(hV), V(d, 4), tag=("kv", bb, 1))
        e.ins("buffer_load_dword v%d, v%d, %s, s14 offen%s" % (td + 1, to, srd(SRD_WO), NT), "vload", V(to), V(td + 1), tag="touch")

    if KVEARLY:
        kv_all()
    e.wait_vm("x")
    stamp()
    e.salu("s_barrier")
    if not KVEARLY:
        kv_all()
    stamp()
    e.wait_vm(("kv", 1, 1))
    stamp()
    e.salu("s_barrier")
    stamp()
    aOacc = 64
    aSS = 64
    aSS = 112
    for bb in range(2):
        vb = hVRAW + bb * 32
        for qt in range(2):
            for sp in range(4):
                d = hQF + (qt * 4 + sp) * 4
                e.ins("ds_read_b128 %s, v%d offset:%d" % (vr(d, 4), hQ, (sp * 4 + 2 * bb + qt) * 1024), "dsread", V(hQ), V(d, 4), tag="q")
        e.wait_lgkm()
        SV = hT + 3
        for sp in range(4):
            for kt in range(2):
                for qt in range(2):
                    sd = SV + qt * 8 + kt * 4
                    kf = aKF + bb * 32 + (kt * 4 + sp) * 4
                    qf = hQF + (qt * 4 + sp) * 4
                    if sp == 0:
                        e.ins("v_mfma_f32_16x16x32_bf16 %s, %s, %s, 0" % (vr(sd, 4), ar(kf, 4), vr(qf, 4)), "mfma",
                              A(kf, 4) + V(qf, 4), V(sd, 4))
                    else:
                        e.ins("v_mfma_f32_16x16x32_bf16 %s, %s, %s, %s" % (vr(sd, 4), ar(kf, 4), vr(qf, 4), vr(sd, 4)), "mfma",
                              A(kf, 4) + V(qf, 4) + V(sd, 4), V(sd, 4), creads=V(sd, 4))
        for c in range(8):
            for p in range(4):
                s0 = vb + 4 * (2 * p + 1) + (c >> 1)
                s1 = vb + 4 * (2 * p) + (c >> 1)
                dd = hQF + c * 4 + p
                sel = sSelHi if (c & 1) else sSelLo
                e.ins("v_perm_b32 v%d, v%d, v%d, s%d" % (dd, s0, s1, sel), "valu", V(s0) + V(s1), V(dd))
        PF = vb
        TT = vb + 8
        for qt in range(2):
            vals = [SV + qt * 8 + k for k in range(8)]
            for rnd in range(2):
                for k in range(0, 8, 2):
                    x0, x1 = vals[k], vals[k + 1]
                    tp = TT
                    e.ins("v_cvt_pk_bf16_f32 v%d, v%d, v%d" % (tp, x0, x1), "valu", V(x0) + V(x1), V(tp))
                    e.ins("v_lshlrev_b32 v%d, 16, v%d" % (x0, tp), "valu", V(tp), V(x0))
                    e.ins("v_and_b32 v%d, s%d, v%d" % (x1, sMask, tp), "valu", V(tp), V(x1))
                    if rnd == 0:
                        e.ins("v_mul_f32 v%d, s%d, v%d" % (x0, sScale, x0), "valu", V(x0), V(x0))
                        e.ins("v_mul_f32 v%d, s%d, v%d" % (x1, sScale, x1), "valu", V(x1), V(x1))
            mx, m2 = TT + 1, TT + 2
            e.ins("v_max3_f32 v%d, v%d, v%d, v%d" % (mx, vals[0], vals[1], vals[2]), "valu", V(vals[0]) + V(vals[1]) + V(vals[2]), V(mx))
            e.ins("v_max3_f32 v%d, v%d, v%d, v%d" % (mx, mx, vals[3], vals[4]), "valu", V(mx) + V(vals[3]) + V(vals[4]), V(mx))
            e.ins("v_max3_f32 v%d, v%d, v%d, v%d" % (mx, mx, vals[5], vals[6]), "valu", V(mx) + V(vals[5]) + V(vals[6]), V(mx))
            e.ins("v_max_f32 v%d, v%d, v%d" % (mx, mx, vals[7]), "valu", V(mx) + V(vals[7]), V(mx))
            for sw in ("v_permlane16_swap_b32", "v_permlane32_swap_b32"):
                e.ins("v_mov_b32 v%d, v%d" % (m2, mx), "valu", V(mx), V(m2))
                e.ins("%s v%d, v%d" % (sw, mx, m2), "permlane", V(mx) + V(m2), V(mx) + V(m2))
                e.ins("v_max_f32 v%d, v%d, v%d" % (mx, mx, m2), "valu", V(mx) + V(m2), V(mx))
            for x in vals:
                e.ins("v_sub_f32 v%d, v%d, v%d" % (x, x, mx), "valu", V(x) + V(mx), V(x))
            for x in vals:
                e.ins("v_mul_f32 v%d, s%d, v%d" % (x, sLog2e, x), "valu", V(x), V(x))
            for x in vals:
                e.ins("v_exp_f32 v%d, v%d" % (x, x), "trans", V(x), V(x))
            sm, s2_ = TT + 3, TT + 4
            e.ins("v_add_f32 v%d, v%d, v%d" % (sm, vals[0], vals[1]), "valu", V(vals[0]) + V(vals[1]), V(sm))
            e.ins("v_add_f32 v%d, v%d, v%d" % (s2_, vals[2], vals[3]), "valu", V(vals[2]) + V(vals[3]), V(s2_))
            e.ins("v_add_f32 v%d, v%d, v%d" % (sm, sm, s2_), "valu", V(sm) + V(s2_), V(sm))
            e.ins("v_add_f32 v%d, v%d, v%d" % (s2_, vals[4], vals[5]), "valu", V(vals[4]) + V(vals[5]), V(s2_))
            e.ins("v_add_f32 v%d, v%d, v%d" % (sm, sm, s2_), "valu", V(sm) + V(s2_), V(sm))
            e.ins("v_add_f32 v%d, v%d, v%d" % (s2_, vals[6], vals[7]), "valu", V(vals[6]) + V(vals[7]), V(s2_))
            e.ins("v_add_f32 v%d, v%d, v%d" % (sm, sm, s2_), "valu", V(sm) + V(s2_), V(sm))
            for sw in ("v_permlane16_swap_b32", "v_permlane32_swap_b32"):
                e.ins("v_mov_b32 v%d, v%d" % (s2_, sm), "valu", V(sm), V(s2_))
                e.ins("%s v%d, v%d" % (sw, sm, s2_), "permlane", V(sm) + V(s2_), V(sm) + V(s2_))
                e.ins("v_add_f32 v%d, v%d, v%d" % (sm, sm, s2_), "valu", V(sm) + V(s2_), V(sm))
            e.ins("v_rcp_f32 v%d, v%d" % (sm, sm), "trans", V(sm), V(sm))
            for x in vals:
                e.ins("v_mul_f32 v%d, v%d, v%d" % (x, x, sm), "valu", V(x) + V(sm), V(x))
            for p in range(4):
                dd = PF + qt * 4 + p
                e.ins("v_cvt_pk_bf16_f32 v%d, v%d, v%d" % (dd, vals[2 * p], vals[2 * p + 1]), "valu", V(vals[2 * p]) + V(vals[2 * p + 1]), V(dd))
        for qt in range(2):
            for c in range(8):
                ac = aOacc + (qt * 8 + c) * 4
                e.ins("v_mfma_f32_16x16x32_bf16 %s, %s, %s, 0" % (ar(ac, 4), vr(hQF + c * 4, 4), vr(PF + qt * 4, 4)), "mfma",
                      V(hQF + c * 4, 4) + V(PF + qt * 4, 4), A(ac, 4))
        n = 0
        for qt in range(2):
            for r in range(4):
                dq = SV + (n % 4) * 4
                n += 1
                for p in range(4):
                    ta = vb + 16 + (p % 2) * 2
                    tb = ta + 1
                    a0 = aOacc + (qt * 8 + 2 * p) * 4 + r
                    a1 = aOacc + (qt * 8 + 2 * p + 1) * 4 + r
                    e.ins("v_accvgpr_read_b32 v%d, a%d" % (ta, a0), "valu", A(a0), V(ta))
                    e.ins("v_accvgpr_read_b32 v%d, a%d" % (tb, a1), "valu", A(a1), V(tb))
                    e.ins("v_cvt_pk_bf16_f32 v%d, v%d, v%d" % (dq + p, ta, tb), "valu", V(ta) + V(tb), V(dq + p))
                e.ins("ds_write_b128 v%d, %s offset:%d" % (hO, vr(dq, 4), (2 * bb + qt) * 1024 + r * 256), "dswrite",
                      V(hO) + V(dq, 4), (), tag="ow")
    e.wait_lgkm()
    stamp()
    e.salu("s_barrier")
    if STAMP:
        dump_stamps(nst[0])
    e.label("main_done")
    e.salu("s_endpgm")
    return e.lines


HEADER = """; Fused two-branch attention block: Q-proj + attention + out-proj partials, then a reduce kernel.
; @launch kernel=main_kernel grid=(256,1,1) block=(512,1,1) lds=131072
; @launch kernel=reduce_kernel grid=(256,1,1) block=(256,1,1) lds=0
.amdgcn_target "amdgcn-amd-amdhsa--gfx950"
.text
"""


def main():
    out = [HEADER]
    for name, lines in (("main_kernel", gen_main()), ("reduce_kernel", gen_reduce())):
        out.append(".globl %s\n.p2align 8\n.type %s,@function\n" % (name, name))
        out.append("\n".join(lines) + "\n")
    out.append('.section .rodata,"a"\n')
    out.append(kd("main_kernel", 256, 102, 128))
    out.append(kd("reduce_kernel", 144, 32, 144))
    text = "".join(out)
    path = sys.argv[1] if len(sys.argv) > 1 else "cdna_kernels/%s.s" % NAME
    open(path, "w").write(text)
    print("wrote", path, len(text), "bytes")


if __name__ == "__main__":
    main()
```

```python
import struct, sys
from gen import Emit, V, A, vr, ar, f32bits, NAME, gen_reduce, kd

STAMP = len(sys.argv) > 2 and sys.argv[2] == "stamp"
OPT = dict(a.split("=") for a in sys.argv[3:])
TOUCH = int(OPT.get("touch", 1))
KVNT = int(OPT.get("kvnt", 1))
PRE = int(OPT.get("pre", 2))
NOKV = int(OPT.get("nokv", 0))
KVALL = int(OPT.get("kvall", 0))
STAG = int(OPT.get("stag", 0))
LATE = int(OPT.get("late", 0))
G4 = int(OPT.get("g4", 0))
KLDS = int(OPT.get("klds", 0))
PBAR = int(OPT.get("pbar", 0))
STAGBIT = int(OPT.get("stagbit", 4))
ETOUCH = int(OPT.get("etouch", 0))
WOQ = int(OPT.get("woq", 0))
WNT = " nt" if int(OPT.get("wnt", 0)) else ""
XNT = " nt" if int(OPT.get("xnt", 0)) else ""
STF = OPT.get("stf", "").replace("+", " ")
STF = (" " + STF) if STF else ""
TNT = " nt" if int(OPT.get("tnt", 0)) else ""

D = 4
vL = 1
vWC = 2
vXr = 10
vK = 14
vV = 15
vRAW = 16
vFRAG = 144
vVRAW = 176
vOw = 240
vSt = 244
vT = 245

aACC = 0
aXF = 128
aKF = 160
aS = 224

sBR, sHG, sRB, sW = 4, 5, 6, 7
SRD_X, SRD_K, SRD_V, SRD_WQ, SRD_WO, SRD_WS, SRD_WC = 40, 44, 48, 52, 56, 60, 64
sWCo, sWCinc = 68, 69
sKV = 70
sSelLo, sSelHi = 74, 75
sSt = 76
sScale, sLog2e, sMask = 77, 78, 79
sXo = 8
sH = 9
sIt = 10
sWOo = 11
sR8 = 12
LDS_O = 65536


def srd(n):
    return "s[%d:%d]" % (n, n + 3)


def acc(rb, c):
    return aACC + (rb * 8 + c) * 4


def gen_main():
    e = Emit()
    nst = [0]

    def stamp():
        if not STAMP:
            return
        e.salu("s_memtime s[%d:%d]" % (80 + 2 * nst[0], 81 + 2 * nst[0]))
        nst[0] += 1

    e.label("main_kernel")
    e.salu("s_cmp_ge_u32 s2, 256")
    e.salu("s_cbranch_scc1 main_done")
    stamp()
    e.salu("s_load_dwordx16 s[16:31], s[0:1], 0")
    e.salu("s_load_dwordx4 s[32:35], s[0:1], 64")
    e.salu("s_load_dwordx2 s[36:37], s[0:1], 96")
    if STAMP:
        e.salu("s_load_dwordx2 s[38:39], s[0:1], 88")
    e.ins("v_lshrrev_b32 v2, 6, v0", "valu", V(0), V(2))
    e.ins("v_and_b32 v%d, 63, v0" % vL, "valu", V(0), V(vL))
    e.ins("v_readfirstlane_b32 s%d, v2" % sW, "rfl", V(2), [("s", sW)])
    e.salu("s_and_b32 s3, s2, 7")
    e.salu("s_lshr_b32 s13, s2, 3")
    e.salu("s_lshr_b32 s%d, s3, 2" % sBR)
    e.salu("s_and_b32 s%d, s3, 3" % sHG)
    e.salu("s_lshl_b32 s%d, s%d, 1" % (sHG, sHG))
    e.salu("s_and_b32 s14, s13, 1")
    e.salu("s_or_b32 s%d, s%d, s14" % (sHG, sHG))
    e.salu("s_lshr_b32 s%d, s13, 1" % sRB)
    e.salu("s_lshr_b32 s12, s2, %d" % int(OPT.get("g4bit", 4)))
    e.salu("s_and_b32 s12, s12, 3")
    e.salu("s_mov_b32 s%d, 0x05040100" % sSelLo)
    e.salu("s_mov_b32 s%d, 0x07060302" % sSelHi)
    e.salu("s_mov_b32 s%d, 0x%08x" % (sScale, f32bits(128 ** -0.5)))
    e.salu("s_mov_b32 s%d, 0x%08x" % (sLog2e, f32bits(1.4426950408889634)))
    e.salu("s_mov_b32 s%d, 0xffff0000" % sMask)
    ti, tg, tt, t3 = vT, vT + 1, vT + 2, vT + 3
    e.ins("v_and_b32 v%d, 15, v%d" % (ti, vL), "valu", V(vL), V(ti))
    e.ins("v_lshrrev_b32 v%d, 4, v%d" % (tg, vL), "valu", V(vL), V(tg))
    e.ins("v_lshlrev_b32 v%d, 4, v%d" % (tt, ti), "valu", V(ti), V(tt))
    e.ins("v_lshl_add_u32 v%d, v%d, 16, v%d" % (vWC, tg, tt), "valu", V(tg) + V(tt), V(vWC))
    for j in range(1, 8):
        e.ins("v_add_u32 v%d, 0x%x, v%d" % (vWC + j, j * 8192, vWC), "valu", V(vWC), V(vWC + j))
    e.ins("v_lshlrev_b32 v%d, 8, v%d" % (vK, ti), "valu", V(ti), V(vK))
    e.ins("v_lshl_add_u32 v%d, v%d, 6, v%d" % (vK, tg, vK), "valu", V(tg) + V(vK), V(vK))
    e.ins("v_lshl_add_u32 v%d, v%d, 10, v%d" % (vV, tg, tt), "valu", V(tg) + V(tt), V(vV))
    e.ins("v_lshlrev_b32 v%d, 4, v%d" % (vSt, vL), "valu", V(vL), V(vSt))
    for slo in range(4):
        e.ins("v_add_u32 v%d, %d, v%d" % (t3, 4 * slo, tg), "valu", V(tg), V(t3))
        e.ins("v_xor_b32 v%d, v%d, v%d" % (t3, t3, ti), "valu", V(t3) + V(ti), V(t3))
        e.ins("v_lshlrev_b32 v%d, 4, v%d" % (t3, t3), "valu", V(t3), V(t3))
        e.ins("v_lshl_add_u32 v%d, v%d, 10, v%d" % (vXr + slo, ti, t3), "valu", V(ti) + V(t3), V(vXr + slo))
    tq, to = vT + 4, vT + 5
    e.ins("v_lshrrev_b32 v%d, 3, v%d" % (tq, vL), "valu", V(vL), V(tq))
    e.ins("v_and_b32 v%d, 7, v%d" % (t3, vL), "valu", V(vL), V(t3))
    e.ins("v_lshlrev_b32 v%d, 7, v%d" % (t3, t3), "valu", V(t3), V(t3))
    e.ins("v_lshl_add_u32 v%d, v%d, 13, v%d" % (tq, tq, t3), "valu", V(tq) + V(t3), V(tq))
    e.ins("v_lshlrev_b32 v%d, 7, v%d" % (to, vL), "valu", V(vL), V(to))
    e.salu("s_waitcnt lgkmcnt(0)")
    e.salu("s_cmp_eq_u32 s%d, 0" % sBR)
    e.salu("s_cselect_b64 s[%d:%d], s[16:17], s[26:27]" % (SRD_X, SRD_X + 1))
    e.salu("s_cselect_b64 s[%d:%d], s[18:19], s[28:29]" % (SRD_K, SRD_K + 1))
    e.salu("s_cselect_b64 s[%d:%d], s[20:21], s[30:31]" % (SRD_V, SRD_V + 1))
    e.salu("s_cselect_b64 s[%d:%d], s[22:23], s[32:33]" % (SRD_WQ, SRD_WQ + 1))
    e.salu("s_cselect_b64 s[%d:%d], s[24:25], s[34:35]" % (SRD_WO, SRD_WO + 1))
    e.salu("s_cselect_b64 s[%d:%d], s[22:23], s[32:33]" % (SRD_WC, SRD_WC + 1))
    e.salu("s_mov_b64 s[%d:%d], s[36:37]" % (SRD_WS, SRD_WS + 1))
    for base, size in ((SRD_X, 1 << 20), (SRD_K, 8 << 20), (SRD_V, 8 << 20), (SRD_WQ, 4 << 20), (SRD_WO, 4 << 20), (SRD_WS, 32 << 20), (SRD_WC, 4 << 20)):
        e.salu("s_mov_b32 s%d, 0x%x" % (base + 2, size))
        e.salu("s_mov_b32 s%d, 0x00020000" % (base + 3))
    e.salu("s_lshl_b32 s%d, s%d, 2" % (sH, sHG))
    e.salu("s_add_u32 s%d, s%d, s%d" % (sH, sH, sW))
    e.salu("s_lshl_b32 s%d, s%d, 8" % (sWCo, sH))
    e.salu("s_mov_b32 s%d, 0x40000" % sWCinc)
    e.salu("s_lshl_b32 s%d, s%d, 19" % (sWOo, sHG))
    e.salu("s_lshl_b32 s3, s%d, 8" % sW)
    e.salu("s_add_u32 s%d, s%d, s3" % (sWOo, sWOo))
    e.salu("s_lshl_b32 s3, s%d, 6" % sRB)
    e.salu("s_add_u32 s3, s3, s%d" % sH)
    e.salu("s_lshl_b32 s%d, s3, 13" % sKV)
    e.salu("s_add_u32 s%d, s%d, 0x1000" % (sKV + 1, sKV))
    e.salu("s_add_u32 s%d, s%d, 0x40000" % (sKV + 2, sKV))
    e.salu("s_add_u32 s%d, s%d, 0x41000" % (sKV + 3, sKV))
    e.salu("s_lshl_b32 s%d, s%d, 16" % (sXo, sRB))
    e.salu("s_lshl_b32 s3, s%d, 14" % sW)
    e.salu("s_add_u32 s%d, s%d, s3" % (sXo, sXo))
    e.salu("s_lshl_b32 s3, s%d, 4" % sBR)
    e.salu("s_add_u32 s3, s3, s%d" % sRB)
    e.salu("s_lshl_b32 s3, s3, 3")
    e.salu("s_add_u32 s3, s3, s%d" % sHG)
    e.salu("s_lshl_b32 s3, s3, 2")
    e.salu("s_add_u32 s3, s3, s%d" % sW)
    e.salu("s_lshl_b32 s%d, s3, 15" % sSt)
    e.salu("s_lshl_b32 s13, s%d, 2" % sRB)
    e.salu("s_add_u32 s13, s13, s%d" % sW)
    e.salu("s_lshl_b32 s14, s13, 16")
    e.salu("s_lshl_b32 s3, s%d, 10" % sHG)
    e.salu("s_add_u32 s14, s14, s3")
    if WOQ:
        e.salu("s_mov_b64 s[%d:%d], s[%d:%d]" % (SRD_WC, SRD_WC + 1, SRD_WO, SRD_WO + 1))
        e.salu("s_mov_b32 s%d, s%d" % (sWCo, sWOo))
        e.salu("s_mov_b32 s%d, 0x8000" % sWCinc)
        e.ins("v_lshl_add_u32 v%d, v%d, 13, v%d" % (vWC, tg, tt), "valu", V(tg) + V(tt), V(vWC))
        for j in range(1, 8):
            e.ins("v_add_u32 v%d, 0x%x, v%d" % (vWC + j, j * 1024, vWC), "valu", V(vWC), V(vWC + j))
    if ETOUCH:
        e.ins("buffer_load_dword v%d, v%d, %s, s14 offen%s" % (vT + 6, tq, srd(SRD_WQ), TNT), "vload", V(tq), V(vT + 6), tag="touch")
    for r in range(16):
        if r and r % 4 == 0:
            e.salu("s_add_u32 s%d, s%d, 0x1000" % (sXo, sXo))
        d = vVRAW + 4 * r
        e.ins("buffer_load_dwordx4 %s, v%d, %s, s%d offen offset:%d%s" % (vr(d, 4), vSt, srd(SRD_X), sXo, (r % 4) * 1024, XNT),
              "vload", V(vSt), V(d, 4), tag="x")

    def wloads(t):
        out = []
        buf = vRAW + (t % D) * 32
        for j in range(8):
            d = buf + 4 * j
            def f(d=d, j=j):
                e.ins("buffer_load_dwordx4 %s, v%d, %s, s%d offen%s" % (vr(d, 4), vWC + j, srd(SRD_WC), sWCo, WNT),
                      "vload", V(vWC + j), V(d, 4), tag=("w", t))
            out.append(f)
        out.append(lambda: e.salu("s_add_u32 s%d, s%d, s%d" % (sWCo, sWCo, sWCinc)))
        return out

    for t in range(PRE):
        for f in wloads(t):
            f()

    nt = " nt" if KVNT else ""

    def kv_burst(idx):
        if NOKV:
            return
        bb, isv = idx // 2, idx % 2
        for n in range(8):
            if not isv:
                kt, sp = n // 4, n % 4
                d = aKF + bb * 32 + (kt * 4 + sp) * 4
                e.ins("buffer_load_dwordx4 %s, v%d, %s, s%d offen offset:%d%s" % (ar(d, 4), vK, srd(SRD_K), sKV + bb * 2 + kt, sp * 16, nt),
                      "vload", V(vK), A(d, 4), tag=("kv", bb, 0))
            else:
                d = vVRAW + bb * 32 + n * 4
                e.ins("buffer_load_dwordx4 %s, v%d, %s, s%d offen offset:%d%s" % (vr(d, 4), vV, srd(SRD_V), sKV + bb * 2 + n // 4, (n % 4) * 256, nt),
                      "vload", V(vV), V(d, 4), tag=("kv", bb, 1))

    for k in range(128):
        e.ins("v_accvgpr_write_b32 a%d, 0" % (aACC + k), "valu", (), A(aACC + k))
    tb = vT + 8
    e.ins("v_mov_b32 v%d, s%d" % (tb, sW), "valu", [("s", sW)], V(tb))
    e.ins("v_lshlrev_b32 v%d, 14, v%d" % (tb, tb), "valu", V(tb), V(tb))
    e.wait_vm("x")
    stamp()
    for r in range(16):
        ta = vT + 9 + (r % 2)
        e.ins("v_xor_b32 v%d, %d, v%d" % (ta, r, vL), "valu", V(vL), V(ta))
        e.ins("v_lshl_add_u32 v%d, v%d, 4, v%d" % (ta, ta, tb), "valu", V(ta) + V(tb), V(ta))
        d = vVRAW + 4 * r
        e.ins("ds_write_b128 v%d, %s offset:%d" % (ta, vr(d, 4), r * 1024), "dswrite", V(ta) + V(d, 4), (), tag="xw")
    if PBAR:
        e.wait_lgkm()
        e.salu("s_barrier")
    for t in range(PRE, D):
        for f in wloads(t):
            f()
    if TOUCH and not ETOUCH:
        e.ins("buffer_load_dword v%d, v%d, %s, s14 offen%s" % (vT + 6, tq, srd(SRD_WQ), TNT), "vload", V(tq), V(vT + 6), tag="touch")
    e.salu("s_lshl_b32 s14, s%d, 19" % sHG)
    e.salu("s_lshl_b32 s3, s13, 13")
    e.salu("s_add_u32 s14, s14, s3")
    if not PBAR:
        e.wait_lgkm()
        e.salu("s_barrier")
    if STAG:
        e.salu("s_bitcmp1_b32 s2, %d" % STAGBIT)
        e.salu("s_cbranch_scc1 skip_early_kv")
        for i in range(4):
            kv_burst(i)
        e.label("skip_early_kv")
    elif not LATE:
        kv_burst(0)
        if KVALL:
            kv_burst(1)
            kv_burst(2)
            kv_burst(3)
    stamp()

    def xf_read(u, rb):
        d = aXF + (u % 2) * 16 + rb * 4
        off = rb * 16384 + (256 if u == 4 else 0)
        e.ins("ds_read_b128 %s, v%d offset:%d" % (ar(d, 4), vXr + (u % 4), off), "dsread", V(vXr + (u % 4)), A(d, 4), tag=("xf", u % 4))

    def perm(t, c, p):
        buf = vRAW + (t % D) * 32
        s0 = buf + 4 * (2 * p + 1) + (c >> 1)
        s1 = buf + 4 * (2 * p) + (c >> 1)
        dd = vFRAG + c * 4 + p
        sel = sSelHi if (c & 1) else sSelLo
        e.ins("v_perm_b32 v%d, v%d, v%d, s%d" % (dd, s0, s1, sel), "valu", V(s0) + V(s1), V(dd))

    def phase_entry():
        for rb in range(4):
            xf_read(0, rb)
        e.wait_vm(("w", 0))
        for c in range(8):
            for p in range(4):
                perm(0, c, p)

    def loop_body():
        for u in range(4):
            e.comment("step %d" % u)
            e.wait_lgkm(("xf", u))
            wl = wloads(u + D)
            m = 0
            for c in range(8):
                for rb in range(4):
                    ac = acc(rb, c)
                    xf = aXF + (u % 2) * 16 + rb * 4
                    e.ins("v_mfma_f32_16x16x32_bf16 %s, %s, %s, %s" % (ar(ac, 4), vr(vFRAG + c * 4, 4), ar(xf, 4), ar(ac, 4)), "mfma",
                          V(vFRAG + c * 4, 4) + A(xf, 4) + A(ac, 4), A(ac, 4), creads=A(ac, 4))
                    if c == 0:
                        wl[2 * rb]()
                        wl[2 * rb + 1]()
                        if rb == 3:
                            wl[8]()
                            e.wait_vm(("w", u + 1))
                    if c >= 1:
                        perm(u + 1, c - 1, rb)
                    if c == 2:
                        xf_read(u + 1, rb)
                    m += 1
            for p in range(4):
                perm(u + 1, 7, p)
        for slo in range(4):
            e.ins("v_add_u32 v%d, 0x100, v%d" % (vXr + slo, vXr + slo), "valu", V(vXr + slo), V(vXr + slo))

    e.salu("s_mov_b32 s%d, 0" % sIt)
    phase_entry()
    e.label("gemm_loop")
    e.vm = [("w", 1)] * 8 + [("w", 2)] * 8 + [("w", 3)] * 8
    e.lgkm = [("xf", 0)] * 4
    e.last_w = {}
    e.nop(2)
    loop_body()
    e.salu("s_add_u32 s%d, s%d, 1" % (sIt, sIt))
    e.salu("s_cmp_eq_u32 s%d, 4" % sIt)
    e.salu("s_cbranch_scc1 attention")
    e.salu("s_cmp_eq_u32 s%d, 8" % sIt)
    e.salu("s_cbranch_scc1 epilogue")
    e.salu("s_cmp_eq_u32 s%d, 7" % sIt)
    e.salu("s_cbranch_scc1 it7")
    e.salu("s_cmp_gt_u32 s%d, 4" % sIt)
    e.salu("s_cbranch_scc1 gemm_loop")
    e.salu("s_cmp_eq_u32 s%d, 2" % sIt)
    e.salu("s_cbranch_scc1 it2")
    e.salu("s_cmp_eq_u32 s%d, 3" % sIt)
    e.salu("s_cbranch_scc1 it3")
    e.label("it1")
    stamp()
    if G4:
        e.salu("s_cmp_lg_u32 s12, 1")
        e.salu("s_cbranch_scc1 g4skip1")
        for i in range(4):
            kv_burst(i)
        e.label("g4skip1")
    if not KVALL and not STAG and not LATE:
        kv_burst(1)
    if TOUCH:
        e.ins("buffer_load_dword v%d, v%d, %s, s14 offen%s" % (vT + 6, to, srd(SRD_WO), TNT), "vload", V(to), V(vT + 6), tag="touch")
    e.salu("s_branch gemm_loop")
    e.label("it2")
    stamp()
    if G4:
        e.salu("s_cmp_lg_u32 s12, 2")
        e.salu("s_cbranch_scc1 g4skip2")
        for i in range(4):
            kv_burst(i)
        e.label("g4skip2")
    if not KVALL and not STAG and not LATE:
        kv_burst(2)
    e.salu("s_branch gemm_loop")
    e.label("it3")
    stamp()
    if G4:
        e.salu("s_cmp_lg_u32 s12, 3")
        e.salu("s_cbranch_scc1 g4skip3")
        for i in range(4):
            kv_burst(i)
        e.label("g4skip3")
    if not KVALL and not STAG and not LATE:
        kv_burst(3)
    if LATE == 2:
        for i in range(4):
            kv_burst(i)
    e.salu("s_mov_b64 s[%d:%d], s[%d:%d]" % (SRD_WC, SRD_WC + 1, SRD_WO, SRD_WO + 1))
    e.salu("s_mov_b32 s%d, s%d" % (sWCo, sWOo))
    e.salu("s_mov_b32 s%d, 0x8000" % sWCinc)
    e.ins("v_and_b32 v%d, 15, v%d" % (ti, vL), "valu", V(vL), V(ti))
    e.ins("v_lshrrev_b32 v%d, 4, v%d" % (tg, vL), "valu", V(vL), V(tg))
    e.ins("v_lshlrev_b32 v%d, 4, v%d" % (tt, ti), "valu", V(ti), V(tt))
    e.ins("v_lshl_add_u32 v%d, v%d, 13, v%d" % (vWC, tg, tt), "valu", V(tg) + V(tt), V(vWC))
    for j in range(1, 8):
        e.ins("v_add_u32 v%d, 0x%x, v%d" % (vWC + j, j * 1024, vWC), "valu", V(vWC), V(vWC + j))
    e.salu("s_branch gemm_loop")
    e.label("it7")
    e.salu("s_mov_b32 s%d, 0" % (SRD_WC + 2))
    e.salu("s_branch gemm_loop")

    e.label("attention")
    stamp()
    e.last_w = {}
    e.nop(10)
    e.vm = [("w", 1)] * 8 + [("w", 2)] * 8 + [("w", 3)] * 8
    e.lgkm = [("xf", 0)] * 4
    e.wait_lgkm()
    if KLDS:
        e.salu("s_barrier")
        kb0 = vT + 4
        e.ins("v_and_b32 v%d, 15, v%d" % (ti, vL), "valu", V(vL), V(ti))
        e.ins("v_lshrrev_b32 v%d, 4, v%d" % (tg, vL), "valu", V(vL), V(tg))
        e.ins("v_xor_b32 v%d, v%d, v%d" % (t3, ti, tg), "valu", V(ti) + V(tg), V(t3))
        e.ins("v_lshlrev_b32 v%d, 4, v%d" % (t3, t3), "valu", V(t3), V(t3))
        e.ins("v_lshl_add_u32 v%d, v%d, 8, v%d" % (kb0, tg, t3), "valu", V(tg) + V(t3), V(kb0))
        for q in range(1, 4):
            e.ins("v_xor_b32 v%d, %d, v%d" % (kb0 + q, q * 64, kb0), "valu", V(kb0), V(kb0 + q))
        e.salu("s_lshl_b32 s13, s%d, 14" % sW)
        for bb in range(2):
            for n in range(8):
                e.salu("s_add_u32 s14, s13, %d" % (bb * 8192 + n * 1024))
                e.salu("s_add_u32 s3, s%d, %d" % (sKV + bb * 2, n * 1024))
                e.salu("s_mov_b32 m0, s14")
                e.salu("s_nop 0")
                e.ins("buffer_load_dwordx4 v%d, %s, s3 offen%s lds" % (kb0 + n % 4, srd(SRD_K), nt), "vload", V(kb0 + n % 4), (), tag=("kv", bb, 0))
            kv_burst(2 * bb + 1)
    elif LATE == 1:
        if G4:
            e.salu("s_cmp_lg_u32 s12, 0")
            e.salu("s_cbranch_scc1 g4skip0")
        for i in range(4):
            kv_burst(i)
        if G4:
            e.label("g4skip0")
    if STAG:
        e.salu("s_bitcmp1_b32 s2, %d" % STAGBIT)
        e.salu("s_cbranch_scc0 skip_late_kv")
        for i in range(4):
            kv_burst(i)
        e.salu("s_waitcnt vmcnt(0)")
        e.label("skip_late_kv")
        e.vm = []
    e.ins("v_and_b32 v%d, 15, v%d" % (ti, vL), "valu", V(vL), V(ti))
    e.ins("v_lshrrev_b32 v%d, 4, v%d" % (tg, vL), "valu", V(vL), V(tg))
    e.salu("s_lshl_b32 s3, s%d, 8" % sW)
    e.salu("s_add_u32 s3, s3, 0x%x" % LDS_O)
    for r in range(4):
        e.ins("v_lshl_add_u32 v%d, v%d, 2, %d" % (t3, tg, r), "valu", V(tg), V(t3))
        e.ins("v_xor_b32 v%d, v%d, v%d" % (t3, t3, ti), "valu", V(t3) + V(ti), V(t3))
        e.ins("v_lshlrev_b32 v%d, 4, v%d" % (t3, t3), "valu", V(t3), V(t3))
        e.ins("v_lshl_add_u32 v%d, v%d, 10, v%d" % (t3, ti, t3), "valu", V(ti) + V(t3), V(t3))
        e.ins("v_add_u32 v%d, s3, v%d" % (vOw + r, t3), "valu", V(t3), V(vOw + r))
    for slo in range(4):
        e.ins("v_add_u32 v%d, 0x%x, v%d" % (vXr + slo, LDS_O - 1024, vXr + slo), "valu", V(vXr + slo), V(vXr + slo))
    QF = vFRAG
    for bb in range(2):
        vb = vVRAW + bb * 32
        for qt in range(2):
            rb = 2 * bb + qt
            for sp in range(4):
                for p in range(4):
                    t0 = vT + (p % 2) * 2
                    t1 = t0 + 1
                    a0 = acc(rb, 2 * p) + sp
                    a1 = acc(rb, 2 * p + 1) + sp
                    e.ins("v_accvgpr_read_b32 v%d, a%d" % (t0, a0), "valu", A(a0), V(t0))
                    e.ins("v_accvgpr_read_b32 v%d, a%d" % (t1, a1), "valu", A(a1), V(t1))
                    dd = QF + (qt * 4 + sp) * 4 + p
                    e.ins("v_cvt_pk_bf16_f32 v%d, v%d, v%d" % (dd, t0, t1), "valu", V(t0) + V(t1), V(dd))
        e.wait_vm(("kv", bb, 0))
        if KLDS:
            e.salu("s_lshl_b32 s3, s%d, 14" % sW)
            ki, kg = vT + 8, vT + 9
            e.ins("v_and_b32 v%d, 15, v%d" % (ki, vL), "valu", V(vL), V(ki))
            e.ins("v_lshrrev_b32 v%d, 4, v%d" % (kg, vL), "valu", V(vL), V(kg))
            for sp in range(4):
                ka = vT + 4 + (sp % 2)
                e.ins("v_lshl_add_u32 v%d, v%d, 2, %d" % (ka, kg, sp), "valu", V(kg), V(ka))
                e.ins("v_xor_b32 v%d, v%d, v%d" % (ka, ka, ki), "valu", V(ka) + V(ki), V(ka))
                e.ins("v_lshlrev_b32 v%d, 4, v%d" % (ka, ka), "valu", V(ka), V(ka))
                e.ins("v_lshl_add_u32 v%d, v%d, 8, v%d" % (ka, ki, ka), "valu", V(ki) + V(ka), V(ka))
                e.ins("v_add_u32 v%d, s3, v%d" % (ka, ka), "valu", V(ka), V(ka))
                for kt in range(2):
                    d = aKF + bb * 32 + (kt * 4 + sp) * 4
                    e.ins("ds_read_b128 %s, v%d offset:%d" % (ar(d, 4), ka, bb * 8192 + kt * 4096), "dsread", V(ka), A(d, 4), tag="kf")
            e.wait_lgkm()
        for sp in range(4):
            for kt in range(2):
                for qt in range(2):
                    sd = aS + (kt * 2 + qt) * 4
                    kf = aKF + bb * 32 + (kt * 4 + sp) * 4
                    qf = QF + (qt * 4 + sp) * 4
                    if sp == 0:
                        e.ins("v_mfma_f32_16x16x32_bf16 %s, %s, %s, 0" % (ar(sd, 4), ar(kf, 4), vr(qf, 4)), "mfma",
                              A(kf, 4) + V(qf, 4), A(sd, 4))
                    else:
                        e.ins("v_mfma_f32_16x16x32_bf16 %s, %s, %s, %s" % (ar(sd, 4), ar(kf, 4), vr(qf, 4), ar(sd, 4)), "mfma",
                              A(kf, 4) + V(qf, 4) + A(sd, 4), A(sd, 4), creads=A(sd, 4))
        e.wait_vm(("kv", bb, 1))
        for c in range(8):
            for p in range(4):
                s0 = vb + 4 * (2 * p + 1) + (c >> 1)
                s1 = vb + 4 * (2 * p) + (c >> 1)
                dd = QF + c * 4 + p
                sel = sSelHi if (c & 1) else sSelLo
                e.ins("v_perm_b32 v%d, v%d, v%d, s%d" % (dd, s0, s1, sel), "valu", V(s0) + V(s1), V(dd))
        SV = vb
        PF = vb + 16
        TT = vb + 24
        for qt in range(2):
            for kt in range(2):
                for r in range(4):
                    a_ = aS + (kt * 2 + qt) * 4 + r
                    d_ = SV + qt * 8 + kt * 4 + r
                    e.ins("v_accvgpr_read_b32 v%d, a%d" % (d_, a_), "valu", A(a_), V(d_))
        for qt in range(2):
            vals = [SV + qt * 8 + k for k in range(8)]
            for rnd in range(2):
                for k in range(0, 8, 2):
                    x0, x1 = vals[k], vals[k + 1]
                    tp = TT
                    e.ins("v_cvt_pk_bf16_f32 v%d, v%d, v%d" % (tp, x0, x1), "valu", V(x0) + V(x1), V(tp))
                    e.ins("v_lshlrev_b32 v%d, 16, v%d" % (x0, tp), "valu", V(tp), V(x0))
                    e.ins("v_and_b32 v%d, s%d, v%d" % (x1, sMask, tp), "valu", V(tp), V(x1))
                    if rnd == 0:
                        e.ins("v_mul_f32 v%d, s%d, v%d" % (x0, sScale, x0), "valu", V(x0), V(x0))
                        e.ins("v_mul_f32 v%d, s%d, v%d" % (x1, sScale, x1), "valu", V(x1), V(x1))
            mx, m2 = TT + 1, TT + 2
            e.ins("v_max3_f32 v%d, v%d, v%d, v%d" % (mx, vals[0], vals[1], vals[2]), "valu", V(vals[0]) + V(vals[1]) + V(vals[2]), V(mx))
            e.ins("v_max3_f32 v%d, v%d, v%d, v%d" % (mx, mx, vals[3], vals[4]), "valu", V(mx) + V(vals[3]) + V(vals[4]), V(mx))
            e.ins("v_max3_f32 v%d, v%d, v%d, v%d" % (mx, mx, vals[5], vals[6]), "valu", V(mx) + V(vals[5]) + V(vals[6]), V(mx))
            e.ins("v_max_f32 v%d, v%d, v%d" % (mx, mx, vals[7]), "valu", V(mx) + V(vals[7]), V(mx))
            for sw in ("v_permlane16_swap_b32", "v_permlane32_swap_b32"):
                e.ins("v_mov_b32 v%d, v%d" % (m2, mx), "valu", V(mx), V(m2))
                e.ins("%s v%d, v%d" % (sw, mx, m2), "permlane", V(mx) + V(m2), V(mx) + V(m2))
                e.ins("v_max_f32 v%d, v%d, v%d" % (mx, mx, m2), "valu", V(mx) + V(m2), V(mx))
            for x in vals:
                e.ins("v_sub_f32 v%d, v%d, v%d" % (x, x, mx), "valu", V(x) + V(mx), V(x))
            for x in vals:
                e.ins("v_mul_f32 v%d, s%d, v%d" % (x, sLog2e, x), "valu", V(x), V(x))
            for x in vals:
                e.ins("v_exp_f32 v%d, v%d" % (x, x), "trans", V(x), V(x))
            sm, s2_ = TT + 3, TT + 4
            e.ins("v_add_f32 v%d, v%d, v%d" % (sm, vals[0], vals[1]), "valu", V(vals[0]) + V(vals[1]), V(sm))
            e.ins("v_add_f32 v%d, v%d, v%d" % (s2_, vals[2], vals[3]), "valu", V(vals[2]) + V(vals[3]), V(s2_))
            e.ins("v_add_f32 v%d, v%d, v%d" % (sm, sm, s2_), "valu", V(sm) + V(s2_), V(sm))
            e.ins("v_add_f32 v%d, v%d, v%d" % (s2_, vals[4], vals[5]), "valu", V(vals[4]) + V(vals[5]), V(s2_))
            e.ins("v_add_f32 v%d, v%d, v%d" % (sm, sm, s2_), "valu", V(sm) + V(s2_), V(sm))
            e.ins("v_add_f32 v%d, v%d, v%d" % (s2_, vals[6], vals[7]), "valu", V(vals[6]) + V(vals[7]), V(s2_))
            e.ins("v_add_f32 v%d, v%d, v%d" % (sm, sm, s2_), "valu", V(sm) + V(s2_), V(sm))
            for sw in ("v_permlane16_swap_b32", "v_permlane32_swap_b32"):
                e.ins("v_mov_b32 v%d, v%d" % (s2_, sm), "valu", V(sm), V(s2_))
                e.ins("%s v%d, v%d" % (sw, sm, s2_), "permlane", V(sm) + V(s2_), V(sm) + V(s2_))
                e.ins("v_add_f32 v%d, v%d, v%d" % (sm, sm, s2_), "valu", V(sm) + V(s2_), V(sm))
            e.ins("v_rcp_f32 v%d, v%d" % (sm, sm), "trans", V(sm), V(sm))
            for x in vals:
                e.ins("v_mul_f32 v%d, v%d, v%d" % (x, x, sm), "valu", V(x) + V(sm), V(x))
            for p in range(4):
                dd = PF + qt * 4 + p
                e.ins("v_cvt_pk_bf16_f32 v%d, v%d, v%d" % (dd, vals[2 * p], vals[2 * p + 1]), "valu", V(vals[2 * p]) + V(vals[2 * p + 1]), V(dd))
        for qt in range(2):
            for c in range(8):
                ac = acc(2 * bb + qt, c)
                e.ins("v_mfma_f32_16x16x32_bf16 %s, %s, %s, 0" % (ar(ac, 4), vr(QF + c * 4, 4), vr(PF + qt * 4, 4)), "mfma",
                      V(QF + c * 4, 4) + V(PF + qt * 4, 4), A(ac, 4))
        n = 0
        for qt in range(2):
            for r in range(4):
                dq = SV + (n % 4) * 4
                n += 1
                for p in range(4):
                    t0 = vT + (p % 2) * 2
                    t1 = t0 + 1
                    a0 = acc(2 * bb + qt, 2 * p) + r
                    a1 = acc(2 * bb + qt, 2 * p + 1) + r
                    e.ins("v_accvgpr_read_b32 v%d, a%d" % (t0, a0), "valu", A(a0), V(t0))
                    e.ins("v_accvgpr_read_b32 v%d, a%d" % (t1, a1), "valu", A(a1), V(t1))
                    e.ins("v_cvt_pk_bf16_f32 v%d, v%d, v%d" % (dq + p, t0, t1), "valu", V(t0) + V(t1), V(dq + p))
                e.ins("ds_write_b128 v%d, %s offset:%d" % (vOw + r, vr(dq, 4), (32 * bb + 16 * qt) * 1024), "dswrite",
                      V(vOw + r) + V(dq, 4), (), tag="ow")
    for k in range(128):
        e.ins("v_accvgpr_write_b32 a%d, 0" % (aACC + k), "valu", (), A(aACC + k))
    e.wait_lgkm()
    stamp()
    e.salu("s_barrier")
    stamp()
    for rb in range(4):
        xf_read(0, rb)
    for c in range(8):
        for p in range(4):
            perm(0, c, p)
    e.salu("s_branch gemm_loop")

    e.label("epilogue")
    stamp()
    e.last_w = {}
    e.nop(10)
    n = 0
    for rb in range(4):
        for c in range(8):
            if n and n % 4 == 0:
                e.salu("s_add_u32 s%d, s%d, 0x1000" % (sSt, sSt))
            ac = acc(rb, c)
            e.ins("buffer_store_dwordx4 %s, v%d, %s, s%d offen offset:%d%s" % (ar(ac, 4), vSt, srd(SRD_WS), sSt, (n % 4) * 1024, STF),
                  "vstore", A(ac, 4) + V(vSt), (), tag="st")
            n += 1
    if STAMP:
        e.salu("s_waitcnt vmcnt(0)")
        stamp()
        e.salu("s_waitcnt lgkmcnt(0)")
        e.salu("s_cmp_lg_u32 s2, %d" % int(OPT.get("dumpwg", 0)))
        e.salu("s_cbranch_scc1 main_done")
        e.salu("s_mov_b32 s%d, s38" % SRD_X)
        e.salu("s_mov_b32 s%d, s39" % (SRD_X + 1))
        e.salu("s_mov_b32 s%d, 256" % (SRD_X + 2))
        e.salu("s_lshl_b32 s3, s%d, 6" % sW)
        e.raw("v_mov_b32 v2, 0")
        for k in range(1, nst[0]):
            e.salu("s_sub_u32 s13, s%d, s80" % (80 + 2 * k))
            e.raw("v_mov_b32 v3, s13")
            e.raw("buffer_store_dword v3, v2, s[%d:%d], s3 offen offset:%d" % (SRD_X, SRD_X + 3, 4 * (k - 1)))
    e.label("main_done")
    e.salu("s_endpgm")
    return e.lines


HEADER = """; Fused two-branch attention block: Q-proj + attention + out-proj partials, then a reduce kernel.
; @launch kernel=main_kernel grid=(256,1,1) block=(256,1,1) lds=131072
; @launch kernel=reduce_kernel grid=(256,1,1) block=(256,1,1) lds=0
.amdgcn_target "amdgcn-amd-amdhsa--gfx950"
.text
"""


def main():
    out = [HEADER]
    for name, lines in (("main_kernel", gen_main()), ("reduce_kernel", gen_reduce())):
        out.append(".globl %s\n.p2align 8\n.type %s,@function\n" % (name, name))
        out.append("\n".join(lines) + "\n")
    out.append('.section .rodata,"a"\n')
    out.append(kd("main_kernel", 512, 102, 256))
    out.append(kd("reduce_kernel", 144, 32, 144))
    text = "".join(out)
    path = sys.argv[1] if len(sys.argv) > 1 else "cdna_kernels/%s.s" % NAME
    open(path, "w").write(text)
    print("wrote", path, len(text), "bytes")


if __name__ == "__main__":
    main()
```

```python
import struct, sys
from gen import Emit, V, A, vr, ar, f32bits, NAME, gen_reduce, kd

STAMP = len(sys.argv) > 2 and sys.argv[2] == "stamp"
OPT = dict(a.split("=") for a in sys.argv[3:])
TOUCH = int(OPT.get("touch", 1))
KVNT = int(OPT.get("kvnt", 1))
PRE = int(OPT.get("pre", 2))
NOKV = int(OPT.get("nokv", 0))
KVALL = int(OPT.get("kvall", 0))
STAG = int(OPT.get("stag", 0))
LATE = int(OPT.get("late", 0))
G4 = int(OPT.get("g4", 0))
KLDS = int(OPT.get("klds", 0))
FUSE = int(OPT.get("fuse", 0))
SPIN = int(OPT.get("spin", 4000))
PBAR = int(OPT.get("pbar", 0))
STAGBIT = int(OPT.get("stagbit", 4))
ETOUCH = int(OPT.get("etouch", 0))
WOQ = int(OPT.get("woq", 0))
WNT = " nt" if int(OPT.get("wnt", 0)) else ""
XNT = " nt" if int(OPT.get("xnt", 0)) else ""
STF = OPT.get("stf", "").replace("+", " ")
STF = (" " + STF) if STF else ""
TNT = " nt" if int(OPT.get("tnt", 0)) else ""

D = 4
vL = 1
vWC = 2
vXr = 10
vK = 14
vV = 15
vRAW = 16
vFRAG = 144
vVRAW = 176
vOw = 240
vSt = 244
vT = 245

aACC = 0
aXF = 128
aKF = 160
aS = 224

sBR, sHG, sRB, sW = 4, 5, 6, 7
SRD_X, SRD_K, SRD_V, SRD_WQ, SRD_WO, SRD_WS, SRD_WC = 40, 44, 48, 52, 56, 60, 64
sWCo, sWCinc = 68, 69
sKV = 70
sSelLo, sSelHi = 74, 75
sSt = 76
sScale, sLog2e, sMask = 77, 78, 79
sXo = 8
sH = 9
sIt = 10
sWOo = 11
sR8 = 12
LDS_O = 65536


def srd(n):
    return "s[%d:%d]" % (n, n + 3)


def acc(rb, c):
    return aACC + (rb * 8 + c) * 4


def gen_main():
    e = Emit()
    nst = [0]

    def stamp():
        if not STAMP:
            return
        e.salu("s_memtime s[%d:%d]" % (80 + 2 * nst[0], 81 + 2 * nst[0]))
        nst[0] += 1

    e.label("main_kernel")
    e.salu("s_cmp_ge_u32 s2, 256")
    e.salu("s_cbranch_scc1 main_done")
    stamp()
    e.salu("s_load_dwordx16 s[16:31], s[0:1], 0")
    e.salu("s_load_dwordx4 s[32:35], s[0:1], 64")
    e.salu("s_load_dwordx2 s[36:37], s[0:1], 96")
    if STAMP or FUSE:
        e.salu("s_load_dwordx2 s[38:39], s[0:1], 88")
    if FUSE:
        e.salu("s_load_dwordx2 s[98:99], s[0:1], 80")
    e.ins("v_lshrrev_b32 v2, 6, v0", "valu", V(0), V(2))
    e.ins("v_and_b32 v%d, 63, v0" % vL, "valu", V(0), V(vL))
    e.ins("v_readfirstlane_b32 s%d, v2" % sW, "rfl", V(2), [("s", sW)])
    e.salu("s_and_b32 s3, s2, 7")
    e.salu("s_lshr_b32 s13, s2, 3")
    e.salu("s_lshr_b32 s%d, s3, 2" % sBR)
    e.salu("s_and_b32 s%d, s3, 3" % sHG)
    e.salu("s_lshl_b32 s%d, s%d, 1" % (sHG, sHG))
    e.salu("s_and_b32 s14, s13, 1")
    e.salu("s_or_b32 s%d, s%d, s14" % (sHG, sHG))
    e.salu("s_lshr_b32 s%d, s13, 1" % sRB)
    e.salu("s_lshr_b32 s12, s2, %d" % int(OPT.get("g4bit", 4)))
    e.salu("s_and_b32 s12, s12, 3")
    e.salu("s_mov_b32 s%d, 0x05040100" % sSelLo)
    e.salu("s_mov_b32 s%d, 0x07060302" % sSelHi)
    e.salu("s_mov_b32 s%d, 0x%08x" % (sScale, f32bits(128 ** -0.5)))
    e.salu("s_mov_b32 s%d, 0x%08x" % (sLog2e, f32bits(1.4426950408889634)))
    e.salu("s_mov_b32 s%d, 0xffff0000" % sMask)
    ti, tg, tt, t3 = vT, vT + 1, vT + 2, vT + 3
    e.ins("v_and_b32 v%d, 15, v%d" % (ti, vL), "valu", V(vL), V(ti))
    e.ins("v_lshrrev_b32 v%d, 4, v%d" % (tg, vL), "valu", V(vL), V(tg))
    e.ins("v_lshlrev_b32 v%d, 4, v%d" % (tt, ti), "valu", V(ti), V(tt))
    e.ins("v_lshl_add_u32 v%d, v%d, 16, v%d" % (vWC, tg, tt), "valu", V(tg) + V(tt), V(vWC))
    for j in range(1, 8):
        e.ins("v_add_u32 v%d, 0x%x, v%d" % (vWC + j, j * 8192, vWC), "valu", V(vWC), V(vWC + j))
    e.ins("v_lshlrev_b32 v%d, 8, v%d" % (vK, ti), "valu", V(ti), V(vK))
    e.ins("v_lshl_add_u32 v%d, v%d, 6, v%d" % (vK, tg, vK), "valu", V(tg) + V(vK), V(vK))
    e.ins("v_lshl_add_u32 v%d, v%d, 10, v%d" % (vV, tg, tt), "valu", V(tg) + V(tt), V(vV))
    e.ins("v_lshlrev_b32 v%d, 4, v%d" % (vSt, vL), "valu", V(vL), V(vSt))
    for slo in range(4):
        e.ins("v_add_u32 v%d, %d, v%d" % (t3, 4 * slo, tg), "valu", V(tg), V(t3))
        e.ins("v_xor_b32 v%d, v%d, v%d" % (t3, t3, ti), "valu", V(t3) + V(ti), V(t3))
        e.ins("v_lshlrev_b32 v%d, 4, v%d" % (t3, t3), "valu", V(t3), V(t3))
        e.ins("v_lshl_add_u32 v%d, v%d, 10, v%d" % (vXr + slo, ti, t3), "valu", V(ti) + V(t3), V(vXr + slo))
    tq, to = vT + 4, vT + 5
    e.ins("v_lshrrev_b32 v%d, 3, v%d" % (tq, vL), "valu", V(vL), V(tq))
    e.ins("v_and_b32 v%d, 7, v%d" % (t3, vL), "valu", V(vL), V(t3))
    e.ins("v_lshlrev_b32 v%d, 7, v%d" % (t3, t3), "valu", V(t3), V(t3))
    e.ins("v_lshl_add_u32 v%d, v%d, 13, v%d" % (tq, tq, t3), "valu", V(tq) + V(t3), V(tq))
    e.ins("v_lshlrev_b32 v%d, 7, v%d" % (to, vL), "valu", V(vL), V(to))
    e.salu("s_waitcnt lgkmcnt(0)")
    e.salu("s_cmp_eq_u32 s%d, 0" % sBR)
    e.salu("s_cselect_b64 s[%d:%d], s[16:17], s[26:27]" % (SRD_X, SRD_X + 1))
    e.salu("s_cselect_b64 s[%d:%d], s[18:19], s[28:29]" % (SRD_K, SRD_K + 1))
    e.salu("s_cselect_b64 s[%d:%d], s[20:21], s[30:31]" % (SRD_V, SRD_V + 1))
    e.salu("s_cselect_b64 s[%d:%d], s[22:23], s[32:33]" % (SRD_WQ, SRD_WQ + 1))
    e.salu("s_cselect_b64 s[%d:%d], s[24:25], s[34:35]" % (SRD_WO, SRD_WO + 1))
    e.salu("s_cselect_b64 s[%d:%d], s[22:23], s[32:33]" % (SRD_WC, SRD_WC + 1))
    e.salu("s_mov_b64 s[%d:%d], s[36:37]" % (SRD_WS, SRD_WS + 1))
    for base, size in ((SRD_X, 1 << 20), (SRD_K, 8 << 20), (SRD_V, 8 << 20), (SRD_WQ, 4 << 20), (SRD_WO, 4 << 20), (SRD_WS, 32 << 20), (SRD_WC, 4 << 20)):
        e.salu("s_mov_b32 s%d, 0x%x" % (base + 2, size))
        e.salu("s_mov_b32 s%d, 0x00020000" % (base + 3))
    e.salu("s_lshl_b32 s%d, s%d, 2" % (sH, sHG))
    e.salu("s_add_u32 s%d, s%d, s%d" % (sH, sH, sW))
    e.salu("s_lshl_b32 s%d, s%d, 8" % (sWCo, sH))
    e.salu("s_mov_b32 s%d, 0x40000" % sWCinc)
    e.salu("s_lshl_b32 s%d, s%d, 19" % (sWOo, sHG))
    e.salu("s_lshl_b32 s3, s%d, 8" % sW)
    e.salu("s_add_u32 s%d, s%d, s3" % (sWOo, sWOo))
    e.salu("s_lshl_b32 s3, s%d, 6" % sRB)
    e.salu("s_add_u32 s3, s3, s%d" % sH)
    e.salu("s_lshl_b32 s%d, s3, 13" % sKV)
    e.salu("s_add_u32 s%d, s%d, 0x1000" % (sKV + 1, sKV))
    e.salu("s_add_u32 s%d, s%d, 0x40000" % (sKV + 2, sKV))
    e.salu("s_add_u32 s%d, s%d, 0x41000" % (sKV + 3, sKV))
    e.salu("s_lshl_b32 s%d, s%d, 16" % (sXo, sRB))
    e.salu("s_lshl_b32 s3, s%d, 14" % sW)
    e.salu("s_add_u32 s%d, s%d, s3" % (sXo, sXo))
    e.salu("s_lshl_b32 s3, s%d, 4" % sBR)
    e.salu("s_add_u32 s3, s3, s%d" % sRB)
    e.salu("s_lshl_b32 s3, s3, 3")
    e.salu("s_add_u32 s3, s3, s%d" % sHG)
    e.salu("s_lshl_b32 s3, s3, 2")
    e.salu("s_add_u32 s3, s3, s%d" % sW)
    e.salu("s_lshl_b32 s%d, s3, 15" % sSt)
    e.salu("s_lshl_b32 s13, s%d, 2" % sRB)
    e.salu("s_add_u32 s13, s13, s%d" % sW)
    e.salu("s_lshl_b32 s14, s13, 16")
    e.salu("s_lshl_b32 s3, s%d, 10" % sHG)
    e.salu("s_add_u32 s14, s14, s3")
    if WOQ:
        e.salu("s_mov_b64 s[%d:%d], s[%d:%d]" % (SRD_WC, SRD_WC + 1, SRD_WO, SRD_WO + 1))
        e.salu("s_mov_b32 s%d, s%d" % (sWCo, sWOo))
        e.salu("s_mov_b32 s%d, 0x8000" % sWCinc)
        e.ins("v_lshl_add_u32 v%d, v%d, 13, v%d" % (vWC, tg, tt), "valu", V(tg) + V(tt), V(vWC))
        for j in range(1, 8):
            e.ins("v_add_u32 v%d, 0x%x, v%d" % (vWC + j, j * 1024, vWC), "valu", V(vWC), V(vWC + j))
    if ETOUCH:
        e.ins("buffer_load_dword v%d, v%d, %s, s14 offen%s" % (vT + 6, tq, srd(SRD_WQ), TNT), "vload", V(tq), V(vT + 6), tag="touch")
    for r in range(16):
        if r and r % 4 == 0:
            e.salu("s_add_u32 s%d, s%d, 0x1000" % (sXo, sXo))
        d = vVRAW + 4 * r
        e.ins("buffer_load_dwordx4 %s, v%d, %s, s%d offen offset:%d%s" % (vr(d, 4), vSt, srd(SRD_X), sXo, (r % 4) * 1024, XNT),
              "vload", V(vSt), V(d, 4), tag="x")

    def wloads(t):
        out = []
        buf = vRAW + (t % D) * 32
        for j in range(8):
            d = buf + 4 * j
            def f(d=d, j=j):
                e.ins("buffer_load_dwordx4 %s, v%d, %s, s%d offen%s" % (vr(d, 4), vWC + j, srd(SRD_WC), sWCo, WNT),
                      "vload", V(vWC + j), V(d, 4), tag=("w", t))
            out.append(f)
        out.append(lambda: e.salu("s_add_u32 s%d, s%d, s%d" % (sWCo, sWCo, sWCinc)))
        return out

    for t in range(PRE):
        for f in wloads(t):
            f()

    nt = " nt" if KVNT else ""

    def kv_burst(idx):
        if NOKV:
            return
        bb, isv = idx // 2, idx % 2
        for n in range(8):
            if not isv:
                kt, sp = n // 4, n % 4
                d = aKF + bb * 32 + (kt * 4 + sp) * 4
                e.ins("buffer_load_dwordx4 %s, v%d, %s, s%d offen offset:%d%s" % (ar(d, 4), vK, srd(SRD_K), sKV + bb * 2 + kt, sp * 16, nt),
                      "vload", V(vK), A(d, 4), tag=("kv", bb, 0))
            else:
                d = vVRAW + bb * 32 + n * 4
                e.ins("buffer_load_dwordx4 %s, v%d, %s, s%d offen offset:%d%s" % (vr(d, 4), vV, srd(SRD_V), sKV + bb * 2 + n // 4, (n % 4) * 256, nt),
                      "vload", V(vV), V(d, 4), tag=("kv", bb, 1))

    for k in range(128):
        e.ins("v_accvgpr_write_b32 a%d, 0" % (aACC + k), "valu", (), A(aACC + k))
    tb = vT + 8
    e.ins("v_mov_b32 v%d, s%d" % (tb, sW), "valu", [("s", sW)], V(tb))
    e.ins("v_lshlrev_b32 v%d, 14, v%d" % (tb, tb), "valu", V(tb), V(tb))
    e.wait_vm("x")
    stamp()
    for r in range(16):
        ta = vT + 9 + (r % 2)
        e.ins("v_xor_b32 v%d, %d, v%d" % (ta, r, vL), "valu", V(vL), V(ta))
        e.ins("v_lshl_add_u32 v%d, v%d, 4, v%d" % (ta, ta, tb), "valu", V(ta) + V(tb), V(ta))
        d = vVRAW + 4 * r
        e.ins("ds_write_b128 v%d, %s offset:%d" % (ta, vr(d, 4), r * 1024), "dswrite", V(ta) + V(d, 4), (), tag="xw")
    if PBAR:
        e.wait_lgkm()
        e.salu("s_barrier")
    for t in range(PRE, D):
        for f in wloads(t):
            f()
    if TOUCH and not ETOUCH:
        e.ins("buffer_load_dword v%d, v%d, %s, s14 offen%s" % (vT + 6, tq, srd(SRD_WQ), TNT), "vload", V(tq), V(vT + 6), tag="touch")
    e.salu("s_lshl_b32 s14, s%d, 19" % sHG)
    e.salu("s_lshl_b32 s3, s13, 13")
    e.salu("s_add_u32 s14, s14, s3")
    if not PBAR:
        e.wait_lgkm()
        e.salu("s_barrier")
    if STAG:
        e.salu("s_bitcmp1_b32 s2, %d" % STAGBIT)
        e.salu("s_cbranch_scc1 skip_early_kv")
        for i in range(4):
            kv_burst(i)
        e.label("skip_early_kv")
    elif not LATE:
        kv_burst(0)
        if KVALL:
            kv_burst(1)
            kv_burst(2)
            kv_burst(3)
    stamp()

    def xf_read(u, rb):
        d = aXF + (u % 2) * 16 + rb * 4
        off = rb * 16384 + (256 if u == 4 else 0)
        e.ins("ds_read_b128 %s, v%d offset:%d" % (ar(d, 4), vXr + (u % 4), off), "dsread", V(vXr + (u % 4)), A(d, 4), tag=("xf", u % 4))

    def perm(t, c, p):
        buf = vRAW + (t % D) * 32
        s0 = buf + 4 * (2 * p + 1) + (c >> 1)
        s1 = buf + 4 * (2 * p) + (c >> 1)
        dd = vFRAG + c * 4 + p
        sel = sSelHi if (c & 1) else sSelLo
        e.ins("v_perm_b32 v%d, v%d, v%d, s%d" % (dd, s0, s1, sel), "valu", V(s0) + V(s1), V(dd))

    def phase_entry():
        for rb in range(4):
            xf_read(0, rb)
        e.wait_vm(("w", 0))
        for c in range(8):
            for p in range(4):
                perm(0, c, p)

    def loop_body():
        for u in range(4):
            e.comment("step %d" % u)
            e.wait_lgkm(("xf", u))
            wl = wloads(u + D)
            m = 0
            for c in range(8):
                for rb in range(4):
                    ac = acc(rb, c)
                    xf = aXF + (u % 2) * 16 + rb * 4
                    e.ins("v_mfma_f32_16x16x32_bf16 %s, %s, %s, %s" % (ar(ac, 4), vr(vFRAG + c * 4, 4), ar(xf, 4), ar(ac, 4)), "mfma",
                          V(vFRAG + c * 4, 4) + A(xf, 4) + A(ac, 4), A(ac, 4), creads=A(ac, 4))
                    if c == 0:
                        wl[2 * rb]()
                        wl[2 * rb + 1]()
                        if rb == 3:
                            wl[8]()
                            e.wait_vm(("w", u + 1))
                    if c >= 1:
                        perm(u + 1, c - 1, rb)
                    if c == 2:
                        xf_read(u + 1, rb)
                    m += 1
            for p in range(4):
                perm(u + 1, 7, p)
        for slo in range(4):
            e.ins("v_add_u32 v%d, 0x100, v%d" % (vXr + slo, vXr + slo), "valu", V(vXr + slo), V(vXr + slo))

    e.salu("s_mov_b32 s%d, 0" % sIt)
    phase_entry()
    e.label("gemm_loop")
    e.vm = [("w", 1)] * 8 + [("w", 2)] * 8 + [("w", 3)] * 8
    e.lgkm = [("xf", 0)] * 4
    e.last_w = {}
    e.nop(2)
    loop_body()
    e.salu("s_add_u32 s%d, s%d, 1" % (sIt, sIt))
    e.salu("s_cmp_eq_u32 s%d, 4" % sIt)
    e.salu("s_cbranch_scc1 attention")
    e.salu("s_cmp_eq_u32 s%d, 8" % sIt)
    e.salu("s_cbranch_scc1 epilogue")
    e.salu("s_cmp_eq_u32 s%d, 7" % sIt)
    e.salu("s_cbranch_scc1 it7")
    e.salu("s_cmp_gt_u32 s%d, 4" % sIt)
    e.salu("s_cbranch_scc1 gemm_loop")
    e.salu("s_cmp_eq_u32 s%d, 2" % sIt)
    e.salu("s_cbranch_scc1 it2")
    e.salu("s_cmp_eq_u32 s%d, 3" % sIt)
    e.salu("s_cbranch_scc1 it3")
    e.label("it1")
    stamp()
    if G4:
        e.salu("s_cmp_lg_u32 s12, 1")
        e.salu("s_cbranch_scc1 g4skip1")
        for i in range(4):
            kv_burst(i)
        e.label("g4skip1")
    if not KVALL and not STAG and not LATE:
        kv_burst(1)
    if TOUCH:
        e.ins("buffer_load_dword v%d, v%d, %s, s14 offen%s" % (vT + 6, to, srd(SRD_WO), TNT), "vload", V(to), V(vT + 6), tag="touch")
    e.salu("s_branch gemm_loop")
    e.label("it2")
    stamp()
    if G4:
        e.salu("s_cmp_lg_u32 s12, 2")
        e.salu("s_cbranch_scc1 g4skip2")
        for i in range(4):
            kv_burst(i)
        e.label("g4skip2")
    if not KVALL and not STAG and not LATE:
        kv_burst(2)
    e.salu("s_branch gemm_loop")
    e.label("it3")
    stamp()
    if G4:
        e.salu("s_cmp_lg_u32 s12, 3")
        e.salu("s_cbranch_scc1 g4skip3")
        for i in range(4):
            kv_burst(i)
        e.label("g4skip3")
    if not KVALL and not STAG and not LATE:
        kv_burst(3)
    if LATE == 2:
        for i in range(4):
            kv_burst(i)
    e.salu("s_mov_b64 s[%d:%d], s[%d:%d]" % (SRD_WC, SRD_WC + 1, SRD_WO, SRD_WO + 1))
    e.salu("s_mov_b32 s%d, s%d" % (sWCo, sWOo))
    e.salu("s_mov_b32 s%d, 0x8000" % sWCinc)
    e.ins("v_and_b32 v%d, 15, v%d" % (ti, vL), "valu", V(vL), V(ti))
    e.ins("v_lshrrev_b32 v%d, 4, v%d" % (tg, vL), "valu", V(vL), V(tg))
    e.ins("v_lshlrev_b32 v%d, 4, v%d" % (tt, ti), "valu", V(ti), V(tt))
    e.ins("v_lshl_add_u32 v%d, v%d, 13, v%d" % (vWC, tg, tt), "valu", V(tg) + V(tt), V(vWC))
    for j in range(1, 8):
        e.ins("v_add_u32 v%d, 0x%x, v%d" % (vWC + j, j * 1024, vWC), "valu", V(vWC), V(vWC + j))
    e.salu("s_branch gemm_loop")
    e.label("it7")
    e.salu("s_mov_b32 s%d, 0" % (SRD_WC + 2))
    e.salu("s_branch gemm_loop")

    e.label("attention")
    stamp()
    e.last_w = {}
    e.nop(10)
    e.vm = [("w", 1)] * 8 + [("w", 2)] * 8 + [("w", 3)] * 8
    e.lgkm = [("xf", 0)] * 4
    e.wait_lgkm()
    if KLDS:
        e.salu("s_barrier")
        kb0 = vT + 4
        e.ins("v_and_b32 v%d, 15, v%d" % (ti, vL), "valu", V(vL), V(ti))
        e.ins("v_lshrrev_b32 v%d, 4, v%d" % (tg, vL), "valu", V(vL), V(tg))
        e.ins("v_xor_b32 v%d, v%d, v%d" % (t3, ti, tg), "valu", V(ti) + V(tg), V(t3))
        e.ins("v_lshlrev_b32 v%d, 4, v%d" % (t3, t3), "valu", V(t3), V(t3))
        e.ins("v_lshl_add_u32 v%d, v%d, 8, v%d" % (kb0, tg, t3), "valu", V(tg) + V(t3), V(kb0))
        for q in range(1, 4):
            e.ins("v_xor_b32 v%d, %d, v%d" % (kb0 + q, q * 64, kb0), "valu", V(kb0), V(kb0 + q))
        e.salu("s_lshl_b32 s13, s%d, 14" % sW)
        for bb in range(2):
            for n in range(8):
                e.salu("s_add_u32 s14, s13, %d" % (bb * 8192 + n * 1024))
                e.salu("s_add_u32 s3, s%d, %d" % (sKV + bb * 2, n * 1024))
                e.salu("s_mov_b32 m0, s14")
                e.salu("s_nop 0")
                e.ins("buffer_load_dwordx4 v%d, %s, s3 offen%s lds" % (kb0 + n % 4, srd(SRD_K), nt), "vload", V(kb0 + n % 4), (), tag=("kv", bb, 0))
            kv_burst(2 * bb + 1)
    elif LATE == 1:
        if G4:
            e.salu("s_cmp_lg_u32 s12, 0")
            e.salu("s_cbranch_scc1 g4skip0")
        for i in range(4):
            kv_burst(i)
        if G4:
            e.label("g4skip0")
    if STAG:
        e.salu("s_bitcmp1_b32 s2, %d" % STAGBIT)
        e.salu("s_cbranch_scc0 skip_late_kv")
        for i in range(4):
            kv_burst(i)
        e.salu("s_waitcnt vmcnt(0)")
        e.label("skip_late_kv")
        e.vm = []
    e.ins("v_and_b32 v%d, 15, v%d" % (ti, vL), "valu", V(vL), V(ti))
    e.ins("v_lshrrev_b32 v%d, 4, v%d" % (tg, vL), "valu", V(vL), V(tg))
    e.salu("s_lshl_b32 s3, s%d, 8" % sW)
    e.salu("s_add_u32 s3, s3, 0x%x" % LDS_O)
    for r in range(4):
        e.ins("v_lshl_add_u32 v%d, v%d, 2, %d" % (t3, tg, r), "valu", V(tg), V(t3))
        e.ins("v_xor_b32 v%d, v%d, v%d" % (t3, t3, ti), "valu", V(t3) + V(ti), V(t3))
        e.ins("v_lshlrev_b32 v%d, 4, v%d" % (t3, t3), "valu", V(t3), V(t3))
        e.ins("v_lshl_add_u32 v%d, v%d, 10, v%d" % (t3, ti, t3), "valu", V(ti) + V(t3), V(t3))
        e.ins("v_add_u32 v%d, s3, v%d" % (vOw + r, t3), "valu", V(t3), V(vOw + r))
    for slo in range(4):
        e.ins("v_add_u32 v%d, 0x%x, v%d" % (vXr + slo, LDS_O - 1024, vXr + slo), "valu", V(vXr + slo), V(vXr + slo))
    QF = vFRAG
    for bb in range(2):
        vb = vVRAW + bb * 32
        for qt in range(2):
            rb = 2 * bb + qt
            for sp in range(4):
                for p in range(4):
                    t0 = vT + (p % 2) * 2
                    t1 = t0 + 1
                    a0 = acc(rb, 2 * p) + sp
                    a1 = acc(rb, 2 * p + 1) + sp
                    e.ins("v_accvgpr_read_b32 v%d, a%d" % (t0, a0), "valu", A(a0), V(t0))
                    e.ins("v_accvgpr_read_b32 v%d, a%d" % (t1, a1), "valu", A(a1), V(t1))
                    dd = QF + (qt * 4 + sp) * 4 + p
                    e.ins("v_cvt_pk_bf16_f32 v%d, v%d, v%d" % (dd, t0, t1), "valu", V(t0) + V(t1), V(dd))
        e.wait_vm(("kv", bb, 0))
        if KLDS:
            e.salu("s_lshl_b32 s3, s%d, 14" % sW)
            ki, kg = vT + 8, vT + 9
            e.ins("v_and_b32 v%d, 15, v%d" % (ki, vL), "valu", V(vL), V(ki))
            e.ins("v_lshrrev_b32 v%d, 4, v%d" % (kg, vL), "valu", V(vL), V(kg))
            for sp in range(4):
                ka = vT + 4 + (sp % 2)
                e.ins("v_lshl_add_u32 v%d, v%d, 2, %d" % (ka, kg, sp), "valu", V(kg), V(ka))
                e.ins("v_xor_b32 v%d, v%d, v%d" % (ka, ka, ki), "valu", V(ka) + V(ki), V(ka))
                e.ins("v_lshlrev_b32 v%d, 4, v%d" % (ka, ka), "valu", V(ka), V(ka))
                e.ins("v_lshl_add_u32 v%d, v%d, 8, v%d" % (ka, ki, ka), "valu", V(ki) + V(ka), V(ka))
                e.ins("v_add_u32 v%d, s3, v%d" % (ka, ka), "valu", V(ka), V(ka))
                for kt in range(2):
                    d = aKF + bb * 32 + (kt * 4 + sp) * 4
                    e.ins("ds_read_b128 %s, v%d offset:%d" % (ar(d, 4), ka, bb * 8192 + kt * 4096), "dsread", V(ka), A(d, 4), tag="kf")
            e.wait_lgkm()
        for sp in range(4):
            for kt in range(2):
                for qt in range(2):
                    sd = aS + (kt * 2 + qt) * 4
                    kf = aKF + bb * 32 + (kt * 4 + sp) * 4
                    qf = QF + (qt * 4 + sp) * 4
                    if sp == 0:
                        e.ins("v_mfma_f32_16x16x32_bf16 %s, %s, %s, 0" % (ar(sd, 4), ar(kf, 4), vr(qf, 4)), "mfma",
                              A(kf, 4) + V(qf, 4), A(sd, 4))
                    else:
                        e.ins("v_mfma_f32_16x16x32_bf16 %s, %s, %s, %s" % (ar(sd, 4), ar(kf, 4), vr(qf, 4), ar(sd, 4)), "mfma",
                              A(kf, 4) + V(qf, 4) + A(sd, 4), A(sd, 4), creads=A(sd, 4))
        e.wait_vm(("kv", bb, 1))
        for c in range(8):
            for p in range(4):
                s0 = vb + 4 * (2 * p + 1) + (c >> 1)
                s1 = vb + 4 * (2 * p) + (c >> 1)
                dd = QF + c * 4 + p
                sel = sSelHi if (c & 1) else sSelLo
                e.ins("v_perm_b32 v%d, v%d, v%d, s%d" % (dd, s0, s1, sel), "valu", V(s0) + V(s1), V(dd))
        SV = vb
        PF = vb + 16
        TT = vb + 24
        for qt in range(2):
            for kt in range(2):
                for r in range(4):
                    a_ = aS + (kt * 2 + qt) * 4 + r
                    d_ = SV + qt * 8 + kt * 4 + r
                    e.ins("v_accvgpr_read_b32 v%d, a%d" % (d_, a_), "valu", A(a_), V(d_))
        for qt in range(2):
            vals = [SV + qt * 8 + k for k in range(8)]
            for rnd in range(2):
                for k in range(0, 8, 2):
                    x0, x1 = vals[k], vals[k + 1]
                    tp = TT
                    e.ins("v_cvt_pk_bf16_f32 v%d, v%d, v%d" % (tp, x0, x1), "valu", V(x0) + V(x1), V(tp))
                    e.ins("v_lshlrev_b32 v%d, 16, v%d" % (x0, tp), "valu", V(tp), V(x0))
                    e.ins("v_and_b32 v%d, s%d, v%d" % (x1, sMask, tp), "valu", V(tp), V(x1))
                    if rnd == 0:
                        e.ins("v_mul_f32 v%d, s%d, v%d" % (x0, sScale, x0), "valu", V(x0), V(x0))
                        e.ins("v_mul_f32 v%d, s%d, v%d" % (x1, sScale, x1), "valu", V(x1), V(x1))
            mx, m2 = TT + 1, TT + 2
            e.ins("v_max3_f32 v%d, v%d, v%d, v%d" % (mx, vals[0], vals[1], vals[2]), "valu", V(vals[0]) + V(vals[1]) + V(vals[2]), V(mx))
            e.ins("v_max3_f32 v%d, v%d, v%d, v%d" % (mx, mx, vals[3], vals[4]), "valu", V(mx) + V(vals[3]) + V(vals[4]), V(mx))
            e.ins("v_max3_f32 v%d, v%d, v%d, v%d" % (mx, mx, vals[5], vals[6]), "valu", V(mx) + V(vals[5]) + V(vals[6]), V(mx))
            e.ins("v_max_f32 v%d, v%d, v%d" % (mx, mx, vals[7]), "valu", V(mx) + V(vals[7]), V(mx))
            for sw in ("v_permlane16_swap_b32", "v_permlane32_swap_b32"):
                e.ins("v_mov_b32 v%d, v%d" % (m2, mx), "valu", V(mx), V(m2))
                e.ins("%s v%d, v%d" % (sw, mx, m2), "permlane", V(mx) + V(m2), V(mx) + V(m2))
                e.ins("v_max_f32 v%d, v%d, v%d" % (mx, mx, m2), "valu", V(mx) + V(m2), V(mx))
            for x in vals:
                e.ins("v_sub_f32 v%d, v%d, v%d" % (x, x, mx), "valu", V(x) + V(mx), V(x))
            for x in vals:
                e.ins("v_mul_f32 v%d, s%d, v%d" % (x, sLog2e, x), "valu", V(x), V(x))
            for x in vals:
                e.ins("v_exp_f32 v%d, v%d" % (x, x), "trans", V(x), V(x))
            sm, s2_ = TT + 3, TT + 4
            e.ins("v_add_f32 v%d, v%d, v%d" % (sm, vals[0], vals[1]), "valu", V(vals[0]) + V(vals[1]), V(sm))
            e.ins("v_add_f32 v%d, v%d, v%d" % (s2_, vals[2], vals[3]), "valu", V(vals[2]) + V(vals[3]), V(s2_))
            e.ins("v_add_f32 v%d, v%d, v%d" % (sm, sm, s2_), "valu", V(sm) + V(s2_), V(sm))
            e.ins("v_add_f32 v%d, v%d, v%d" % (s2_, vals[4], vals[5]), "valu", V(vals[4]) + V(vals[5]), V(s2_))
            e.ins("v_add_f32 v%d, v%d, v%d" % (sm, sm, s2_), "valu", V(sm) + V(s2_), V(sm))
            e.ins("v_add_f32 v%d, v%d, v%d" % (s2_, vals[6], vals[7]), "valu", V(vals[6]) + V(vals[7]), V(s2_))
            e.ins("v_add_f32 v%d, v%d, v%d" % (sm, sm, s2_), "valu", V(sm) + V(s2_), V(sm))
            for sw in ("v_permlane16_swap_b32", "v_permlane32_swap_b32"):
                e.ins("v_mov_b32 v%d, v%d" % (s2_, sm), "valu", V(sm), V(s2_))
                e.ins("%s v%d, v%d" % (sw, sm, s2_), "permlane", V(sm) + V(s2_), V(sm) + V(s2_))
                e.ins("v_add_f32 v%d, v%d, v%d" % (sm, sm, s2_), "valu", V(sm) + V(s2_), V(sm))
            e.ins("v_rcp_f32 v%d, v%d" % (sm, sm), "trans", V(sm), V(sm))
            for x in vals:
                e.ins("v_mul_f32 v%d, v%d, v%d" % (x, x, sm), "valu", V(x) + V(sm), V(x))
            for p in range(4):
                dd = PF + qt * 4 + p
                e.ins("v_cvt_pk_bf16_f32 v%d, v%d, v%d" % (dd, vals[2 * p], vals[2 * p + 1]), "valu", V(vals[2 * p]) + V(vals[2 * p + 1]), V(dd))
        for qt in range(2):
            for c in range(8):
                ac = acc(2 * bb + qt, c)
                e.ins("v_mfma_f32_16x16x32_bf16 %s, %s, %s, 0" % (ar(ac, 4), vr(QF + c * 4, 4), vr(PF + qt * 4, 4)), "mfma",
                      V(QF + c * 4, 4) + V(PF + qt * 4, 4), A(ac, 4))
        n = 0
        for qt in range(2):
            for r in range(4):
                dq = SV + (n % 4) * 4
                n += 1
                for p in range(4):
                    t0 = vT + (p % 2) * 2
                    t1 = t0 + 1
                    a0 = acc(2 * bb + qt, 2 * p) + r
                    a1 = acc(2 * bb + qt, 2 * p + 1) + r
                    e.ins("v_accvgpr_read_b32 v%d, a%d" % (t0, a0), "valu", A(a0), V(t0))
                    e.ins("v_accvgpr_read_b32 v%d, a%d" % (t1, a1), "valu", A(a1), V(t1))
                    e.ins("v_cvt_pk_bf16_f32 v%d, v%d, v%d" % (dq + p, t0, t1), "valu", V(t0) + V(t1), V(dq + p))
                e.ins("ds_write_b128 v%d, %s offset:%d" % (vOw + r, vr(dq, 4), (32 * bb + 16 * qt) * 1024), "dswrite",
                      V(vOw + r) + V(dq, 4), (), tag="ow")
    for k in range(128):
        e.ins("v_accvgpr_write_b32 a%d, 0" % (aACC + k), "valu", (), A(aACC + k))
    e.wait_lgkm()
    stamp()
    e.salu("s_barrier")
    stamp()
    for rb in range(4):
        xf_read(0, rb)
    for c in range(8):
        for p in range(4):
            perm(0, c, p)
    e.salu("s_branch gemm_loop")

    e.label("epilogue")
    stamp()
    e.last_w = {}
    e.nop(10)
    n = 0
    for rb in range(4):
        for c in range(8):
            if n and n % 4 == 0:
                e.salu("s_add_u32 s%d, s%d, 0x1000" % (sSt, sSt))
            ac = acc(rb, c)
            e.ins("buffer_store_dwordx4 %s, v%d, %s, s%d offen offset:%d%s" % (ar(ac, 4), vSt, srd(SRD_WS), sSt, (n % 4) * 1024, STF),
                  "vstore", A(ac, 4) + V(vSt), (), tag="st")
            n += 1
    if FUSE:
        SRD_D, SRD_O = SRD_X, SRD_K
        e.salu("s_waitcnt vmcnt(0)")
        e.salu("s_barrier")
        e.salu("s_mov_b32 s%d, s38" % SRD_D)
        e.salu("s_mov_b32 s%d, s39" % (SRD_D + 1))
        e.salu("s_mov_b32 s%d, 256" % (SRD_D + 2))
        e.salu("s_mov_b32 s%d, s98" % SRD_O)
        e.salu("s_mov_b32 s%d, s99" % (SRD_O + 1))
        e.salu("s_mov_b32 s%d, 0x200000" % (SRD_O + 2))
        e.salu("s_lshl_b32 s13, s%d, 4" % sBR)
        e.salu("s_add_u32 s13, s13, s%d" % sRB)
        e.salu("s_lshl_b32 s14, 1, s%d" % sHG)
        e.salu("s_cmp_lg_u32 s%d, 0" % sW)
        e.salu("s_cbranch_scc1 f_wait")
        e.salu("s_mov_b64 exec, 1")
        e.raw("v_mov_b32 v3, s13")
        e.raw("v_lshlrev_b32 v3, 2, v3")
        e.raw("v_mov_b32 v2, 1")
        e.raw("buffer_atomic_add v2, v3, s[%d:%d], 0 offen sc0 sc1" % (SRD_D, SRD_D + 3))
        e.salu("s_waitcnt vmcnt(0)")
        e.raw("v_readfirstlane_b32 s15, v2")
        e.salu("s_nop 3")
        e.salu("s_cmp_eq_u32 s15, 7")
        e.salu("s_cbranch_scc1 f_last")
        e.salu("s_mov_b32 s3, 0")
        e.label("f_spin")
        e.salu("s_sleep 4")
        e.raw("v_mov_b32 v2, 0")
        e.raw("buffer_atomic_add v2, v3, s[%d:%d], 0 offen sc0 sc1" % (SRD_D, SRD_D + 3))
        e.salu("s_waitcnt vmcnt(0)")
        e.raw("v_readfirstlane_b32 s15, v2")
        e.salu("s_nop 3")
        e.salu("s_cmp_eq_u32 s15, 8")
        e.salu("s_cbranch_scc1 f_decided")
        e.salu("s_add_u32 s3, s3, 1")
        e.salu("s_cmp_lt_u32 s3, %d" % SPIN)
        e.salu("s_cbranch_scc1 f_spin")
        e.raw("v_mov_b32 v2, s14")
        e.raw("buffer_atomic_or v2, v3, s[%d:%d], 0 offen offset:128 sc0 sc1" % (SRD_D, SRD_D + 3))
        e.salu("s_waitcnt vmcnt(0)")
        e.raw("v_mov_b32 v2, 0")
        e.raw("buffer_atomic_add v2, v3, s[%d:%d], 0 offen sc0 sc1" % (SRD_D, SRD_D + 3))
        e.salu("s_waitcnt vmcnt(0)")
        e.raw("v_readfirstlane_b32 s15, v2")
        e.salu("s_nop 3")
        e.salu("s_cmp_eq_u32 s15, 8")
        e.salu("s_cbranch_scc1 f_decided")
        e.salu("s_mov_b32 s14, 0")
        e.salu("s_branch f_decided")
        e.label("f_last")
        e.raw("v_mov_b32 v2, 0")
        e.raw("buffer_atomic_or v2, v3, s[%d:%d], 0 offen offset:128 sc0 sc1" % (SRD_D, SRD_D + 3))
        e.salu("s_waitcnt vmcnt(0)")
        e.raw("v_readfirstlane_b32 s15, v2")
        e.salu("s_nop 3")
        e.salu("s_or_b32 s14, s14, s15")
        e.label("f_decided")
        e.raw("v_mov_b32 v2, s14")
        e.raw("v_mov_b32 v3, 0")
        e.raw("ds_write_b32 v3, v2")
        e.salu("s_waitcnt lgkmcnt(0)")
        e.salu("s_mov_b64 exec, -1")
        e.label("f_wait")
        e.salu("s_barrier")
        e.raw("v_mov_b32 v3, 0")
        e.raw("ds_read_b32 v2, v3")
        e.salu("s_waitcnt lgkmcnt(0)")
        e.raw("v_readfirstlane_b32 s14, v2")
        e.raw("v_and_b32 v4, 15, v%d" % vL)
        e.raw("v_lshrrev_b32 v5, 4, v%d" % vL)
        e.raw("v_lshlrev_b32 v5, 6, v5")
        e.raw("v_lshl_add_u32 v4, v4, 11, v5")
        e.label("f_loop")
        e.salu("s_cmp_eq_u32 s14, 0")
        e.salu("s_cbranch_scc1 f_end")
        e.salu("s_ff1_i32_b32 s15, s14")
        e.salu("s_bitset0_b32 s14, s15")
        e.salu("s_lshr_b32 s20, s15, 1")
        e.salu("s_and_b32 s21, s15, 1")
        e.salu("s_lshl_b32 s21, s21, 1")
        e.salu("s_lshr_b32 s22, s%d, 1" % sW)
        e.salu("s_add_u32 s21, s21, s22")
        e.salu("s_and_b32 s22, s%d, 1" % sW)
        e.salu("s_lshl_b32 s25, s13, 5")
        e.salu("s_add_u32 s25, s25, s20")
        e.salu("s_lshl_b32 s25, s25, 15")
        e.salu("s_lshl_b32 s26, s21, 13")
        e.salu("s_add_u32 s25, s25, s26")
        e.salu("s_lshl_b32 s26, s22, 12")
        e.salu("s_add_u32 s25, s25, s26")
        e.salu("s_lshl_b32 s27, s%d, 17" % sRB)
        e.salu("s_lshl_b32 s26, s21, 15")
        e.salu("s_add_u32 s27, s27, s26")
        e.salu("s_lshl_b32 s26, s%d, 10" % sBR)
        e.salu("s_add_u32 s27, s27, s26")
        e.salu("s_lshl_b32 s26, s20, 8")
        e.salu("s_add_u32 s27, s27, s26")
        e.salu("s_lshl_b32 s26, s22, 3")
        e.salu("s_add_u32 s27, s27, s26")
        e.vm = []
        e.last_w = {}
        base = 16
        for hg in range(8):
            for cc in range(4):
                d = base + (hg * 4 + cc) * 4
                e.ins("buffer_load_dwordx4 %s, v%d, %s, s25 offen offset:%d sc1" % (vr(d, 4), vSt, srd(SRD_WS), cc * 1024), "vload", V(vSt), V(d, 4), tag=("p", hg))
            if hg < 7:
                e.salu("s_add_u32 s25, s25, 0x20000")
        for hg in range(1, 8):
            e.wait_vm(("p", hg))
            for cc in range(4):
                for r in range(0, 4, 2):
                    a_ = base + cc * 4 + r
                    b_ = base + (hg * 4 + cc) * 4 + r
                    e.ins("v_pk_add_f32 %s, %s, %s" % (vr(a_, 2), vr(a_, 2), vr(b_, 2)), "valu", V(a_, 2) + V(b_, 2), V(a_, 2))
        for r in range(4):
            d = 8 + (r % 2) * 2
            e.ins("v_cvt_pk_bf16_f32 v%d, v%d, v%d" % (d, base + r, base + 4 + r), "valu", V(base + r) + V(base + 4 + r), V(d))
            e.ins("v_cvt_pk_bf16_f32 v%d, v%d, v%d" % (d + 1, base + 8 + r, base + 12 + r), "valu", V(base + 8 + r) + V(base + 12 + r), V(d + 1))
            e.ins("buffer_store_dwordx2 %s, v4, s[%d:%d], s27 offen offset:%d" % (vr(d, 2), SRD_O, SRD_O + 3, r * 16), "vstore", V(d, 2) + V(4), (), tag="o")
        e.salu("s_waitcnt vmcnt(0)")
        e.salu("s_branch f_loop")
        e.label("f_end")
    if STAMP:
        e.salu("s_waitcnt vmcnt(0)")
        stamp()
        e.salu("s_waitcnt lgkmcnt(0)")
        e.salu("s_cmp_lg_u32 s2, %d" % int(OPT.get("dumpwg", 0)))
        e.salu("s_cbranch_scc1 main_done")
        e.salu("s_mov_b32 s%d, s38" % SRD_X)
        e.salu("s_mov_b32 s%d, s39" % (SRD_X + 1))
        e.salu("s_mov_b32 s%d, 256" % (SRD_X + 2))
        e.salu("s_lshl_b32 s3, s%d, 6" % sW)
        e.raw("v_mov_b32 v2, 0")
        for k in range(1, nst[0]):
            e.salu("s_sub_u32 s13, s%d, s80" % (80 + 2 * k))
            e.raw("v_mov_b32 v3, s13")
            e.raw("buffer_store_dword v3, v2, s[%d:%d], s3 offen offset:%d" % (SRD_X, SRD_X + 3, 4 * (k - 1)))
    e.label("main_done")
    e.salu("s_endpgm")
    return e.lines


HEADER = """; Fused two-branch attention block: Q-proj + attention + out-proj partials, then a reduce kernel.
; @launch kernel=main_kernel grid=(256,1,1) block=(256,1,1) lds=131072
; @launch kernel=reduce_kernel grid=(256,1,1) block=(256,1,1) lds=0
.amdgcn_target "amdgcn-amd-amdhsa--gfx950"
.text
"""


def main():
    hdr = HEADER
    kernels = [("main_kernel", gen_main()), ("reduce_kernel", gen_reduce())]
    if FUSE:
        hdr = hdr.replace("; @launch kernel=reduce_kernel grid=(256,1,1) block=(256,1,1) lds=0\n", "")
        kernels = kernels[:1]
    out = [hdr]
    for name, lines in kernels:
        out.append(".globl %s\n.p2align 8\n.type %s,@function\n" % (name, name))
        out.append("\n".join(lines) + "\n")
    out.append('.section .rodata,"a"\n')
    out.append(kd("main_kernel", 512, 102, 256))
    if not FUSE:
        out.append(kd("reduce_kernel", 144, 32, 144))
    text = "".join(out)
    path = sys.argv[1] if len(sys.argv) > 1 else "cdna_kernels/%s.s" % NAME
    open(path, "w").write(text)
    print("wrote", path, len(text), "bytes")


if __name__ == "__main__":
    main()
```

```python
import struct, sys
from gen import Emit, V, A, vr, ar, f32bits, NAME, gen_reduce, kd

STAMP = len(sys.argv) > 2 and sys.argv[2] == "stamp"
OPT = dict(a.split("=") for a in sys.argv[3:])
TOUCH = int(OPT.get("touch", 1))
KVNT = int(OPT.get("kvnt", 1))
PRE = int(OPT.get("pre", 2))
NOKV = int(OPT.get("nokv", 0))
KVALL = int(OPT.get("kvall", 0))
STAG = int(OPT.get("stag", 0))
LATE = int(OPT.get("late", 0))
G4 = int(OPT.get("g4", 0))
KLDS = int(OPT.get("klds", 0))
FUSE = int(OPT.get("fuse", 0))
NOW = int(OPT.get("now", 0))
BFP = int(OPT.get("bfp", 0))
DIAG = OPT.get("diag", "")
SPIN = int(OPT.get("spin", 4000))
PBAR = int(OPT.get("pbar", 0))
STAGBIT = int(OPT.get("stagbit", 4))
ETOUCH = int(OPT.get("etouch", 0))
WOQ = int(OPT.get("woq", 0))
WNT = " nt" if int(OPT.get("wnt", 0)) else ""
XNT = " nt" if int(OPT.get("xnt", 0)) else ""
STF = OPT.get("stf", "").replace("+", " ")
STF = (" " + STF) if STF else ""
TNT = " nt" if int(OPT.get("tnt", 0)) else ""

D = 4
vL = 1
vWC = 2
vXr = 10
vK = 14
vV = 15
vRAW = 16
vFRAG = 144
vVRAW = 176
vOw = 240
vSt = 244
vT = 245

aACC = 0
aXF = 128
aKF = 160
aS = 224

sBR, sHG, sRB, sW = 4, 5, 6, 7
SRD_X, SRD_K, SRD_V, SRD_WQ, SRD_WO, SRD_WS, SRD_WC = 40, 44, 48, 52, 56, 60, 64
sWCo, sWCinc = 68, 69
sKV = 70
sSelLo, sSelHi = 74, 75
sSt = 76
sScale, sLog2e, sMask = 77, 78, 79
sXo = 8
sH = 9
sIt = 10
sWOo = 11
sR8 = 12
LDS_O = 65536


def srd(n):
    return "s[%d:%d]" % (n, n + 3)


def acc(rb, c):
    return aACC + (rb * 8 + c) * 4


def gen_main():
    e = Emit()
    nst = [0]

    def stamp():
        if not STAMP:
            return
        e.salu("s_memtime s[%d:%d]" % (80 + 2 * nst[0], 81 + 2 * nst[0]))
        nst[0] += 1

    e.label("main_kernel")
    e.salu("s_cmp_ge_u32 s2, 256")
    e.salu("s_cbranch_scc1 main_done")
    stamp()
    e.salu("s_load_dwordx16 s[16:31], s[0:1], 0")
    e.salu("s_load_dwordx4 s[32:35], s[0:1], 64")
    e.salu("s_load_dwordx2 s[36:37], s[0:1], 96")
    if STAMP or FUSE:
        e.salu("s_load_dwordx2 s[38:39], s[0:1], 88")
    if FUSE:
        e.salu("s_load_dwordx2 s[98:99], s[0:1], 80")
    e.ins("v_lshrrev_b32 v2, 6, v0", "valu", V(0), V(2))
    e.ins("v_and_b32 v%d, 63, v0" % vL, "valu", V(0), V(vL))
    e.ins("v_readfirstlane_b32 s%d, v2" % sW, "rfl", V(2), [("s", sW)])
    e.salu("s_and_b32 s3, s2, 7")
    e.salu("s_lshr_b32 s13, s2, 3")
    e.salu("s_lshr_b32 s%d, s3, 2" % sBR)
    e.salu("s_and_b32 s%d, s3, 3" % sHG)
    e.salu("s_lshl_b32 s%d, s%d, 1" % (sHG, sHG))
    e.salu("s_and_b32 s14, s13, 1")
    e.salu("s_or_b32 s%d, s%d, s14" % (sHG, sHG))
    e.salu("s_lshr_b32 s%d, s13, 1" % sRB)
    e.salu("s_lshr_b32 s12, s2, %d" % int(OPT.get("g4bit", 4)))
    e.salu("s_and_b32 s12, s12, 3")
    e.salu("s_mov_b32 s%d, 0x05040100" % sSelLo)
    e.salu("s_mov_b32 s%d, 0x07060302" % sSelHi)
    e.salu("s_mov_b32 s%d, 0x%08x" % (sScale, f32bits(128 ** -0.5)))
    e.salu("s_mov_b32 s%d, 0x%08x" % (sLog2e, f32bits(1.4426950408889634)))
    e.salu("s_mov_b32 s%d, 0xffff0000" % sMask)
    ti, tg, tt, t3 = vT, vT + 1, vT + 2, vT + 3
    e.ins("v_and_b32 v%d, 15, v%d" % (ti, vL), "valu", V(vL), V(ti))
    e.ins("v_lshrrev_b32 v%d, 4, v%d" % (tg, vL), "valu", V(vL), V(tg))
    e.ins("v_lshlrev_b32 v%d, 4, v%d" % (tt, ti), "valu", V(ti), V(tt))
    e.ins("v_lshl_add_u32 v%d, v%d, 16, v%d" % (vWC, tg, tt), "valu", V(tg) + V(tt), V(vWC))
    for j in range(1, 8):
        e.ins("v_add_u32 v%d, 0x%x, v%d" % (vWC + j, j * 8192, vWC), "valu", V(vWC), V(vWC + j))
    e.ins("v_lshlrev_b32 v%d, 8, v%d" % (vK, ti), "valu", V(ti), V(vK))
    e.ins("v_lshl_add_u32 v%d, v%d, 6, v%d" % (vK, tg, vK), "valu", V(tg) + V(vK), V(vK))
    e.ins("v_lshl_add_u32 v%d, v%d, 10, v%d" % (vV, tg, tt), "valu", V(tg) + V(tt), V(vV))
    e.ins("v_lshlrev_b32 v%d, 4, v%d" % (vSt, vL), "valu", V(vL), V(vSt))
    for slo in range(4):
        e.ins("v_add_u32 v%d, %d, v%d" % (t3, 4 * slo, tg), "valu", V(tg), V(t3))
        e.ins("v_xor_b32 v%d, v%d, v%d" % (t3, t3, ti), "valu", V(t3) + V(ti), V(t3))
        e.ins("v_lshlrev_b32 v%d, 4, v%d" % (t3, t3), "valu", V(t3), V(t3))
        e.ins("v_lshl_add_u32 v%d, v%d, 10, v%d" % (vXr + slo, ti, t3), "valu", V(ti) + V(t3), V(vXr + slo))
    tq, to = vT + 4, vT + 5
    e.ins("v_lshrrev_b32 v%d, 3, v%d" % (tq, vL), "valu", V(vL), V(tq))
    e.ins("v_and_b32 v%d, 7, v%d" % (t3, vL), "valu", V(vL), V(t3))
    e.ins("v_lshlrev_b32 v%d, 7, v%d" % (t3, t3), "valu", V(t3), V(t3))
    e.ins("v_lshl_add_u32 v%d, v%d, 13, v%d" % (tq, tq, t3), "valu", V(tq) + V(t3), V(tq))
    e.ins("v_lshlrev_b32 v%d, 7, v%d" % (to, vL), "valu", V(vL), V(to))
    e.salu("s_waitcnt lgkmcnt(0)")
    e.salu("s_cmp_eq_u32 s%d, 0" % sBR)
    e.salu("s_cselect_b64 s[%d:%d], s[16:17], s[26:27]" % (SRD_X, SRD_X + 1))
    e.salu("s_cselect_b64 s[%d:%d], s[18:19], s[28:29]" % (SRD_K, SRD_K + 1))
    e.salu("s_cselect_b64 s[%d:%d], s[20:21], s[30:31]" % (SRD_V, SRD_V + 1))
    e.salu("s_cselect_b64 s[%d:%d], s[22:23], s[32:33]" % (SRD_WQ, SRD_WQ + 1))
    e.salu("s_cselect_b64 s[%d:%d], s[24:25], s[34:35]" % (SRD_WO, SRD_WO + 1))
    e.salu("s_cselect_b64 s[%d:%d], s[22:23], s[32:33]" % (SRD_WC, SRD_WC + 1))
    e.salu("s_mov_b64 s[%d:%d], s[36:37]" % (SRD_WS, SRD_WS + 1))
    for base, size in ((SRD_X, 1 << 20), (SRD_K, 8 << 20), (SRD_V, 8 << 20), (SRD_WQ, 4 << 20), (SRD_WO, 4 << 20), (SRD_WS, 32 << 20), (SRD_WC, 4 << 20)):
        e.salu("s_mov_b32 s%d, 0x%x" % (base + 2, size))
        e.salu("s_mov_b32 s%d, 0x00020000" % (base + 3))
    if NOW:
        e.salu("s_mov_b32 s%d, 0" % (SRD_WC + 2))
    e.salu("s_lshl_b32 s%d, s%d, 2" % (sH, sHG))
    e.salu("s_add_u32 s%d, s%d, s%d" % (sH, sH, sW))
    e.salu("s_lshl_b32 s%d, s%d, 8" % (sWCo, sH))
    e.salu("s_mov_b32 s%d, 0x40000" % sWCinc)
    e.salu("s_lshl_b32 s%d, s%d, 19" % (sWOo, sHG))
    e.salu("s_lshl_b32 s3, s%d, 8" % sW)
    e.salu("s_add_u32 s%d, s%d, s3" % (sWOo, sWOo))
    e.salu("s_lshl_b32 s3, s%d, 6" % sRB)
    e.salu("s_add_u32 s3, s3, s%d" % sH)
    e.salu("s_lshl_b32 s%d, s3, 13" % sKV)
    e.salu("s_add_u32 s%d, s%d, 0x1000" % (sKV + 1, sKV))
    e.salu("s_add_u32 s%d, s%d, 0x40000" % (sKV + 2, sKV))
    e.salu("s_add_u32 s%d, s%d, 0x41000" % (sKV + 3, sKV))
    e.salu("s_lshl_b32 s%d, s%d, 16" % (sXo, sRB))
    e.salu("s_lshl_b32 s3, s%d, 14" % sW)
    e.salu("s_add_u32 s%d, s%d, s3" % (sXo, sXo))
    e.salu("s_lshl_b32 s3, s%d, 4" % sBR)
    e.salu("s_add_u32 s3, s3, s%d" % sRB)
    e.salu("s_lshl_b32 s3, s3, 3")
    e.salu("s_add_u32 s3, s3, s%d" % sHG)
    e.salu("s_lshl_b32 s3, s3, 2")
    e.salu("s_add_u32 s3, s3, s%d" % sW)
    e.salu("s_lshl_b32 s%d, s3, 15" % sSt)
    e.salu("s_lshl_b32 s13, s%d, 2" % sRB)
    e.salu("s_add_u32 s13, s13, s%d" % sW)
    e.salu("s_lshl_b32 s14, s13, 16")
    e.salu("s_lshl_b32 s3, s%d, 10" % sHG)
    e.salu("s_add_u32 s14, s14, s3")
    if WOQ:
        e.salu("s_mov_b64 s[%d:%d], s[%d:%d]" % (SRD_WC, SRD_WC + 1, SRD_WO, SRD_WO + 1))
        e.salu("s_mov_b32 s%d, s%d" % (sWCo, sWOo))
        e.salu("s_mov_b32 s%d, 0x8000" % sWCinc)
        e.ins("v_lshl_add_u32 v%d, v%d, 13, v%d" % (vWC, tg, tt), "valu", V(tg) + V(tt), V(vWC))
        for j in range(1, 8):
            e.ins("v_add_u32 v%d, 0x%x, v%d" % (vWC + j, j * 1024, vWC), "valu", V(vWC), V(vWC + j))
    if ETOUCH:
        e.ins("buffer_load_dword v%d, v%d, %s, s14 offen%s" % (vT + 6, tq, srd(SRD_WQ), TNT), "vload", V(tq), V(vT + 6), tag="touch")
    for r in range(16):
        if r and r % 4 == 0:
            e.salu("s_add_u32 s%d, s%d, 0x1000" % (sXo, sXo))
        d = vVRAW + 4 * r
        e.ins("buffer_load_dwordx4 %s, v%d, %s, s%d offen offset:%d%s" % (vr(d, 4), vSt, srd(SRD_X), sXo, (r % 4) * 1024, XNT),
              "vload", V(vSt), V(d, 4), tag="x")

    def wloads(t):
        out = []
        buf = vRAW + (t % D) * 32
        for j in range(8):
            d = buf + 4 * j
            def f(d=d, j=j):
                e.ins("buffer_load_dwordx4 %s, v%d, %s, s%d offen%s" % (vr(d, 4), vWC + j, srd(SRD_WC), sWCo, WNT),
                      "vload", V(vWC + j), V(d, 4), tag=("w", t))
            out.append(f)
        out.append(lambda: e.salu("s_add_u32 s%d, s%d, s%d" % (sWCo, sWCo, sWCinc)))
        return out

    for t in range(PRE):
        for f in wloads(t):
            f()

    nt = " nt" if KVNT else ""

    def kv_burst(idx):
        if NOKV:
            return
        bb, isv = idx // 2, idx % 2
        for n in range(8):
            if not isv:
                kt, sp = n // 4, n % 4
                d = aKF + bb * 32 + (kt * 4 + sp) * 4
                e.ins("buffer_load_dwordx4 %s, v%d, %s, s%d offen offset:%d%s" % (ar(d, 4), vK, srd(SRD_K), sKV + bb * 2 + kt, sp * 16, nt),
                      "vload", V(vK), A(d, 4), tag=("kv", bb, 0))
            else:
                d = vVRAW + bb * 32 + n * 4
                e.ins("buffer_load_dwordx4 %s, v%d, %s, s%d offen offset:%d%s" % (vr(d, 4), vV, srd(SRD_V), sKV + bb * 2 + n // 4, (n % 4) * 256, nt),
                      "vload", V(vV), V(d, 4), tag=("kv", bb, 1))

    for k in range(128):
        e.ins("v_accvgpr_write_b32 a%d, 0" % (aACC + k), "valu", (), A(aACC + k))
    tb = vT + 8
    e.ins("v_mov_b32 v%d, s%d" % (tb, sW), "valu", [("s", sW)], V(tb))
    e.ins("v_lshlrev_b32 v%d, 14, v%d" % (tb, tb), "valu", V(tb), V(tb))
    e.wait_vm("x")
    stamp()
    for r in range(16):
        ta = vT + 9 + (r % 2)
        e.ins("v_xor_b32 v%d, %d, v%d" % (ta, r, vL), "valu", V(vL), V(ta))
        e.ins("v_lshl_add_u32 v%d, v%d, 4, v%d" % (ta, ta, tb), "valu", V(ta) + V(tb), V(ta))
        d = vVRAW + 4 * r
        e.ins("ds_write_b128 v%d, %s offset:%d" % (ta, vr(d, 4), r * 1024), "dswrite", V(ta) + V(d, 4), (), tag="xw")
    if PBAR:
        e.wait_lgkm()
        e.salu("s_barrier")
    for t in range(PRE, D):
        for f in wloads(t):
            f()
    if TOUCH and not ETOUCH:
        e.ins("buffer_load_dword v%d, v%d, %s, s14 offen%s" % (vT + 6, tq, srd(SRD_WQ), TNT), "vload", V(tq), V(vT + 6), tag="touch")
    e.salu("s_lshl_b32 s14, s%d, 19" % sHG)
    e.salu("s_lshl_b32 s3, s13, 13")
    e.salu("s_add_u32 s14, s14, s3")
    if not PBAR:
        e.wait_lgkm()
        e.salu("s_barrier")
    if STAG:
        e.salu("s_bitcmp1_b32 s2, %d" % STAGBIT)
        e.salu("s_cbranch_scc1 skip_early_kv")
        for i in range(4):
            kv_burst(i)
        e.label("skip_early_kv")
    elif not LATE:
        kv_burst(0)
        if KVALL:
            kv_burst(1)
            kv_burst(2)
            kv_burst(3)
    stamp()

    def xf_read(u, rb):
        d = aXF + (u % 2) * 16 + rb * 4
        off = rb * 16384 + (256 if u == 4 else 0)
        e.ins("ds_read_b128 %s, v%d offset:%d" % (ar(d, 4), vXr + (u % 4), off), "dsread", V(vXr + (u % 4)), A(d, 4), tag=("xf", u % 4))

    def perm(t, c, p):
        buf = vRAW + (t % D) * 32
        s0 = buf + 4 * (2 * p + 1) + (c >> 1)
        s1 = buf + 4 * (2 * p) + (c >> 1)
        dd = vFRAG + c * 4 + p
        sel = sSelHi if (c & 1) else sSelLo
        e.ins("v_perm_b32 v%d, v%d, v%d, s%d" % (dd, s0, s1, sel), "valu", V(s0) + V(s1), V(dd))

    def phase_entry():
        for rb in range(4):
            xf_read(0, rb)
        e.wait_vm(("w", 0))
        for c in range(8):
            for p in range(4):
                perm(0, c, p)

    def loop_body():
        for u in range(4):
            e.comment("step %d" % u)
            e.wait_lgkm(("xf", u))
            wl = wloads(u + D)
            m = 0
            for c in range(8):
                for rb in range(4):
                    ac = acc(rb, c)
                    xf = aXF + (u % 2) * 16 + rb * 4
                    e.ins("v_mfma_f32_16x16x32_bf16 %s, %s, %s, %s" % (ar(ac, 4), vr(vFRAG + c * 4, 4), ar(xf, 4), ar(ac, 4)), "mfma",
                          V(vFRAG + c * 4, 4) + A(xf, 4) + A(ac, 4), A(ac, 4), creads=A(ac, 4))
                    if c == 0 and "L" not in DIAG:
                        wl[2 * rb]()
                        wl[2 * rb + 1]()
                        if rb == 3:
                            wl[8]()
                            e.wait_vm(("w", u + 1))
                    if c >= 1 and "P" not in DIAG:
                        perm(u + 1, c - 1, rb)
                    if c == 2 and "X" not in DIAG:
                        xf_read(u + 1, rb)
                    m += 1
            for p in range(4):
                if "P" not in DIAG:
                    perm(u + 1, 7, p)
        for slo in range(4):
            e.ins("v_add_u32 v%d, 0x100, v%d" % (vXr + slo, vXr + slo), "valu", V(vXr + slo), V(vXr + slo))

    e.salu("s_mov_b32 s%d, 0" % sIt)
    phase_entry()
    e.label("gemm_loop")
    e.vm = [("w", 1)] * 8 + [("w", 2)] * 8 + [("w", 3)] * 8
    e.lgkm = [("xf", 0)] * 4
    e.last_w = {}
    e.nop(2)
    loop_body()
    e.salu("s_add_u32 s%d, s%d, 1" % (sIt, sIt))
    e.salu("s_cmp_eq_u32 s%d, 4" % sIt)
    e.salu("s_cbranch_scc1 attention")
    e.salu("s_cmp_eq_u32 s%d, 8" % sIt)
    e.salu("s_cbranch_scc1 epilogue")
    e.salu("s_cmp_eq_u32 s%d, 7" % sIt)
    e.salu("s_cbranch_scc1 it7")
    e.salu("s_cmp_gt_u32 s%d, 4" % sIt)
    e.salu("s_cbranch_scc1 gemm_loop")
    e.salu("s_cmp_eq_u32 s%d, 2" % sIt)
    e.salu("s_cbranch_scc1 it2")
    e.salu("s_cmp_eq_u32 s%d, 3" % sIt)
    e.salu("s_cbranch_scc1 it3")
    e.label("it1")
    if not FUSE:
        stamp()
    if G4:
        e.salu("s_cmp_lg_u32 s12, 1")
        e.salu("s_cbranch_scc1 g4skip1")
        for i in range(4):
            kv_burst(i)
        e.label("g4skip1")
    if not KVALL and not STAG and not LATE:
        kv_burst(1)
    if TOUCH:
        e.ins("buffer_load_dword v%d, v%d, %s, s14 offen%s" % (vT + 6, to, srd(SRD_WO), TNT), "vload", V(to), V(vT + 6), tag="touch")
    e.salu("s_branch gemm_loop")
    e.label("it2")
    if not FUSE:
        stamp()
    if G4:
        e.salu("s_cmp_lg_u32 s12, 2")
        e.salu("s_cbranch_scc1 g4skip2")
        for i in range(4):
            kv_burst(i)
        e.label("g4skip2")
    if not KVALL and not STAG and not LATE:
        kv_burst(2)
    e.salu("s_branch gemm_loop")
    e.label("it3")
    if not FUSE:
        stamp()
    if G4:
        e.salu("s_cmp_lg_u32 s12, 3")
        e.salu("s_cbranch_scc1 g4skip3")
        for i in range(4):
            kv_burst(i)
        e.label("g4skip3")
    if not KVALL and not STAG and not LATE:
        kv_burst(3)
    if LATE == 2:
        for i in range(4):
            kv_burst(i)
    e.salu("s_mov_b64 s[%d:%d], s[%d:%d]" % (SRD_WC, SRD_WC + 1, SRD_WO, SRD_WO + 1))
    e.salu("s_mov_b32 s%d, s%d" % (sWCo, sWOo))
    e.salu("s_mov_b32 s%d, 0x8000" % sWCinc)
    e.ins("v_and_b32 v%d, 15, v%d" % (ti, vL), "valu", V(vL), V(ti))
    e.ins("v_lshrrev_b32 v%d, 4, v%d" % (tg, vL), "valu", V(vL), V(tg))
    e.ins("v_lshlrev_b32 v%d, 4, v%d" % (tt, ti), "valu", V(ti), V(tt))
    e.ins("v_lshl_add_u32 v%d, v%d, 13, v%d" % (vWC, tg, tt), "valu", V(tg) + V(tt), V(vWC))
    for j in range(1, 8):
        e.ins("v_add_u32 v%d, 0x%x, v%d" % (vWC + j, j * 1024, vWC), "valu", V(vWC), V(vWC + j))
    e.salu("s_branch gemm_loop")
    e.label("it7")
    e.salu("s_mov_b32 s%d, 0" % (SRD_WC + 2))
    e.salu("s_branch gemm_loop")

    e.label("attention")
    stamp()
    e.last_w = {}
    e.nop(10)
    e.vm = [("w", 1)] * 8 + [("w", 2)] * 8 + [("w", 3)] * 8
    e.lgkm = [("xf", 0)] * 4
    e.wait_lgkm()
    if KLDS:
        e.salu("s_barrier")
        kb0 = vT + 4
        e.ins("v_and_b32 v%d, 15, v%d" % (ti, vL), "valu", V(vL), V(ti))
        e.ins("v_lshrrev_b32 v%d, 4, v%d" % (tg, vL), "valu", V(vL), V(tg))
        e.ins("v_xor_b32 v%d, v%d, v%d" % (t3, ti, tg), "valu", V(ti) + V(tg), V(t3))
        e.ins("v_lshlrev_b32 v%d, 4, v%d" % (t3, t3), "valu", V(t3), V(t3))
        e.ins("v_lshl_add_u32 v%d, v%d, 8, v%d" % (kb0, tg, t3), "valu", V(tg) + V(t3), V(kb0))
        for q in range(1, 4):
            e.ins("v_xor_b32 v%d, %d, v%d" % (kb0 + q, q * 64, kb0), "valu", V(kb0), V(kb0 + q))
        e.salu("s_lshl_b32 s13, s%d, 14" % sW)
        for bb in range(2):
            for n in range(8):
                e.salu("s_add_u32 s14, s13, %d" % (bb * 8192 + n * 1024))
                e.salu("s_add_u32 s3, s%d, %d" % (sKV + bb * 2, n * 1024))
                e.salu("s_mov_b32 m0, s14")
                e.salu("s_nop 0")
                e.ins("buffer_load_dwordx4 v%d, %s, s3 offen%s lds" % (kb0 + n % 4, srd(SRD_K), nt), "vload", V(kb0 + n % 4), (), tag=("kv", bb, 0))
            kv_burst(2 * bb + 1)
    elif LATE == 1:
        if G4:
            e.salu("s_cmp_lg_u32 s12, 0")
            e.salu("s_cbranch_scc1 g4skip0")
        for i in range(4):
            kv_burst(i)
        if G4:
            e.label("g4skip0")
    if STAG:
        e.salu("s_bitcmp1_b32 s2, %d" % STAGBIT)
        e.salu("s_cbranch_scc0 skip_late_kv")
        for i in range(4):
            kv_burst(i)
        e.salu("s_waitcnt vmcnt(0)")
        e.label("skip_late_kv")
        e.vm = []
    e.ins("v_and_b32 v%d, 15, v%d" % (ti, vL), "valu", V(vL), V(ti))
    e.ins("v_lshrrev_b32 v%d, 4, v%d" % (tg, vL), "valu", V(vL), V(tg))
    e.salu("s_lshl_b32 s3, s%d, 8" % sW)
    e.salu("s_add_u32 s3, s3, 0x%x" % LDS_O)
    for r in range(4):
        e.ins("v_lshl_add_u32 v%d, v%d, 2, %d" % (t3, tg, r), "valu", V(tg), V(t3))
        e.ins("v_xor_b32 v%d, v%d, v%d" % (t3, t3, ti), "valu", V(t3) + V(ti), V(t3))
        e.ins("v_lshlrev_b32 v%d, 4, v%d" % (t3, t3), "valu", V(t3), V(t3))
        e.ins("v_lshl_add_u32 v%d, v%d, 10, v%d" % (t3, ti, t3), "valu", V(ti) + V(t3), V(t3))
        e.ins("v_add_u32 v%d, s3, v%d" % (vOw + r, t3), "valu", V(t3), V(vOw + r))
    for slo in range(4):
        e.ins("v_add_u32 v%d, 0x%x, v%d" % (vXr + slo, LDS_O - 1024, vXr + slo), "valu", V(vXr + slo), V(vXr + slo))
    QF = vFRAG
    for bb in range(2):
        vb = vVRAW + bb * 32
        for qt in range(2):
            rb = 2 * bb + qt
            for sp in range(4):
                for p in range(4):
                    t0 = vT + (p % 2) * 2
                    t1 = t0 + 1
                    a0 = acc(rb, 2 * p) + sp
                    a1 = acc(rb, 2 * p + 1) + sp
                    e.ins("v_accvgpr_read_b32 v%d, a%d" % (t0, a0), "valu", A(a0), V(t0))
                    e.ins("v_accvgpr_read_b32 v%d, a%d" % (t1, a1), "valu", A(a1), V(t1))
                    dd = QF + (qt * 4 + sp) * 4 + p
                    e.ins("v_cvt_pk_bf16_f32 v%d, v%d, v%d" % (dd, t0, t1), "valu", V(t0) + V(t1), V(dd))
        e.wait_vm(("kv", bb, 0))
        if KLDS:
            e.salu("s_lshl_b32 s3, s%d, 14" % sW)
            ki, kg = vT + 8, vT + 9
            e.ins("v_and_b32 v%d, 15, v%d" % (ki, vL), "valu", V(vL), V(ki))
            e.ins("v_lshrrev_b32 v%d, 4, v%d" % (kg, vL), "valu", V(vL), V(kg))
            for sp in range(4):
                ka = vT + 4 + (sp % 2)
                e.ins("v_lshl_add_u32 v%d, v%d, 2, %d" % (ka, kg, sp), "valu", V(kg), V(ka))
                e.ins("v_xor_b32 v%d, v%d, v%d" % (ka, ka, ki), "valu", V(ka) + V(ki), V(ka))
                e.ins("v_lshlrev_b32 v%d, 4, v%d" % (ka, ka), "valu", V(ka), V(ka))
                e.ins("v_lshl_add_u32 v%d, v%d, 8, v%d" % (ka, ki, ka), "valu", V(ki) + V(ka), V(ka))
                e.ins("v_add_u32 v%d, s3, v%d" % (ka, ka), "valu", V(ka), V(ka))
                for kt in range(2):
                    d = aKF + bb * 32 + (kt * 4 + sp) * 4
                    e.ins("ds_read_b128 %s, v%d offset:%d" % (ar(d, 4), ka, bb * 8192 + kt * 4096), "dsread", V(ka), A(d, 4), tag="kf")
            e.wait_lgkm()
        for sp in range(4):
            for kt in range(2):
                for qt in range(2):
                    sd = aS + (kt * 2 + qt) * 4
                    kf = aKF + bb * 32 + (kt * 4 + sp) * 4
                    qf = QF + (qt * 4 + sp) * 4
                    if sp == 0:
                        e.ins("v_mfma_f32_16x16x32_bf16 %s, %s, %s, 0" % (ar(sd, 4), ar(kf, 4), vr(qf, 4)), "mfma",
                              A(kf, 4) + V(qf, 4), A(sd, 4))
                    else:
                        e.ins("v_mfma_f32_16x16x32_bf16 %s, %s, %s, %s" % (ar(sd, 4), ar(kf, 4), vr(qf, 4), ar(sd, 4)), "mfma",
                              A(kf, 4) + V(qf, 4) + A(sd, 4), A(sd, 4), creads=A(sd, 4))
        e.wait_vm(("kv", bb, 1))
        for c in range(8):
            for p in range(4):
                s0 = vb + 4 * (2 * p + 1) + (c >> 1)
                s1 = vb + 4 * (2 * p) + (c >> 1)
                dd = QF + c * 4 + p
                sel = sSelHi if (c & 1) else sSelLo
                e.ins("v_perm_b32 v%d, v%d, v%d, s%d" % (dd, s0, s1, sel), "valu", V(s0) + V(s1), V(dd))
        SV = vb
        PF = vb + 16
        TT = vb + 24
        for qt in range(2):
            for kt in range(2):
                for r in range(4):
                    a_ = aS + (kt * 2 + qt) * 4 + r
                    d_ = SV + qt * 8 + kt * 4 + r
                    e.ins("v_accvgpr_read_b32 v%d, a%d" % (d_, a_), "valu", A(a_), V(d_))
        for qt in range(2):
            vals = [SV + qt * 8 + k for k in range(8)]
            for rnd in range(2):
                for k in range(0, 8, 2):
                    x0, x1 = vals[k], vals[k + 1]
                    tp = TT
                    e.ins("v_cvt_pk_bf16_f32 v%d, v%d, v%d" % (tp, x0, x1), "valu", V(x0) + V(x1), V(tp))
                    e.ins("v_lshlrev_b32 v%d, 16, v%d" % (x0, tp), "valu", V(tp), V(x0))
                    e.ins("v_and_b32 v%d, s%d, v%d" % (x1, sMask, tp), "valu", V(tp), V(x1))
                    if rnd == 0:
                        e.ins("v_mul_f32 v%d, s%d, v%d" % (x0, sScale, x0), "valu", V(x0), V(x0))
                        e.ins("v_mul_f32 v%d, s%d, v%d" % (x1, sScale, x1), "valu", V(x1), V(x1))
            mx, m2 = TT + 1, TT + 2
            e.ins("v_max3_f32 v%d, v%d, v%d, v%d" % (mx, vals[0], vals[1], vals[2]), "valu", V(vals[0]) + V(vals[1]) + V(vals[2]), V(mx))
            e.ins("v_max3_f32 v%d, v%d, v%d, v%d" % (mx, mx, vals[3], vals[4]), "valu", V(mx) + V(vals[3]) + V(vals[4]), V(mx))
            e.ins("v_max3_f32 v%d, v%d, v%d, v%d" % (mx, mx, vals[5], vals[6]), "valu", V(mx) + V(vals[5]) + V(vals[6]), V(mx))
            e.ins("v_max_f32 v%d, v%d, v%d" % (mx, mx, vals[7]), "valu", V(mx) + V(vals[7]), V(mx))
            for sw in ("v_permlane16_swap_b32", "v_permlane32_swap_b32"):
                e.ins("v_mov_b32 v%d, v%d" % (m2, mx), "valu", V(mx), V(m2))
                e.ins("%s v%d, v%d" % (sw, mx, m2), "permlane", V(mx) + V(m2), V(mx) + V(m2))
                e.ins("v_max_f32 v%d, v%d, v%d" % (mx, mx, m2), "valu", V(mx) + V(m2), V(mx))
            for x in vals:
                e.ins("v_sub_f32 v%d, v%d, v%d" % (x, x, mx), "valu", V(x) + V(mx), V(x))
            for x in vals:
                e.ins("v_mul_f32 v%d, s%d, v%d" % (x, sLog2e, x), "valu", V(x), V(x))
            for x in vals:
                e.ins("v_exp_f32 v%d, v%d" % (x, x), "trans", V(x), V(x))
            sm, s2_ = TT + 3, TT + 4
            e.ins("v_add_f32 v%d, v%d, v%d" % (sm, vals[0], vals[1]), "valu", V(vals[0]) + V(vals[1]), V(sm))
            e.ins("v_add_f32 v%d, v%d, v%d" % (s2_, vals[2], vals[3]), "valu", V(vals[2]) + V(vals[3]), V(s2_))
            e.ins("v_add_f32 v%d, v%d, v%d" % (sm, sm, s2_), "valu", V(sm) + V(s2_), V(sm))
            e.ins("v_add_f32 v%d, v%d, v%d" % (s2_, vals[4], vals[5]), "valu", V(vals[4]) + V(vals[5]), V(s2_))
            e.ins("v_add_f32 v%d, v%d, v%d" % (sm, sm, s2_), "valu", V(sm) + V(s2_), V(sm))
            e.ins("v_add_f32 v%d, v%d, v%d" % (s2_, vals[6], vals[7]), "valu", V(vals[6]) + V(vals[7]), V(s2_))
            e.ins("v_add_f32 v%d, v%d, v%d" % (sm, sm, s2_), "valu", V(sm) + V(s2_), V(sm))
            for sw in ("v_permlane16_swap_b32", "v_permlane32_swap_b32"):
                e.ins("v_mov_b32 v%d, v%d" % (s2_, sm), "valu", V(sm), V(s2_))
                e.ins("%s v%d, v%d" % (sw, sm, s2_), "permlane", V(sm) + V(s2_), V(sm) + V(s2_))
                e.ins("v_add_f32 v%d, v%d, v%d" % (sm, sm, s2_), "valu", V(sm) + V(s2_), V(sm))
            e.ins("v_rcp_f32 v%d, v%d" % (sm, sm), "trans", V(sm), V(sm))
            for x in vals:
                e.ins("v_mul_f32 v%d, v%d, v%d" % (x, x, sm), "valu", V(x) + V(sm), V(x))
            for p in range(4):
                dd = PF + qt * 4 + p
                e.ins("v_cvt_pk_bf16_f32 v%d, v%d, v%d" % (dd, vals[2 * p], vals[2 * p + 1]), "valu", V(vals[2 * p]) + V(vals[2 * p + 1]), V(dd))
        for qt in range(2):
            for c in range(8):
                ac = acc(2 * bb + qt, c)
                e.ins("v_mfma_f32_16x16x32_bf16 %s, %s, %s, 0" % (ar(ac, 4), vr(QF + c * 4, 4), vr(PF + qt * 4, 4)), "mfma",
                      V(QF + c * 4, 4) + V(PF + qt * 4, 4), A(ac, 4))
        n = 0
        for qt in range(2):
            for r in range(4):
                dq = SV + (n % 4) * 4
                n += 1
                for p in range(4):
                    t0 = vT + (p % 2) * 2
                    t1 = t0 + 1
                    a0 = acc(2 * bb + qt, 2 * p) + r
                    a1 = acc(2 * bb + qt, 2 * p + 1) + r
                    e.ins("v_accvgpr_read_b32 v%d, a%d" % (t0, a0), "valu", A(a0), V(t0))
                    e.ins("v_accvgpr_read_b32 v%d, a%d" % (t1, a1), "valu", A(a1), V(t1))
                    e.ins("v_cvt_pk_bf16_f32 v%d, v%d, v%d" % (dq + p, t0, t1), "valu", V(t0) + V(t1), V(dq + p))
                e.ins("ds_write_b128 v%d, %s offset:%d" % (vOw + r, vr(dq, 4), (32 * bb + 16 * qt) * 1024), "dswrite",
                      V(vOw + r) + V(dq, 4), (), tag="ow")
    for k in range(128):
        e.ins("v_accvgpr_write_b32 a%d, 0" % (aACC + k), "valu", (), A(aACC + k))
    e.wait_lgkm()
    stamp()
    e.salu("s_barrier")
    stamp()
    for rb in range(4):
        xf_read(0, rb)
    for c in range(8):
        for p in range(4):
            perm(0, c, p)
    e.salu("s_branch gemm_loop")

    e.label("epilogue")
    stamp()
    e.last_w = {}
    e.nop(10)
    n = 0
    if BFP:
        e.salu("s_lshr_b32 s%d, s%d, 1" % (sSt, sSt))
        for rb in range(4):
            for r in range(4):
                if n and n % 4 == 0:
                    e.salu("s_add_u32 s%d, s%d, 0x1000" % (sSt, sSt))
                dq = vRAW + (n % 8) * 4
                for p in range(4):
                    t0 = vT + (p % 2) * 2
                    t1 = t0 + 1
                    a0 = acc(rb, 2 * p) + r
                    a1 = acc(rb, 2 * p + 1) + r
                    e.ins("v_accvgpr_read_b32 v%d, a%d" % (t0, a0), "valu", A(a0), V(t0))
                    e.ins("v_accvgpr_read_b32 v%d, a%d" % (t1, a1), "valu", A(a1), V(t1))
                    e.ins("v_cvt_pk_bf16_f32 v%d, v%d, v%d" % (dq + p, t0, t1), "valu", V(t0) + V(t1), V(dq + p))
                e.ins("buffer_store_dwordx4 %s, v%d, %s, s%d offen offset:%d%s" % (vr(dq, 4), vSt, srd(SRD_WS), sSt, (n % 4) * 1024, STF),
                      "vstore", V(dq, 4) + V(vSt), (), tag="st")
                n += 1
    else:
      for rb in range(4):
        for c in range(8):
            if n and n % 4 == 0:
                e.salu("s_add_u32 s%d, s%d, 0x1000" % (sSt, sSt))
            ac = acc(rb, c)
            e.ins("buffer_store_dwordx4 %s, v%d, %s, s%d offen offset:%d%s" % (ar(ac, 4), vSt, srd(SRD_WS), sSt, (n % 4) * 1024, STF),
                  "vstore", A(ac, 4) + V(vSt), (), tag="st")
            n += 1
    if FUSE:
        SRD_D, SRD_O = SRD_X, SRD_K
        e.salu("s_waitcnt vmcnt(0)")
        stamp()
        e.salu("s_barrier")
        e.salu("s_mov_b32 s%d, s38" % SRD_D)
        e.salu("s_mov_b32 s%d, s39" % (SRD_D + 1))
        e.salu("s_mov_b32 s%d, 256" % (SRD_D + 2))
        e.salu("s_mov_b32 s%d, s98" % SRD_O)
        e.salu("s_mov_b32 s%d, s99" % (SRD_O + 1))
        e.salu("s_mov_b32 s%d, 0x200000" % (SRD_O + 2))
        e.salu("s_lshl_b32 s13, s%d, 4" % sBR)
        e.salu("s_add_u32 s13, s13, s%d" % sRB)
        e.salu("s_lshl_b32 s14, 1, s%d" % sHG)
        e.salu("s_cmp_lg_u32 s%d, 0" % sW)
        e.salu("s_cbranch_scc1 f_wait")
        e.salu("s_mov_b64 exec, 1")
        e.raw("v_mov_b32 v3, s13")
        e.raw("v_lshlrev_b32 v3, 2, v3")
        e.raw("v_mov_b32 v2, 1")
        e.raw("buffer_atomic_add v2, v3, s[%d:%d], 0 offen sc0 sc1" % (SRD_D, SRD_D + 3))
        e.salu("s_waitcnt vmcnt(0)")
        e.raw("v_readfirstlane_b32 s15, v2")
        e.salu("s_nop 3")
        e.salu("s_cmp_eq_u32 s15, 7")
        e.salu("s_cbranch_scc1 f_last")
        e.salu("s_mov_b32 s3, 0")
        e.label("f_spin")
        e.salu("s_sleep 4")
        e.raw("v_mov_b32 v2, 0")
        e.raw("buffer_atomic_add v2, v3, s[%d:%d], 0 offen sc0 sc1" % (SRD_D, SRD_D + 3))
        e.salu("s_waitcnt vmcnt(0)")
        e.raw("v_readfirstlane_b32 s15, v2")
        e.salu("s_nop 3")
        e.salu("s_cmp_eq_u32 s15, 8")
        e.salu("s_cbranch_scc1 f_decided")
        e.salu("s_add_u32 s3, s3, 1")
        e.salu("s_cmp_lt_u32 s3, %d" % SPIN)
        e.salu("s_cbranch_scc1 f_spin")
        e.raw("v_mov_b32 v2, s14")
        e.raw("buffer_atomic_or v2, v3, s[%d:%d], 0 offen offset:128 sc0 sc1" % (SRD_D, SRD_D + 3))
        e.salu("s_waitcnt vmcnt(0)")
        e.raw("v_mov_b32 v2, 0")
        e.raw("buffer_atomic_add v2, v3, s[%d:%d], 0 offen sc0 sc1" % (SRD_D, SRD_D + 3))
        e.salu("s_waitcnt vmcnt(0)")
        e.raw("v_readfirstlane_b32 s15, v2")
        e.salu("s_nop 3")
        e.salu("s_cmp_eq_u32 s15, 8")
        e.salu("s_cbranch_scc1 f_decided")
        e.salu("s_mov_b32 s14, 0")
        e.salu("s_branch f_decided")
        e.label("f_last")
        e.raw("v_mov_b32 v2, 0")
        e.raw("buffer_atomic_or v2, v3, s[%d:%d], 0 offen offset:128 sc0 sc1" % (SRD_D, SRD_D + 3))
        e.salu("s_waitcnt vmcnt(0)")
        e.raw("v_readfirstlane_b32 s15, v2")
        e.salu("s_nop 3")
        e.salu("s_or_b32 s14, s14, s15")
        e.label("f_decided")
        e.raw("v_mov_b32 v2, s14")
        e.raw("v_mov_b32 v3, 0")
        e.raw("ds_write_b32 v3, v2")
        e.salu("s_waitcnt lgkmcnt(0)")
        e.salu("s_mov_b64 exec, -1")
        e.label("f_wait")
        e.salu("s_barrier")
        stamp()
        e.raw("v_mov_b32 v3, 0")
        e.raw("ds_read_b32 v2, v3")
        e.salu("s_waitcnt lgkmcnt(0)")
        e.raw("v_readfirstlane_b32 s14, v2")
        e.raw("v_and_b32 v4, 15, v%d" % vL)
        e.raw("v_lshrrev_b32 v5, 4, v%d" % vL)
        e.raw("v_lshlrev_b32 v5, 6, v5")
        e.raw("v_lshl_add_u32 v4, v4, 11, v5")
        e.label("f_loop")
        e.salu("s_cmp_eq_u32 s14, 0")
        e.salu("s_cbranch_scc1 f_end")
        e.salu("s_ff1_i32_b32 s15, s14")
        e.salu("s_bitset0_b32 s14, s15")
        e.salu("s_lshr_b32 s20, s15, 1")
        e.salu("s_and_b32 s21, s15, 1")
        e.salu("s_lshl_b32 s21, s21, 1")
        e.salu("s_lshr_b32 s22, s%d, 1" % sW)
        e.salu("s_add_u32 s21, s21, s22")
        e.salu("s_and_b32 s22, s%d, 1" % sW)
        e.salu("s_lshl_b32 s25, s13, 5")
        e.salu("s_add_u32 s25, s25, s20")
        e.salu("s_lshl_b32 s25, s25, 15")
        e.salu("s_lshl_b32 s26, s21, 13")
        e.salu("s_add_u32 s25, s25, s26")
        e.salu("s_lshl_b32 s26, s22, 12")
        e.salu("s_add_u32 s25, s25, s26")
        e.salu("s_lshl_b32 s27, s%d, 17" % sRB)
        e.salu("s_lshl_b32 s26, s21, 15")
        e.salu("s_add_u32 s27, s27, s26")
        e.salu("s_lshl_b32 s26, s%d, 10" % sBR)
        e.salu("s_add_u32 s27, s27, s26")
        e.salu("s_lshl_b32 s26, s20, 8")
        e.salu("s_add_u32 s27, s27, s26")
        e.salu("s_lshl_b32 s26, s22, 3")
        e.salu("s_add_u32 s27, s27, s26")
        e.vm = []
        e.last_w = {}
        base = 16
        for hg in range(8):
            for cc in range(4):
                d = base + (hg * 4 + cc) * 4
                e.ins("buffer_load_dwordx4 %s, v%d, %s, s25 offen offset:%d sc1" % (vr(d, 4), vSt, srd(SRD_WS), cc * 1024), "vload", V(vSt), V(d, 4), tag=("p", hg))
            if hg < 7:
                e.salu("s_add_u32 s25, s25, 0x20000")
        for hg in range(1, 8):
            e.wait_vm(("p", hg))
            for cc in range(4):
                for r in range(0, 4, 2):
                    a_ = base + cc * 4 + r
                    b_ = base + (hg * 4 + cc) * 4 + r
                    e.ins("v_pk_add_f32 %s, %s, %s" % (vr(a_, 2), vr(a_, 2), vr(b_, 2)), "valu", V(a_, 2) + V(b_, 2), V(a_, 2))
        for r in range(4):
            d = 8 + (r % 2) * 2
            e.ins("v_cvt_pk_bf16_f32 v%d, v%d, v%d" % (d, base + r, base + 4 + r), "valu", V(base + r) + V(base + 4 + r), V(d))
            e.ins("v_cvt_pk_bf16_f32 v%d, v%d, v%d" % (d + 1, base + 8 + r, base + 12 + r), "valu", V(base + 8 + r) + V(base + 12 + r), V(d + 1))
            e.ins("buffer_store_dwordx2 %s, v4, s[%d:%d], s27 offen offset:%d" % (vr(d, 2), SRD_O, SRD_O + 3, r * 16), "vstore", V(d, 2) + V(4), (), tag="o")
        e.salu("s_waitcnt vmcnt(0)")
        e.salu("s_branch f_loop")
        e.label("f_end")
    if STAMP:
        e.salu("s_waitcnt vmcnt(0)")
        stamp()
        e.salu("s_waitcnt lgkmcnt(0)")
        e.salu("s_cmp_lg_u32 s2, %d" % int(OPT.get("dumpwg", 0)))
        e.salu("s_cbranch_scc1 main_done")
        e.salu("s_mov_b32 s%d, s38" % SRD_X)
        e.salu("s_mov_b32 s%d, s39" % (SRD_X + 1))
        e.salu("s_mov_b32 s%d, 1024" % (SRD_X + 2))
        e.salu("s_lshl_b32 s3, s%d, 6" % sW)
        e.salu("s_add_u32 s3, s3, 512")
        e.raw("v_mov_b32 v2, 0")
        for k in range(1, nst[0]):
            e.salu("s_sub_u32 s13, s%d, s80" % (80 + 2 * k))
            e.raw("v_mov_b32 v3, s13")
            e.raw("buffer_store_dword v3, v2, s[%d:%d], s3 offen offset:%d" % (SRD_X, SRD_X + 3, 4 * (k - 1)))
    e.label("main_done")
    e.salu("s_endpgm")
    return e.lines


def gen_reduce_bf():
    e = Emit()
    e.label("reduce_kernel")
    e.salu("s_cmp_ge_u32 s2, 256")
    e.salu("s_cbranch_scc1 reduce_done")
    e.salu("s_load_dwordx2 s[8:9], s[0:1], 80")
    e.salu("s_load_dwordx2 s[12:13], s[0:1], 96")
    e.ins("v_lshrrev_b32 v2, 6, v0", "valu", V(0), V(2))
    e.ins("v_and_b32 v1, 63, v0", "valu", V(0), V(1))
    e.ins("v_readfirstlane_b32 s7, v2", "rfl", V(2), [("s", 7)])
    e.ins("v_lshlrev_b32 v3, 4, v1", "valu", V(1), V(3))
    e.ins("v_and_b32 v4, 15, v1", "valu", V(1), V(4))
    e.ins("v_lshrrev_b32 v5, 4, v1", "valu", V(1), V(5))
    e.ins("v_lshlrev_b32 v5, 6, v5", "valu", V(5), V(5))
    e.ins("v_lshl_add_u32 v4, v4, 11, v5", "valu", V(4) + V(5), V(4))
    e.salu("s_nop 2")
    e.salu("s_lshl_b32 s3, s2, 2")
    e.salu("s_add_u32 s3, s3, s7")
    e.salu("s_and_b32 s20, s3, 1")
    e.salu("s_lshr_b32 s21, s3, 1")
    e.salu("s_and_b32 s21, s21, 3")
    e.salu("s_lshr_b32 s22, s3, 3")
    e.salu("s_and_b32 s22, s22, 3")
    e.salu("s_lshr_b32 s23, s3, 5")
    e.salu("s_and_b32 s23, s23, 15")
    e.salu("s_lshr_b32 s24, s3, 9")
    e.salu("s_lshl_b32 s25, s24, 4")
    e.salu("s_add_u32 s25, s25, s23")
    e.salu("s_lshl_b32 s25, s25, 5")
    e.salu("s_add_u32 s25, s25, s22")
    e.salu("s_lshl_b32 s25, s25, 14")
    e.salu("s_lshl_b32 s26, s21, 12")
    e.salu("s_add_u32 s25, s25, s26")
    e.salu("s_lshl_b32 s26, s20, 11")
    e.salu("s_add_u32 s25, s25, s26")
    e.salu("s_lshl_b32 s27, s23, 17")
    e.salu("s_lshl_b32 s26, s21, 15")
    e.salu("s_add_u32 s27, s27, s26")
    e.salu("s_lshl_b32 s26, s24, 10")
    e.salu("s_add_u32 s27, s27, s26")
    e.salu("s_lshl_b32 s26, s22, 8")
    e.salu("s_add_u32 s27, s27, s26")
    e.salu("s_lshl_b32 s26, s20, 5")
    e.salu("s_add_u32 s27, s27, s26")
    e.salu("s_mov_b32 s28, 0xffff0000")
    e.salu("s_waitcnt lgkmcnt(0)")
    e.salu("s_mov_b32 s10, 0x200000")
    e.salu("s_mov_b32 s11, 0x00020000")
    e.salu("s_mov_b32 s14, 0x2000000")
    e.salu("s_mov_b32 s15, 0x00020000")
    base = 32
    for hg in range(8):
        for rr in range(2):
            d = base + (hg * 2 + rr) * 4
            e.ins("buffer_load_dwordx4 %s, v3, s[12:15], s25 offen offset:%d" % (vr(d, 4), rr * 1024), "vload", V(3), V(d, 4), tag=("p", hg))
        if hg < 7:
            e.salu("s_add_u32 s25, s25, 0x10000")
    accb = 8
    for hg in range(8):
        e.wait_vm(("p", hg))
        for rr in range(2):
            for q in range(4):
                s_ = base + (hg * 2 + rr) * 4 + q
                a0 = accb + rr * 8 + 2 * q
                if hg == 0:
                    e.ins("v_lshlrev_b32 v%d, 16, v%d" % (a0, s_), "valu", V(s_), V(a0))
                    e.ins("v_and_b32 v%d, s28, v%d" % (a0 + 1, s_), "valu", V(s_), V(a0 + 1))
                else:
                    e.ins("v_lshlrev_b32 v24, 16, v%d" % s_, "valu", V(s_), V(24))
                    e.ins("v_and_b32 v25, s28, v%d" % s_, "valu", V(s_), V(25))
                    e.ins("v_pk_add_f32 %s, %s, v[24:25]" % (vr(a0, 2), vr(a0, 2)), "valu", V(a0, 2) + V(24, 2), V(a0, 2))
    for rr in range(2):
        d = 24 + rr * 4
        for q in range(4):
            a0 = accb + rr * 8 + 2 * q
            e.ins("v_cvt_pk_bf16_f32 v%d, v%d, v%d" % (d + q, a0, a0 + 1), "valu", V(a0, 2), V(d + q))
        e.ins("buffer_store_dwordx4 %s, v4, s[8:11], s27 offen offset:%d" % (vr(d, 4), rr * 16), "vstore", V(d, 4) + V(4), (), tag="o")
    e.label("reduce_done")
    e.salu("s_endpgm")
    return e.lines


HEADER = """; Fused two-branch attention block: Q-proj + attention + out-proj partials, then a reduce kernel.
; @launch kernel=main_kernel grid=(256,1,1) block=(256,1,1) lds=131072
; @launch kernel=reduce_kernel grid=(256,1,1) block=(256,1,1) lds=0
.amdgcn_target "amdgcn-amd-amdhsa--gfx950"
.text
"""


def main():
    hdr = HEADER
    kernels = [("main_kernel", gen_main()), ("reduce_kernel", gen_reduce_bf() if BFP else gen_reduce())]
    if FUSE:
        hdr = hdr.replace("; @launch kernel=reduce_kernel grid=(256,1,1) block=(256,1,1) lds=0\n", "")
        kernels = kernels[:1]
    out = [hdr]
    for name, lines in kernels:
        out.append(".globl %s\n.p2align 8\n.type %s,@function\n" % (name, name))
        out.append("\n".join(lines) + "\n")
    out.append('.section .rodata,"a"\n')
    out.append(kd("main_kernel", 512, 102, 256))
    if not FUSE:
        out.append(kd("reduce_kernel", 144, 32, 144))
    text = "".join(out)
    path = sys.argv[1] if len(sys.argv) > 1 else "cdna_kernels/%s.s" % NAME
    open(path, "w").write(text)
    print("wrote", path, len(text), "bytes")


if __name__ == "__main__":
    main()
```

```python
import struct, sys
from gen import Emit, V, A, vr, ar, f32bits, NAME, gen_reduce, kd

STAMP = len(sys.argv) > 2 and sys.argv[2] == "stamp"
OPT = dict(a.split("=") for a in sys.argv[3:])
TOUCH = int(OPT.get("touch", 1))
KVNT = int(OPT.get("kvnt", 1))
PRE = int(OPT.get("pre", 2))
NOKV = int(OPT.get("nokv", 0))
KVALL = int(OPT.get("kvall", 0))
STAG = int(OPT.get("stag", 0))
LATE = int(OPT.get("late", 0))
G4 = int(OPT.get("g4", 0))
KLDS = int(OPT.get("klds", 0))
FUSE = int(OPT.get("fuse", 0))
NOW = int(OPT.get("now", 0))
XQ = int(OPT.get("xq", 0))
ILP = int(OPT.get("ilp", 0))
MZ = int(OPT.get("mz", 0))
VO = int(OPT.get("vo", 0))
TLB = int(OPT.get("tlb", 0))
BFP = int(OPT.get("bfp", 0))
DIAG = OPT.get("diag", "")
SPIN = int(OPT.get("spin", 4000))
PBAR = int(OPT.get("pbar", 0))
STAGBIT = int(OPT.get("stagbit", 4))
ETOUCH = int(OPT.get("etouch", 0))
WOQ = int(OPT.get("woq", 0))
WNT = " nt" if int(OPT.get("wnt", 0)) else ""
XNT = " nt" if int(OPT.get("xnt", 0)) else ""
STF = OPT.get("stf", "").replace("+", " ")
STF = (" " + STF) if STF else ""
TNT = " nt" if int(OPT.get("tnt", 0)) else ""

D = 4
vL = 1
vWC = 2
vXr = 10
vK = 14
vV = 15
vRAW = 16
vFRAG = 144
vVRAW = 176
vOw = 240
vSt = 244
vT = 245

aACC = 0
aXF = 128
aKF = 160
aS = 224

sBR, sHG, sRB, sW = 4, 5, 6, 7
SRD_X, SRD_K, SRD_V, SRD_WQ, SRD_WO, SRD_WS, SRD_WC = 40, 44, 48, 52, 56, 60, 64
sWCo, sWCinc = 68, 69
sKV = 70
sSelLo, sSelHi = 74, 75
sSt = 76
sScale, sLog2e, sMask = 77, 78, 79
sXo = 8
sH = 9
sIt = 10
sWOo = 11
sR8 = 12
LDS_O = 65536


def srd(n):
    return "s[%d:%d]" % (n, n + 3)


def acc(rb, c):
    return aACC + (rb * 8 + c) * 4


def gen_main():
    e = Emit()
    nst = [0]

    def stamp():
        if not STAMP:
            return
        e.salu("s_memtime s[%d:%d]" % (80 + 2 * nst[0], 81 + 2 * nst[0]))
        nst[0] += 1

    e.label("main_kernel")
    e.salu("s_cmp_ge_u32 s2, 256")
    e.salu("s_cbranch_scc1 main_done")
    stamp()
    e.salu("s_load_dwordx16 s[16:31], s[0:1], 0")
    e.salu("s_load_dwordx4 s[32:35], s[0:1], 64")
    e.salu("s_load_dwordx2 s[36:37], s[0:1], 96")
    if STAMP or FUSE:
        e.salu("s_load_dwordx2 s[38:39], s[0:1], 88")
    if FUSE:
        e.salu("s_load_dwordx2 s[98:99], s[0:1], 80")
    e.ins("v_lshrrev_b32 v2, 6, v0", "valu", V(0), V(2))
    e.ins("v_and_b32 v%d, 63, v0" % vL, "valu", V(0), V(vL))
    e.ins("v_readfirstlane_b32 s%d, v2" % sW, "rfl", V(2), [("s", sW)])
    e.salu("s_and_b32 s3, s2, 7")
    e.salu("s_lshr_b32 s13, s2, 3")
    e.salu("s_lshr_b32 s%d, s3, 2" % sBR)
    e.salu("s_and_b32 s%d, s3, 3" % sHG)
    e.salu("s_lshl_b32 s%d, s%d, 1" % (sHG, sHG))
    e.salu("s_and_b32 s14, s13, 1")
    e.salu("s_or_b32 s%d, s%d, s14" % (sHG, sHG))
    e.salu("s_lshr_b32 s%d, s13, 1" % sRB)
    e.salu("s_lshr_b32 s12, s2, %d" % int(OPT.get("g4bit", 4)))
    e.salu("s_and_b32 s12, s12, 3")
    e.salu("s_mov_b32 s%d, 0x05040100" % sSelLo)
    e.salu("s_mov_b32 s%d, 0x07060302" % sSelHi)
    e.salu("s_mov_b32 s%d, 0x%08x" % (sScale, f32bits(128 ** -0.5)))
    e.salu("s_mov_b32 s%d, 0x%08x" % (sLog2e, f32bits(1.4426950408889634)))
    e.salu("s_mov_b32 s%d, 0xffff0000" % sMask)
    ti, tg, tt, t3 = vT, vT + 1, vT + 2, vT + 3
    e.ins("v_and_b32 v%d, 15, v%d" % (ti, vL), "valu", V(vL), V(ti))
    e.ins("v_lshrrev_b32 v%d, 4, v%d" % (tg, vL), "valu", V(vL), V(tg))
    e.ins("v_lshlrev_b32 v%d, 4, v%d" % (tt, ti), "valu", V(ti), V(tt))
    e.ins("v_lshl_add_u32 v%d, v%d, 16, v%d" % (vWC, tg, tt), "valu", V(tg) + V(tt), V(vWC))
    for j in range(1, 8):
        e.ins("v_add_u32 v%d, 0x%x, v%d" % (vWC + j, j * 8192, vWC), "valu", V(vWC), V(vWC + j))
    e.ins("v_lshlrev_b32 v%d, 8, v%d" % (vK, ti), "valu", V(ti), V(vK))
    e.ins("v_lshl_add_u32 v%d, v%d, 6, v%d" % (vK, tg, vK), "valu", V(tg) + V(vK), V(vK))
    e.ins("v_lshl_add_u32 v%d, v%d, 10, v%d" % (vV, tg, tt), "valu", V(tg) + V(tt), V(vV))
    e.ins("v_lshlrev_b32 v%d, 4, v%d" % (vSt, vL), "valu", V(vL), V(vSt))
    for slo in range(4):
        e.ins("v_add_u32 v%d, %d, v%d" % (t3, 4 * slo, tg), "valu", V(tg), V(t3))
        e.ins("v_xor_b32 v%d, v%d, v%d" % (t3, t3, ti), "valu", V(t3) + V(ti), V(t3))
        e.ins("v_lshlrev_b32 v%d, 4, v%d" % (t3, t3), "valu", V(t3), V(t3))
        e.ins("v_lshl_add_u32 v%d, v%d, 10, v%d" % (vXr + slo, ti, t3), "valu", V(ti) + V(t3), V(vXr + slo))
    tq, to = vT + 4, vT + 5
    e.ins("v_lshrrev_b32 v%d, 3, v%d" % (tq, vL), "valu", V(vL), V(tq))
    e.ins("v_and_b32 v%d, 7, v%d" % (t3, vL), "valu", V(vL), V(t3))
    e.ins("v_lshlrev_b32 v%d, 7, v%d" % (t3, t3), "valu", V(t3), V(t3))
    e.ins("v_lshl_add_u32 v%d, v%d, 13, v%d" % (tq, tq, t3), "valu", V(tq) + V(t3), V(tq))
    e.ins("v_lshlrev_b32 v%d, 7, v%d" % (to, vL), "valu", V(vL), V(to))
    e.salu("s_waitcnt lgkmcnt(0)")
    e.salu("s_cmp_eq_u32 s%d, 0" % sBR)
    e.salu("s_cselect_b64 s[%d:%d], s[16:17], s[26:27]" % (SRD_X, SRD_X + 1))
    e.salu("s_cselect_b64 s[%d:%d], s[18:19], s[28:29]" % (SRD_K, SRD_K + 1))
    e.salu("s_cselect_b64 s[%d:%d], s[20:21], s[30:31]" % (SRD_V, SRD_V + 1))
    e.salu("s_cselect_b64 s[%d:%d], s[22:23], s[32:33]" % (SRD_WQ, SRD_WQ + 1))
    e.salu("s_cselect_b64 s[%d:%d], s[24:25], s[34:35]" % (SRD_WO, SRD_WO + 1))
    e.salu("s_cselect_b64 s[%d:%d], s[22:23], s[32:33]" % (SRD_WC, SRD_WC + 1))
    e.salu("s_mov_b64 s[%d:%d], s[36:37]" % (SRD_WS, SRD_WS + 1))
    for base, size in ((SRD_X, 1 << 20), (SRD_K, 8 << 20), (SRD_V, 8 << 20), (SRD_WQ, 4 << 20), (SRD_WO, 4 << 20), (SRD_WS, 32 << 20), (SRD_WC, 4 << 20)):
        e.salu("s_mov_b32 s%d, 0x%x" % (base + 2, size))
        e.salu("s_mov_b32 s%d, 0x00020000" % (base + 3))
    if NOW:
        e.salu("s_mov_b32 s%d, 0" % (SRD_WC + 2))
    e.salu("s_lshl_b32 s%d, s%d, 2" % (sH, sHG))
    e.salu("s_add_u32 s%d, s%d, s%d" % (sH, sH, sW))
    e.salu("s_lshl_b32 s%d, s%d, 8" % (sWCo, sH))
    e.salu("s_mov_b32 s%d, 0x40000" % sWCinc)
    e.salu("s_lshl_b32 s%d, s%d, 19" % (sWOo, sHG))
    e.salu("s_lshl_b32 s3, s%d, 8" % sW)
    e.salu("s_add_u32 s%d, s%d, s3" % (sWOo, sWOo))
    e.salu("s_lshl_b32 s3, s%d, 6" % sRB)
    e.salu("s_add_u32 s3, s3, s%d" % sH)
    e.salu("s_lshl_b32 s%d, s3, 13" % sKV)
    e.salu("s_add_u32 s%d, s%d, 0x1000" % (sKV + 1, sKV))
    e.salu("s_add_u32 s%d, s%d, 0x40000" % (sKV + 2, sKV))
    e.salu("s_add_u32 s%d, s%d, 0x41000" % (sKV + 3, sKV))
    e.salu("s_lshl_b32 s%d, s%d, 16" % (sXo, sRB))
    e.salu("s_lshl_b32 s3, s%d, 14" % sW)
    e.salu("s_add_u32 s%d, s%d, s3" % (sXo, sXo))
    e.salu("s_lshl_b32 s3, s%d, 4" % sBR)
    e.salu("s_add_u32 s3, s3, s%d" % sRB)
    e.salu("s_lshl_b32 s3, s3, 3")
    e.salu("s_add_u32 s3, s3, s%d" % sHG)
    e.salu("s_lshl_b32 s3, s3, 2")
    e.salu("s_add_u32 s3, s3, s%d" % sW)
    e.salu("s_lshl_b32 s%d, s3, 15" % sSt)
    e.salu("s_lshl_b32 s13, s%d, 2" % sRB)
    e.salu("s_add_u32 s13, s13, s%d" % sW)
    e.salu("s_lshl_b32 s14, s13, 16")
    e.salu("s_lshl_b32 s3, s%d, 10" % sHG)
    e.salu("s_add_u32 s14, s14, s3")
    if WOQ:
        e.salu("s_mov_b64 s[%d:%d], s[%d:%d]" % (SRD_WC, SRD_WC + 1, SRD_WO, SRD_WO + 1))
        e.salu("s_mov_b32 s%d, s%d" % (sWCo, sWOo))
        e.salu("s_mov_b32 s%d, 0x8000" % sWCinc)
        e.ins("v_lshl_add_u32 v%d, v%d, 13, v%d" % (vWC, tg, tt), "valu", V(tg) + V(tt), V(vWC))
        for j in range(1, 8):
            e.ins("v_add_u32 v%d, 0x%x, v%d" % (vWC + j, j * 1024, vWC), "valu", V(vWC), V(vWC + j))
    if ETOUCH:
        e.ins("buffer_load_dword v%d, v%d, %s, s14 offen%s" % (vT + 6, tq, srd(SRD_WQ), TNT), "vload", V(tq), V(vT + 6), tag="touch")
    if TLB:
        tz = vT + 10
        e.ins("v_mov_b32 v%d, 0" % tz, "valu", (), V(tz))
        k = 0
        for srdn, so in ((SRD_K, sKV), (SRD_K, sKV + 2), (SRD_V, sKV), (SRD_V, sKV + 2), (SRD_WO, sWOo), (SRD_WS, sSt)):
            e.ins("buffer_load_dword v%d, v%d, %s, s%d offen" % (vFRAG + k, tz, srd(srdn), so), "vload", V(tz), V(vFRAG + k), tag="tlb")
            k += 1
    xa = vOw
    xv = vT + 9
    def xq_load(q):
        for n in range(4):
            d = vVRAW + q * 16 + n * 4
            e.salu("s_add_u32 s3, s%d, %d" % (sXo, n * 4096))
            e.ins("buffer_load_dwordx4 %s, v%d, %s, s3 offen offset:%d%s" % (vr(d, 4), xv, srd(SRD_X), q * 256, XNT),
                  "vload", V(xv), V(d, 4), tag=("x", q))
    def xq_write(q):
        e.wait_vm(("x", q))
        for n in range(4):
            d = vVRAW + q * 16 + n * 4
            e.ins("ds_write_b128 v%d, %s offset:%d" % (xa + n, vr(d, 4), n * 4096 + q * 256), "dswrite", V(xa + n) + V(d, 4), (), tag="xw")
    if XQ:
        e.ins("v_lshl_add_u32 v%d, v%d, 10, v%d" % (xv, tg, tt), "valu", V(tg) + V(tt), V(xv))
        e.ins("v_xor_b32 v%d, v%d, v%d" % (t3, ti, tg), "valu", V(ti) + V(tg), V(t3))
        e.ins("v_lshlrev_b32 v%d, 4, v%d" % (t3, t3), "valu", V(t3), V(t3))
        e.ins("v_lshl_add_u32 v%d, v%d, 10, v%d" % (t3, tg, t3), "valu", V(tg) + V(t3), V(t3))
        e.salu("s_lshl_b32 s3, s%d, 14" % sW)
        e.ins("v_add_u32 v%d, s3, v%d" % (xa, t3), "valu", V(t3), V(xa))
        for n in range(1, 4):
            e.ins("v_xor_b32 v%d, %d, v%d" % (xa + n, n * 64, xa), "valu", V(xa), V(xa + n))
        xq_load(0)
        xq_load(1)
    else:
      for r in range(16):
        if r and r % 4 == 0:
            e.salu("s_add_u32 s%d, s%d, 0x1000" % (sXo, sXo))
        d = vVRAW + 4 * r
        e.ins("buffer_load_dwordx4 %s, v%d, %s, s%d offen offset:%d%s" % (vr(d, 4), vSt, srd(SRD_X), sXo, (r % 4) * 1024, XNT),
              "vload", V(vSt), V(d, 4), tag="x")

    def wloads(t):
        out = []
        buf = vRAW + (t % D) * 32
        for j in range(8):
            d = buf + 4 * j
            def f(d=d, j=j):
                e.ins("buffer_load_dwordx4 %s, v%d, %s, s%d offen%s" % (vr(d, 4), vWC + j, srd(SRD_WC), sWCo, WNT),
                      "vload", V(vWC + j), V(d, 4), tag=("w", t))
            out.append(f)
        out.append(lambda: e.salu("s_add_u32 s%d, s%d, s%d" % (sWCo, sWCo, sWCinc)))
        return out

    for t in range(PRE):
        for f in wloads(t):
            f()
    if XQ:
        xq_load(2)
        xq_load(3)

    nt = " nt" if KVNT else ""

    def kv_burst(idx):
        if NOKV:
            return
        bb, isv = idx // 2, idx % 2
        for n in range(8):
            if not isv:
                kt, sp = n // 4, n % 4
                d = aKF + bb * 32 + (kt * 4 + sp) * 4
                e.ins("buffer_load_dwordx4 %s, v%d, %s, s%d offen offset:%d%s" % (ar(d, 4), vK, srd(SRD_K), sKV + bb * 2 + kt, sp * 16, nt),
                      "vload", V(vK), A(d, 4), tag=("kv", bb, 0))
            else:
                d = vVRAW + bb * 32 + n * 4
                e.ins("buffer_load_dwordx4 %s, v%d, %s, s%d offen offset:%d%s" % (vr(d, 4), vV, srd(SRD_V), sKV + bb * 2 + n // 4, (n % 4) * 256, nt),
                      "vload", V(vV), V(d, 4), tag=("kv", bb, 1))

    def zero_acc():
        if MZ:
            z = vT + 4
            z = vFRAG
            for k in range(4):
                e.ins("v_mov_b32 v%d, 0" % (z + k), "valu", (), V(z + k))
            for k in range(32):
                e.ins("v_mfma_f32_16x16x32_bf16 %s, %s, %s, 0" % (ar(aACC + 4 * k, 4), vr(z, 4), vr(z, 4)), "mfma", V(z, 4), A(aACC + 4 * k, 4))
        else:
            for k in range(128):
                e.ins("v_accvgpr_write_b32 a%d, 0" % (aACC + k), "valu", (), A(aACC + k))
    zero_acc()
    if XQ:
        xq_write(0)
        xq_write(1)
        stamp()
    else:
        tb = vT + 8
        e.ins("v_mov_b32 v%d, s%d" % (tb, sW), "valu", [("s", sW)], V(tb))
        e.ins("v_lshlrev_b32 v%d, 14, v%d" % (tb, tb), "valu", V(tb), V(tb))
        e.wait_vm("x")
        stamp()
        for r in range(16):
            ta = vT + 9 + (r % 2)
            e.ins("v_xor_b32 v%d, %d, v%d" % (ta, r, vL), "valu", V(vL), V(ta))
            e.ins("v_lshl_add_u32 v%d, v%d, 4, v%d" % (ta, ta, tb), "valu", V(ta) + V(tb), V(ta))
            d = vVRAW + 4 * r
            e.ins("ds_write_b128 v%d, %s offset:%d" % (ta, vr(d, 4), r * 1024), "dswrite", V(ta) + V(d, 4), (), tag="xw")
    if PBAR:
        e.wait_lgkm()
        e.salu("s_barrier")
    for t in range(PRE, D):
        for f in wloads(t):
            f()
    if TOUCH and not ETOUCH:
        e.ins("buffer_load_dword v%d, v%d, %s, s14 offen%s" % (vT + 6, tq, srd(SRD_WQ), TNT), "vload", V(tq), V(vT + 6), tag="touch")
    e.salu("s_lshl_b32 s14, s%d, 19" % sHG)
    e.salu("s_lshl_b32 s3, s13, 13")
    e.salu("s_add_u32 s14, s14, s3")
    if not PBAR:
        e.wait_lgkm()
        e.salu("s_barrier")
    if STAG:
        e.salu("s_bitcmp1_b32 s2, %d" % STAGBIT)
        e.salu("s_cbranch_scc1 skip_early_kv")
        for i in range(4):
            kv_burst(i)
        e.label("skip_early_kv")
    elif not LATE:
        kv_burst(0)
        if KVALL:
            kv_burst(1)
            kv_burst(2)
            kv_burst(3)
    stamp()

    def xf_read(u, rb):
        d = aXF + (u % 2) * 16 + rb * 4
        off = rb * 16384 + (256 if u == 4 else 0)
        e.ins("ds_read_b128 %s, v%d offset:%d" % (ar(d, 4), vXr + (u % 4), off), "dsread", V(vXr + (u % 4)), A(d, 4), tag=("xf", u % 4))

    def perm(t, c, p):
        buf = vRAW + (t % D) * 32
        s0 = buf + 4 * (2 * p + 1) + (c >> 1)
        s1 = buf + 4 * (2 * p) + (c >> 1)
        dd = vFRAG + c * 4 + p
        sel = sSelHi if (c & 1) else sSelLo
        e.ins("v_perm_b32 v%d, v%d, v%d, s%d" % (dd, s0, s1, sel), "valu", V(s0) + V(s1), V(dd))

    def phase_entry():
        for rb in range(4):
            xf_read(0, rb)
        e.wait_vm(("w", 0))
        for c in range(8):
            for p in range(4):
                perm(0, c, p)

    def loop_body():
        for u in range(4):
            e.comment("step %d" % u)
            e.wait_lgkm(("xf", u))
            if VO and u == 2:
                e.salu("s_cmp_eq_u32 s%d, 3" % sIt)
                e.salu("s_cselect_b32 s%d, 0, s%d" % (SRD_WC + 2, SRD_WC + 2))
            wl = wloads(u + D)
            m = 0
            for c in range(8):
                for rb in range(4):
                    ac = acc(rb, c)
                    xf = aXF + (u % 2) * 16 + rb * 4
                    e.ins("v_mfma_f32_16x16x32_bf16 %s, %s, %s, %s" % (ar(ac, 4), vr(vFRAG + c * 4, 4), ar(xf, 4), ar(ac, 4)), "mfma",
                          V(vFRAG + c * 4, 4) + A(xf, 4) + A(ac, 4), A(ac, 4), creads=A(ac, 4))
                    if c == 0 and "L" not in DIAG:
                        wl[2 * rb]()
                        wl[2 * rb + 1]()
                        if rb == 3:
                            wl[8]()
                            e.wait_vm(("w", u + 1))
                    if c >= 1 and "P" not in DIAG:
                        perm(u + 1, c - 1, rb)
                    if c == 2 and "X" not in DIAG:
                        xf_read(u + 1, rb)
                    m += 1
            for p in range(4):
                if "P" not in DIAG:
                    perm(u + 1, 7, p)
        for slo in range(4):
            e.ins("v_add_u32 v%d, 0x100, v%d" % (vXr + slo, vXr + slo), "valu", V(vXr + slo), V(vXr + slo))

    e.salu("s_mov_b32 s%d, 0" % sIt)
    phase_entry()
    e.label("gemm_loop")
    e.vm = [("w", 1)] * 8 + [("w", 2)] * 8 + [("w", 3)] * 8
    e.lgkm = [("xf", 0)] * 4
    e.last_w = {}
    e.nop(2)
    loop_body()
    e.salu("s_add_u32 s%d, s%d, 1" % (sIt, sIt))
    e.salu("s_cmp_eq_u32 s%d, 4" % sIt)
    e.salu("s_cbranch_scc1 attention")
    e.salu("s_cmp_eq_u32 s%d, 8" % sIt)
    e.salu("s_cbranch_scc1 epilogue")
    e.salu("s_cmp_eq_u32 s%d, 7" % sIt)
    e.salu("s_cbranch_scc1 it7")
    e.salu("s_cmp_gt_u32 s%d, 4" % sIt)
    e.salu("s_cbranch_scc1 gemm_loop")
    e.salu("s_cmp_eq_u32 s%d, 2" % sIt)
    e.salu("s_cbranch_scc1 it2")
    e.salu("s_cmp_eq_u32 s%d, 3" % sIt)
    e.salu("s_cbranch_scc1 it3")
    e.label("it1")
    if not FUSE:
        stamp()
    if XQ:
        e.lgkm = [("xf", 0)] * 4
        for n in range(4):
            d = vVRAW + 2 * 16 + n * 4
            e.ins("ds_write_b128 v%d, %s offset:%d" % (xa + n, vr(d, 4), n * 4096 + 2 * 256), "dswrite", V(xa + n) + V(d, 4), (), tag="xw")
        e.wait_lgkm()
        e.salu("s_barrier")
    if G4:
        e.salu("s_cmp_lg_u32 s12, 1")
        e.salu("s_cbranch_scc1 g4skip1")
        for i in range(4):
            kv_burst(i)
        e.label("g4skip1")
    if not KVALL and not STAG and not LATE:
        kv_burst(1)
    if TOUCH:
        e.ins("buffer_load_dword v%d, v%d, %s, s14 offen%s" % (vT + 6, to, srd(SRD_WO), TNT), "vload", V(to), V(vT + 6), tag="touch")
    e.salu("s_branch gemm_loop")
    e.label("it2")
    if not FUSE:
        stamp()
    if XQ:
        e.lgkm = [("xf", 0)] * 4
        for n in range(4):
            d = vVRAW + 3 * 16 + n * 4
            e.ins("ds_write_b128 v%d, %s offset:%d" % (xa + n, vr(d, 4), n * 4096 + 3 * 256), "dswrite", V(xa + n) + V(d, 4), (), tag="xw")
        e.wait_lgkm()
        e.salu("s_barrier")
    if G4:
        e.salu("s_cmp_lg_u32 s12, 2")
        e.salu("s_cbranch_scc1 g4skip2")
        for i in range(4):
            kv_burst(i)
        e.label("g4skip2")
    if not KVALL and not STAG and not LATE:
        kv_burst(2)
    e.salu("s_branch gemm_loop")
    e.label("it3")
    if not FUSE:
        stamp()
    if G4:
        e.salu("s_cmp_lg_u32 s12, 3")
        e.salu("s_cbranch_scc1 g4skip3")
        for i in range(4):
            kv_burst(i)
        e.label("g4skip3")
    if not KVALL and not STAG and not LATE:
        kv_burst(3)
    if LATE == 2:
        for i in range(4):
            kv_burst(i)
    e.salu("s_mov_b64 s[%d:%d], s[%d:%d]" % (SRD_WC, SRD_WC + 1, SRD_WO, SRD_WO + 1))
    e.salu("s_mov_b32 s%d, s%d" % (sWCo, sWOo))
    e.salu("s_mov_b32 s%d, 0x8000" % sWCinc)
    e.ins("v_and_b32 v%d, 15, v%d" % (ti, vL), "valu", V(vL), V(ti))
    e.ins("v_lshrrev_b32 v%d, 4, v%d" % (tg, vL), "valu", V(vL), V(tg))
    e.ins("v_lshlrev_b32 v%d, 4, v%d" % (tt, ti), "valu", V(ti), V(tt))
    e.ins("v_lshl_add_u32 v%d, v%d, 13, v%d" % (vWC, tg, tt), "valu", V(tg) + V(tt), V(vWC))
    for j in range(1, 8):
        e.ins("v_add_u32 v%d, 0x%x, v%d" % (vWC + j, j * 1024, vWC), "valu", V(vWC), V(vWC + j))
    e.salu("s_branch gemm_loop")
    e.label("it7")
    e.salu("s_mov_b32 s%d, 0" % (SRD_WC + 2))
    e.salu("s_branch gemm_loop")

    e.label("attention")
    stamp()
    e.last_w = {}
    e.nop(10)
    e.vm = [("w", 1)] * 8 + [("w", 2)] * 8 + [("w", 3)] * 8
    e.lgkm = [("xf", 0)] * 4
    e.wait_lgkm()
    if KLDS:
        e.salu("s_barrier")
        kb0 = vT + 4
        e.ins("v_and_b32 v%d, 15, v%d" % (ti, vL), "valu", V(vL), V(ti))
        e.ins("v_lshrrev_b32 v%d, 4, v%d" % (tg, vL), "valu", V(vL), V(tg))
        e.ins("v_xor_b32 v%d, v%d, v%d" % (t3, ti, tg), "valu", V(ti) + V(tg), V(t3))
        e.ins("v_lshlrev_b32 v%d, 4, v%d" % (t3, t3), "valu", V(t3), V(t3))
        e.ins("v_lshl_add_u32 v%d, v%d, 8, v%d" % (kb0, tg, t3), "valu", V(tg) + V(t3), V(kb0))
        for q in range(1, 4):
            e.ins("v_xor_b32 v%d, %d, v%d" % (kb0 + q, q * 64, kb0), "valu", V(kb0), V(kb0 + q))
        e.salu("s_lshl_b32 s13, s%d, 14" % sW)
        for bb in range(2):
            for n in range(8):
                e.salu("s_add_u32 s14, s13, %d" % (bb * 8192 + n * 1024))
                e.salu("s_add_u32 s3, s%d, %d" % (sKV + bb * 2, n * 1024))
                e.salu("s_mov_b32 m0, s14")
                e.salu("s_nop 0")
                e.ins("buffer_load_dwordx4 v%d, %s, s3 offen%s lds" % (kb0 + n % 4, srd(SRD_K), nt), "vload", V(kb0 + n % 4), (), tag=("kv", bb, 0))
            kv_burst(2 * bb + 1)
    elif LATE == 1:
        if G4:
            e.salu("s_cmp_lg_u32 s12, 0")
            e.salu("s_cbranch_scc1 g4skip0")
        for i in range(4):
            kv_burst(i)
        if G4:
            e.label("g4skip0")
    if STAG:
        e.salu("s_bitcmp1_b32 s2, %d" % STAGBIT)
        e.salu("s_cbranch_scc0 skip_late_kv")
        for i in range(4):
            kv_burst(i)
        e.salu("s_waitcnt vmcnt(0)")
        e.label("skip_late_kv")
        e.vm = []
    e.ins("v_and_b32 v%d, 15, v%d" % (ti, vL), "valu", V(vL), V(ti))
    e.ins("v_lshrrev_b32 v%d, 4, v%d" % (tg, vL), "valu", V(vL), V(tg))
    e.salu("s_lshl_b32 s3, s%d, 8" % sW)
    e.salu("s_add_u32 s3, s3, 0x%x" % LDS_O)
    for r in range(4):
        e.ins("v_lshl_add_u32 v%d, v%d, 2, %d" % (t3, tg, r), "valu", V(tg), V(t3))
        e.ins("v_xor_b32 v%d, v%d, v%d" % (t3, t3, ti), "valu", V(t3) + V(ti), V(t3))
        e.ins("v_lshlrev_b32 v%d, 4, v%d" % (t3, t3), "valu", V(t3), V(t3))
        e.ins("v_lshl_add_u32 v%d, v%d, 10, v%d" % (t3, ti, t3), "valu", V(ti) + V(t3), V(t3))
        e.ins("v_add_u32 v%d, s3, v%d" % (vOw + r, t3), "valu", V(t3), V(vOw + r))
    for slo in range(4):
        e.ins("v_add_u32 v%d, 0x%x, v%d" % (vXr + slo, LDS_O - 1024, vXr + slo), "valu", V(vXr + slo), V(vXr + slo))
    if ILP:
        QF = vFRAG
        def pack8(aregs, dq):
            for k in range(8):
                e.ins("v_accvgpr_read_b32 v%d, a%d" % (vT + k, aregs[k]), "valu", A(aregs[k]), V(vT + k))
            for p in range(4):
                e.ins("v_cvt_pk_bf16_f32 v%d, v%d, v%d" % (dq + p, vT + 2 * p, vT + 2 * p + 1), "valu", V(vT + 2 * p) + V(vT + 2 * p + 1), V(dq + p))
        def softmax_stream(vals, PFq, T):
            L = []
            def I(text, kind, r, w):
                L.append((text, kind, r, w))
            for rnd in range(2):
                for k in range(0, 8, 2):
                    I("v_cvt_pk_bf16_f32 v%d, v%d, v%d" % (T + k // 2, vals[k], vals[k + 1]), "valu", V(vals[k]) + V(vals[k + 1]), V(T + k // 2))
                for k in range(0, 8, 2):
                    I("v_lshlrev_b32 v%d, 16, v%d" % (vals[k], T + k // 2), "valu", V(T + k // 2), V(vals[k]))
                    I("v_and_b32 v%d, s%d, v%d" % (vals[k + 1], sMask, T + k // 2), "valu", V(T + k // 2), V(vals[k + 1]))
                if rnd == 0:
                    for x in vals:
                        I("v_mul_f32 v%d, s%d, v%d" % (x, sScale, x), "valu", V(x), V(x))
            mx, m2 = T, T + 1
            I("v_max3_f32 v%d, v%d, v%d, v%d" % (mx, vals[0], vals[1], vals[2]), "valu", V(vals[0]) + V(vals[1]) + V(vals[2]), V(mx))
            I("v_max3_f32 v%d, v%d, v%d, v%d" % (m2, vals[3], vals[4], vals[5]), "valu", V(vals[3]) + V(vals[4]) + V(vals[5]), V(m2))
            I("v_max3_f32 v%d, v%d, v%d, v%d" % (mx, mx, vals[6], vals[7]), "valu", V(mx) + V(vals[6]) + V(vals[7]), V(mx))
            I("v_max_f32 v%d, v%d, v%d" % (mx, mx, m2), "valu", V(mx) + V(m2), V(mx))
            for sw in ("v_permlane16_swap_b32", "v_permlane32_swap_b32"):
                I("v_mov_b32 v%d, v%d" % (m2, mx), "valu", V(mx), V(m2))
                I("%s v%d, v%d" % (sw, mx, m2), "permlane", V(mx) + V(m2), V(mx) + V(m2))
                I("v_max_f32 v%d, v%d, v%d" % (mx, mx, m2), "valu", V(mx) + V(m2), V(mx))
            for x in vals:
                I("v_sub_f32 v%d, v%d, v%d" % (x, x, mx), "valu", V(x) + V(mx), V(x))
            for x in vals:
                I("v_mul_f32 v%d, s%d, v%d" % (x, sLog2e, x), "valu", V(x), V(x))
            for x in vals:
                I("v_exp_f32 v%d, v%d" % (x, x), "trans", V(x), V(x))
            sm, s2_, s3_, s4_ = T, T + 1, T + 2, T + 3
            I("v_add_f32 v%d, v%d, v%d" % (sm, vals[0], vals[1]), "valu", V(vals[0]) + V(vals[1]), V(sm))
            I("v_add_f32 v%d, v%d, v%d" % (s2_, vals[2], vals[3]), "valu", V(vals[2]) + V(vals[3]), V(s2_))
            I("v_add_f32 v%d, v%d, v%d" % (s3_, vals[4], vals[5]), "valu", V(vals[4]) + V(vals[5]), V(s3_))
            I("v_add_f32 v%d, v%d, v%d" % (s4_, vals[6], vals[7]), "valu", V(vals[6]) + V(vals[7]), V(s4_))
            I("v_add_f32 v%d, v%d, v%d" % (sm, sm, s2_), "valu", V(sm) + V(s2_), V(sm))
            I("v_add_f32 v%d, v%d, v%d" % (s3_, s3_, s4_), "valu", V(s3_) + V(s4_), V(s3_))
            I("v_add_f32 v%d, v%d, v%d" % (sm, sm, s3_), "valu", V(sm) + V(s3_), V(sm))
            for sw in ("v_permlane16_swap_b32", "v_permlane32_swap_b32"):
                I("v_mov_b32 v%d, v%d" % (s2_, sm), "valu", V(sm), V(s2_))
                I("%s v%d, v%d" % (sw, sm, s2_), "permlane", V(sm) + V(s2_), V(sm) + V(s2_))
                I("v_add_f32 v%d, v%d, v%d" % (sm, sm, s2_), "valu", V(sm) + V(s2_), V(sm))
            I("v_rcp_f32 v%d, v%d" % (sm, sm), "trans", V(sm), V(sm))
            for x in vals:
                I("v_mul_f32 v%d, v%d, v%d" % (x, x, sm), "valu", V(x) + V(sm), V(x))
            for p in range(4):
                I("v_cvt_pk_bf16_f32 v%d, v%d, v%d" % (PFq + p, vals[2 * p], vals[2 * p + 1]), "valu", V(vals[2 * p]) + V(vals[2 * p + 1]), V(PFq + p))
            return L
        for bb in range(2):
            vb = vVRAW + bb * 32
            for qt in range(2):
                rb = 2 * bb + qt
                for sp in range(4):
                    pack8([acc(rb, c) + sp for c in range(8)], QF + (qt * 4 + sp) * 4)
            e.wait_vm(("kv", bb, 0))
            OV = vRAW + 64
            if VO and bb == 0:
                e.salu("s_waitcnt vmcnt(0)")
                e.vm = []
            for sp in range(4):
                for kt in range(2):
                    for qt in range(2):
                        kf = aKF + bb * 32 + (kt * 4 + sp) * 4
                        qf = QF + (qt * 4 + sp) * 4
                        if VO:
                            sd = OV + qt * 8 + kt * 4
                            if sp == 0:
                                e.ins("v_mfma_f32_16x16x32_bf16 %s, %s, %s, 0" % (vr(sd, 4), ar(kf, 4), vr(qf, 4)), "mfma",
                                      A(kf, 4) + V(qf, 4), V(sd, 4))
                            else:
                                e.ins("v_mfma_f32_16x16x32_bf16 %s, %s, %s, %s" % (vr(sd, 4), ar(kf, 4), vr(qf, 4), vr(sd, 4)), "mfma",
                                      A(kf, 4) + V(qf, 4) + V(sd, 4), V(sd, 4), creads=V(sd, 4))
                            continue
                        sd = aS + (kt * 2 + qt) * 4
                        if sp == 0:
                            e.ins("v_mfma_f32_16x16x32_bf16 %s, %s, %s, 0" % (ar(sd, 4), ar(kf, 4), vr(qf, 4)), "mfma",
                                  A(kf, 4) + V(qf, 4), A(sd, 4))
                        else:
                            e.ins("v_mfma_f32_16x16x32_bf16 %s, %s, %s, %s" % (ar(sd, 4), ar(kf, 4), vr(qf, 4), ar(sd, 4)), "mfma",
                                  A(kf, 4) + V(qf, 4) + A(sd, 4), A(sd, 4), creads=A(sd, 4))
            e.wait_vm(("kv", bb, 1))
            for c in range(8):
                for p in range(4):
                    s0 = vb + 4 * (2 * p + 1) + (c >> 1)
                    s1 = vb + 4 * (2 * p) + (c >> 1)
                    dd = QF + c * 4 + p
                    sel = sSelHi if (c & 1) else sSelLo
                    e.ins("v_perm_b32 v%d, v%d, v%d, s%d" % (dd, s0, s1, sel), "valu", V(s0) + V(s1), V(dd))
            SV = vb
            PF = vb + 16
            TT = vb + 24
            if VO:
                SS_ = OV
            else:
                SS_ = SV
                for qt in range(2):
                    for kt in range(2):
                        for r in range(4):
                            a_ = aS + (kt * 2 + qt) * 4 + r
                            d_ = SV + qt * 8 + kt * 4 + r
                            e.ins("v_accvgpr_read_b32 v%d, a%d" % (d_, a_), "valu", A(a_), V(d_))
            s0l = softmax_stream([SS_ + k for k in range(8)], PF, TT)
            s1l = softmax_stream([SS_ + 8 + k for k in range(8)], PF + 4, TT + 4)
            for x, y in zip(s0l, s1l):
                e.ins(*x)
                e.ins(*y)
            for qt in range(2):
                for c in range(8):
                    if VO:
                        od = OV + (qt * 8 + c) * 4
                        e.ins("v_mfma_f32_16x16x32_bf16 %s, %s, %s, 0" % (vr(od, 4), vr(QF + c * 4, 4), vr(PF + qt * 4, 4)), "mfma",
                              V(QF + c * 4, 4) + V(PF + qt * 4, 4), V(od, 4))
                        continue
                    ac = acc(2 * bb + qt, c)
                    e.ins("v_mfma_f32_16x16x32_bf16 %s, %s, %s, 0" % (ar(ac, 4), vr(QF + c * 4, 4), vr(PF + qt * 4, 4)), "mfma",
                          V(QF + c * 4, 4) + V(PF + qt * 4, 4), A(ac, 4))
            n = 0
            for qt in range(2):
                for r in range(4):
                    dq = SV + (n % 4) * 4
                    n += 1
                    if VO:
                        for p in range(4):
                            o0 = OV + (qt * 8 + 2 * p) * 4 + r
                            o1 = OV + (qt * 8 + 2 * p + 1) * 4 + r
                            e.ins("v_cvt_pk_bf16_f32 v%d, v%d, v%d" % (dq + p, o0, o1), "valu", V(o0) + V(o1), V(dq + p))
                    else:
                        pack8([acc(2 * bb + qt, c) + r for c in range(8)], dq)
                    e.ins("ds_write_b128 v%d, %s offset:%d" % (vOw + r, vr(dq, 4), (32 * bb + 16 * qt) * 1024), "dswrite",
                          V(vOw + r) + V(dq, 4), (), tag="ow")
    else:
        QF = vFRAG
        for bb in range(2):
            vb = vVRAW + bb * 32
            for qt in range(2):
                rb = 2 * bb + qt
                for sp in range(4):
                    for p in range(4):
                        t0 = vT + (p % 2) * 2
                        t1 = t0 + 1
                        a0 = acc(rb, 2 * p) + sp
                        a1 = acc(rb, 2 * p + 1) + sp
                        e.ins("v_accvgpr_read_b32 v%d, a%d" % (t0, a0), "valu", A(a0), V(t0))
                        e.ins("v_accvgpr_read_b32 v%d, a%d" % (t1, a1), "valu", A(a1), V(t1))
                        dd = QF + (qt * 4 + sp) * 4 + p
                        e.ins("v_cvt_pk_bf16_f32 v%d, v%d, v%d" % (dd, t0, t1), "valu", V(t0) + V(t1), V(dd))
            e.wait_vm(("kv", bb, 0))
            if KLDS:
                e.salu("s_lshl_b32 s3, s%d, 14" % sW)
                ki, kg = vT + 8, vT + 9
                e.ins("v_and_b32 v%d, 15, v%d" % (ki, vL), "valu", V(vL), V(ki))
                e.ins("v_lshrrev_b32 v%d, 4, v%d" % (kg, vL), "valu", V(vL), V(kg))
                for sp in range(4):
                    ka = vT + 4 + (sp % 2)
                    e.ins("v_lshl_add_u32 v%d, v%d, 2, %d" % (ka, kg, sp), "valu", V(kg), V(ka))
                    e.ins("v_xor_b32 v%d, v%d, v%d" % (ka, ka, ki), "valu", V(ka) + V(ki), V(ka))
                    e.ins("v_lshlrev_b32 v%d, 4, v%d" % (ka, ka), "valu", V(ka), V(ka))
                    e.ins("v_lshl_add_u32 v%d, v%d, 8, v%d" % (ka, ki, ka), "valu", V(ki) + V(ka), V(ka))
                    e.ins("v_add_u32 v%d, s3, v%d" % (ka, ka), "valu", V(ka), V(ka))
                    for kt in range(2):
                        d = aKF + bb * 32 + (kt * 4 + sp) * 4
                        e.ins("ds_read_b128 %s, v%d offset:%d" % (ar(d, 4), ka, bb * 8192 + kt * 4096), "dsread", V(ka), A(d, 4), tag="kf")
                e.wait_lgkm()
            for sp in range(4):
                for kt in range(2):
                    for qt in range(2):
                        sd = aS + (kt * 2 + qt) * 4
                        kf = aKF + bb * 32 + (kt * 4 + sp) * 4
                        qf = QF + (qt * 4 + sp) * 4
                        if sp == 0:
                            e.ins("v_mfma_f32_16x16x32_bf16 %s, %s, %s, 0" % (ar(sd, 4), ar(kf, 4), vr(qf, 4)), "mfma",
                                  A(kf, 4) + V(qf, 4), A(sd, 4))
                        else:
                            e.ins("v_mfma_f32_16x16x32_bf16 %s, %s, %s, %s" % (ar(sd, 4), ar(kf, 4), vr(qf, 4), ar(sd, 4)), "mfma",
                                  A(kf, 4) + V(qf, 4) + A(sd, 4), A(sd, 4), creads=A(sd, 4))
            e.wait_vm(("kv", bb, 1))
            for c in range(8):
                for p in range(4):
                    s0 = vb + 4 * (2 * p + 1) + (c >> 1)
                    s1 = vb + 4 * (2 * p) + (c >> 1)
                    dd = QF + c * 4 + p
                    sel = sSelHi if (c & 1) else sSelLo
                    e.ins("v_perm_b32 v%d, v%d, v%d, s%d" % (dd, s0, s1, sel), "valu", V(s0) + V(s1), V(dd))
            SV = vb
            PF = vb + 16
            TT = vb + 24
            for qt in range(2):
                for kt in range(2):
                    for r in range(4):
                        a_ = aS + (kt * 2 + qt) * 4 + r
                        d_ = SV + qt * 8 + kt * 4 + r
                        e.ins("v_accvgpr_read_b32 v%d, a%d" % (d_, a_), "valu", A(a_), V(d_))
            for qt in range(2):
                vals = [SV + qt * 8 + k for k in range(8)]
                for rnd in range(2):
                    for k in range(0, 8, 2):
                        x0, x1 = vals[k], vals[k + 1]
                        tp = TT
                        e.ins("v_cvt_pk_bf16_f32 v%d, v%d, v%d" % (tp, x0, x1), "valu", V(x0) + V(x1), V(tp))
                        e.ins("v_lshlrev_b32 v%d, 16, v%d" % (x0, tp), "valu", V(tp), V(x0))
                        e.ins("v_and_b32 v%d, s%d, v%d" % (x1, sMask, tp), "valu", V(tp), V(x1))
                        if rnd == 0:
                            e.ins("v_mul_f32 v%d, s%d, v%d" % (x0, sScale, x0), "valu", V(x0), V(x0))
                            e.ins("v_mul_f32 v%d, s%d, v%d" % (x1, sScale, x1), "valu", V(x1), V(x1))
                mx, m2 = TT + 1, TT + 2
                e.ins("v_max3_f32 v%d, v%d, v%d, v%d" % (mx, vals[0], vals[1], vals[2]), "valu", V(vals[0]) + V(vals[1]) + V(vals[2]), V(mx))
                e.ins("v_max3_f32 v%d, v%d, v%d, v%d" % (mx, mx, vals[3], vals[4]), "valu", V(mx) + V(vals[3]) + V(vals[4]), V(mx))
                e.ins("v_max3_f32 v%d, v%d, v%d, v%d" % (mx, mx, vals[5], vals[6]), "valu", V(mx) + V(vals[5]) + V(vals[6]), V(mx))
                e.ins("v_max_f32 v%d, v%d, v%d" % (mx, mx, vals[7]), "valu", V(mx) + V(vals[7]), V(mx))
                for sw in ("v_permlane16_swap_b32", "v_permlane32_swap_b32"):
                    e.ins("v_mov_b32 v%d, v%d" % (m2, mx), "valu", V(mx), V(m2))
                    e.ins("%s v%d, v%d" % (sw, mx, m2), "permlane", V(mx) + V(m2), V(mx) + V(m2))
                    e.ins("v_max_f32 v%d, v%d, v%d" % (mx, mx, m2), "valu", V(mx) + V(m2), V(mx))
                for x in vals:
                    e.ins("v_sub_f32 v%d, v%d, v%d" % (x, x, mx), "valu", V(x) + V(mx), V(x))
                for x in vals:
                    e.ins("v_mul_f32 v%d, s%d, v%d" % (x, sLog2e, x), "valu", V(x), V(x))
                for x in vals:
                    e.ins("v_exp_f32 v%d, v%d" % (x, x), "trans", V(x), V(x))
                sm, s2_ = TT + 3, TT + 4
                e.ins("v_add_f32 v%d, v%d, v%d" % (sm, vals[0], vals[1]), "valu", V(vals[0]) + V(vals[1]), V(sm))
                e.ins("v_add_f32 v%d, v%d, v%d" % (s2_, vals[2], vals[3]), "valu", V(vals[2]) + V(vals[3]), V(s2_))
                e.ins("v_add_f32 v%d, v%d, v%d" % (sm, sm, s2_), "valu", V(sm) + V(s2_), V(sm))
                e.ins("v_add_f32 v%d, v%d, v%d" % (s2_, vals[4], vals[5]), "valu", V(vals[4]) + V(vals[5]), V(s2_))
                e.ins("v_add_f32 v%d, v%d, v%d" % (sm, sm, s2_), "valu", V(sm) + V(s2_), V(sm))
                e.ins("v_add_f32 v%d, v%d, v%d" % (s2_, vals[6], vals[7]), "valu", V(vals[6]) + V(vals[7]), V(s2_))
                e.ins("v_add_f32 v%d, v%d, v%d" % (sm, sm, s2_), "valu", V(sm) + V(s2_), V(sm))
                for sw in ("v_permlane16_swap_b32", "v_permlane32_swap_b32"):
                    e.ins("v_mov_b32 v%d, v%d" % (s2_, sm), "valu", V(sm), V(s2_))
                    e.ins("%s v%d, v%d" % (sw, sm, s2_), "permlane", V(sm) + V(s2_), V(sm) + V(s2_))
                    e.ins("v_add_f32 v%d, v%d, v%d" % (sm, sm, s2_), "valu", V(sm) + V(s2_), V(sm))
                e.ins("v_rcp_f32 v%d, v%d" % (sm, sm), "trans", V(sm), V(sm))
                for x in vals:
                    e.ins("v_mul_f32 v%d, v%d, v%d" % (x, x, sm), "valu", V(x) + V(sm), V(x))
                for p in range(4):
                    dd = PF + qt * 4 + p
                    e.ins("v_cvt_pk_bf16_f32 v%d, v%d, v%d" % (dd, vals[2 * p], vals[2 * p + 1]), "valu", V(vals[2 * p]) + V(vals[2 * p + 1]), V(dd))
            for qt in range(2):
                for c in range(8):
                    ac = acc(2 * bb + qt, c)
                    e.ins("v_mfma_f32_16x16x32_bf16 %s, %s, %s, 0" % (ar(ac, 4), vr(QF + c * 4, 4), vr(PF + qt * 4, 4)), "mfma",
                          V(QF + c * 4, 4) + V(PF + qt * 4, 4), A(ac, 4))
            n = 0
            for qt in range(2):
                for r in range(4):
                    dq = SV + (n % 4) * 4
                    n += 1
                    for p in range(4):
                        t0 = vT + (p % 2) * 2
                        t1 = t0 + 1
                        a0 = acc(2 * bb + qt, 2 * p) + r
                        a1 = acc(2 * bb + qt, 2 * p + 1) + r
                        e.ins("v_accvgpr_read_b32 v%d, a%d" % (t0, a0), "valu", A(a0), V(t0))
                        e.ins("v_accvgpr_read_b32 v%d, a%d" % (t1, a1), "valu", A(a1), V(t1))
                        e.ins("v_cvt_pk_bf16_f32 v%d, v%d, v%d" % (dq + p, t0, t1), "valu", V(t0) + V(t1), V(dq + p))
                    e.ins("ds_write_b128 v%d, %s offset:%d" % (vOw + r, vr(dq, 4), (32 * bb + 16 * qt) * 1024), "dswrite",
                          V(vOw + r) + V(dq, 4), (), tag="ow")
    zero_acc()
    if VO:
        e.salu("s_mov_b32 s%d, 0x400000" % (SRD_WC + 2))
        e.salu("s_add_u32 s%d, s%d, 0x10000" % (sWCo, sWOo))
        for t in (2, 3):
            for f in wloads(t):
                f()
    e.wait_lgkm()
    stamp()
    e.salu("s_barrier")
    stamp()
    for rb in range(4):
        xf_read(0, rb)
    for c in range(8):
        for p in range(4):
            perm(0, c, p)
    e.salu("s_branch gemm_loop")

    e.label("epilogue")
    stamp()
    e.last_w = {}
    e.nop(10)
    n = 0
    if BFP:
        e.salu("s_lshr_b32 s%d, s%d, 1" % (sSt, sSt))
        for rb in range(4):
            for r in range(4):
                if n and n % 4 == 0:
                    e.salu("s_add_u32 s%d, s%d, 0x1000" % (sSt, sSt))
                dq = vRAW + (n % 8) * 4
                for p in range(4):
                    t0 = vT + (p % 2) * 2
                    t1 = t0 + 1
                    a0 = acc(rb, 2 * p) + r
                    a1 = acc(rb, 2 * p + 1) + r
                    e.ins("v_accvgpr_read_b32 v%d, a%d" % (t0, a0), "valu", A(a0), V(t0))
                    e.ins("v_accvgpr_read_b32 v%d, a%d" % (t1, a1), "valu", A(a1), V(t1))
                    e.ins("v_cvt_pk_bf16_f32 v%d, v%d, v%d" % (dq + p, t0, t1), "valu", V(t0) + V(t1), V(dq + p))
                e.ins("buffer_store_dwordx4 %s, v%d, %s, s%d offen offset:%d%s" % (vr(dq, 4), vSt, srd(SRD_WS), sSt, (n % 4) * 1024, STF),
                      "vstore", V(dq, 4) + V(vSt), (), tag="st")
                n += 1
    else:
      for rb in range(4):
        for c in range(8):
            if n and n % 4 == 0:
                e.salu("s_add_u32 s%d, s%d, 0x1000" % (sSt, sSt))
            ac = acc(rb, c)
            e.ins("buffer_store_dwordx4 %s, v%d, %s, s%d offen offset:%d%s" % (ar(ac, 4), vSt, srd(SRD_WS), sSt, (n % 4) * 1024, STF),
                  "vstore", A(ac, 4) + V(vSt), (), tag="st")
            n += 1
    if FUSE:
        SRD_D, SRD_O = SRD_X, SRD_K
        e.salu("s_waitcnt vmcnt(0)")
        stamp()
        e.salu("s_barrier")
        e.salu("s_mov_b32 s%d, s38" % SRD_D)
        e.salu("s_mov_b32 s%d, s39" % (SRD_D + 1))
        e.salu("s_mov_b32 s%d, 256" % (SRD_D + 2))
        e.salu("s_mov_b32 s%d, s98" % SRD_O)
        e.salu("s_mov_b32 s%d, s99" % (SRD_O + 1))
        e.salu("s_mov_b32 s%d, 0x200000" % (SRD_O + 2))
        e.salu("s_lshl_b32 s13, s%d, 4" % sBR)
        e.salu("s_add_u32 s13, s13, s%d" % sRB)
        e.salu("s_lshl_b32 s14, 1, s%d" % sHG)
        e.salu("s_cmp_lg_u32 s%d, 0" % sW)
        e.salu("s_cbranch_scc1 f_wait")
        e.salu("s_mov_b64 exec, 1")
        e.raw("v_mov_b32 v3, s13")
        e.raw("v_lshlrev_b32 v3, 2, v3")
        e.raw("v_mov_b32 v2, 1")
        e.raw("buffer_atomic_add v2, v3, s[%d:%d], 0 offen sc0 sc1" % (SRD_D, SRD_D + 3))
        e.salu("s_waitcnt vmcnt(0)")
        e.raw("v_readfirstlane_b32 s15, v2")
        e.salu("s_nop 3")
        e.salu("s_cmp_eq_u32 s15, 7")
        e.salu("s_cbranch_scc1 f_last")
        e.salu("s_mov_b32 s3, 0")
        e.label("f_spin")
        e.salu("s_sleep 4")
        e.raw("v_mov_b32 v2, 0")
        e.raw("buffer_atomic_add v2, v3, s[%d:%d], 0 offen sc0 sc1" % (SRD_D, SRD_D + 3))
        e.salu("s_waitcnt vmcnt(0)")
        e.raw("v_readfirstlane_b32 s15, v2")
        e.salu("s_nop 3")
        e.salu("s_cmp_eq_u32 s15, 8")
        e.salu("s_cbranch_scc1 f_decided")
        e.salu("s_add_u32 s3, s3, 1")
        e.salu("s_cmp_lt_u32 s3, %d" % SPIN)
        e.salu("s_cbranch_scc1 f_spin")
        e.raw("v_mov_b32 v2, s14")
        e.raw("buffer_atomic_or v2, v3, s[%d:%d], 0 offen offset:128 sc0 sc1" % (SRD_D, SRD_D + 3))
        e.salu("s_waitcnt vmcnt(0)")
        e.raw("v_mov_b32 v2, 0")
        e.raw("buffer_atomic_add v2, v3, s[%d:%d], 0 offen sc0 sc1" % (SRD_D, SRD_D + 3))
        e.salu("s_waitcnt vmcnt(0)")
        e.raw("v_readfirstlane_b32 s15, v2")
        e.salu("s_nop 3")
        e.salu("s_cmp_eq_u32 s15, 8")
        e.salu("s_cbranch_scc1 f_decided")
        e.salu("s_mov_b32 s14, 0")
        e.salu("s_branch f_decided")
        e.label("f_last")
        e.raw("v_mov_b32 v2, 0")
        e.raw("buffer_atomic_or v2, v3, s[%d:%d], 0 offen offset:128 sc0 sc1" % (SRD_D, SRD_D + 3))
        e.salu("s_waitcnt vmcnt(0)")
        e.raw("v_readfirstlane_b32 s15, v2")
        e.salu("s_nop 3")
        e.salu("s_or_b32 s14, s14, s15")
        e.label("f_decided")
        e.raw("v_mov_b32 v2, s14")
        e.raw("v_mov_b32 v3, 0")
        e.raw("ds_write_b32 v3, v2")
        e.salu("s_waitcnt lgkmcnt(0)")
        e.salu("s_mov_b64 exec, -1")
        e.label("f_wait")
        e.salu("s_barrier")
        stamp()
        e.raw("v_mov_b32 v3, 0")
        e.raw("ds_read_b32 v2, v3")
        e.salu("s_waitcnt lgkmcnt(0)")
        e.raw("v_readfirstlane_b32 s14, v2")
        e.raw("v_and_b32 v4, 15, v%d" % vL)
        e.raw("v_lshrrev_b32 v5, 4, v%d" % vL)
        e.raw("v_lshlrev_b32 v5, 6, v5")
        e.raw("v_lshl_add_u32 v4, v4, 11, v5")
        e.label("f_loop")
        e.salu("s_cmp_eq_u32 s14, 0")
        e.salu("s_cbranch_scc1 f_end")
        e.salu("s_ff1_i32_b32 s15, s14")
        e.salu("s_bitset0_b32 s14, s15")
        e.salu("s_lshr_b32 s20, s15, 1")
        e.salu("s_and_b32 s21, s15, 1")
        e.salu("s_lshl_b32 s21, s21, 1")
        e.salu("s_lshr_b32 s22, s%d, 1" % sW)
        e.salu("s_add_u32 s21, s21, s22")
        e.salu("s_and_b32 s22, s%d, 1" % sW)
        e.salu("s_lshl_b32 s25, s13, 5")
        e.salu("s_add_u32 s25, s25, s20")
        e.salu("s_lshl_b32 s25, s25, 15")
        e.salu("s_lshl_b32 s26, s21, 13")
        e.salu("s_add_u32 s25, s25, s26")
        e.salu("s_lshl_b32 s26, s22, 12")
        e.salu("s_add_u32 s25, s25, s26")
        e.salu("s_lshl_b32 s27, s%d, 17" % sRB)
        e.salu("s_lshl_b32 s26, s21, 15")
        e.salu("s_add_u32 s27, s27, s26")
        e.salu("s_lshl_b32 s26, s%d, 10" % sBR)
        e.salu("s_add_u32 s27, s27, s26")
        e.salu("s_lshl_b32 s26, s20, 8")
        e.salu("s_add_u32 s27, s27, s26")
        e.salu("s_lshl_b32 s26, s22, 3")
        e.salu("s_add_u32 s27, s27, s26")
        e.vm = []
        e.last_w = {}
        base = 16
        for hg in range(8):
            for cc in range(4):
                d = base + (hg * 4 + cc) * 4
                e.ins("buffer_load_dwordx4 %s, v%d, %s, s25 offen offset:%d sc1" % (vr(d, 4), vSt, srd(SRD_WS), cc * 1024), "vload", V(vSt), V(d, 4), tag=("p", hg))
            if hg < 7:
                e.salu("s_add_u32 s25, s25, 0x20000")
        for hg in range(1, 8):
            e.wait_vm(("p", hg))
            for cc in range(4):
                for r in range(0, 4, 2):
                    a_ = base + cc * 4 + r
                    b_ = base + (hg * 4 + cc) * 4 + r
                    e.ins("v_pk_add_f32 %s, %s, %s" % (vr(a_, 2), vr(a_, 2), vr(b_, 2)), "valu", V(a_, 2) + V(b_, 2), V(a_, 2))
        for r in range(4):
            d = 8 + (r % 2) * 2
            e.ins("v_cvt_pk_bf16_f32 v%d, v%d, v%d" % (d, base + r, base + 4 + r), "valu", V(base + r) + V(base + 4 + r), V(d))
            e.ins("v_cvt_pk_bf16_f32 v%d, v%d, v%d" % (d + 1, base + 8 + r, base + 12 + r), "valu", V(base + 8 + r) + V(base + 12 + r), V(d + 1))
            e.ins("buffer_store_dwordx2 %s, v4, s[%d:%d], s27 offen offset:%d" % (vr(d, 2), SRD_O, SRD_O + 3, r * 16), "vstore", V(d, 2) + V(4), (), tag="o")
        e.salu("s_waitcnt vmcnt(0)")
        e.salu("s_branch f_loop")
        e.label("f_end")
    if STAMP:
        e.salu("s_waitcnt vmcnt(0)")
        stamp()
        e.salu("s_waitcnt lgkmcnt(0)")
        e.salu("s_cmp_lg_u32 s2, %d" % int(OPT.get("dumpwg", 0)))
        e.salu("s_cbranch_scc1 main_done")
        e.salu("s_mov_b32 s%d, s38" % SRD_X)
        e.salu("s_mov_b32 s%d, s39" % (SRD_X + 1))
        e.salu("s_mov_b32 s%d, 1024" % (SRD_X + 2))
        e.salu("s_lshl_b32 s3, s%d, 6" % sW)
        e.salu("s_add_u32 s3, s3, 512")
        e.raw("v_mov_b32 v2, 0")
        for k in range(1, nst[0]):
            e.salu("s_sub_u32 s13, s%d, s80" % (80 + 2 * k))
            e.raw("v_mov_b32 v3, s13")
            e.raw("buffer_store_dword v3, v2, s[%d:%d], s3 offen offset:%d" % (SRD_X, SRD_X + 3, 4 * (k - 1)))
    e.label("main_done")
    e.salu("s_endpgm")
    return e.lines


def gen_reduce_bf():
    e = Emit()
    e.label("reduce_kernel")
    e.salu("s_cmp_ge_u32 s2, 256")
    e.salu("s_cbranch_scc1 reduce_done")
    e.salu("s_load_dwordx2 s[8:9], s[0:1], 80")
    e.salu("s_load_dwordx2 s[12:13], s[0:1], 96")
    e.ins("v_lshrrev_b32 v2, 6, v0", "valu", V(0), V(2))
    e.ins("v_and_b32 v1, 63, v0", "valu", V(0), V(1))
    e.ins("v_readfirstlane_b32 s7, v2", "rfl", V(2), [("s", 7)])
    e.ins("v_lshlrev_b32 v3, 4, v1", "valu", V(1), V(3))
    e.ins("v_and_b32 v4, 15, v1", "valu", V(1), V(4))
    e.ins("v_lshrrev_b32 v5, 4, v1", "valu", V(1), V(5))
    e.ins("v_lshlrev_b32 v5, 6, v5", "valu", V(5), V(5))
    e.ins("v_lshl_add_u32 v4, v4, 11, v5", "valu", V(4) + V(5), V(4))
    e.salu("s_nop 2")
    e.salu("s_lshl_b32 s3, s2, 2")
    e.salu("s_add_u32 s3, s3, s7")
    e.salu("s_and_b32 s20, s3, 1")
    e.salu("s_lshr_b32 s21, s3, 1")
    e.salu("s_and_b32 s21, s21, 3")
    e.salu("s_lshr_b32 s22, s3, 3")
    e.salu("s_and_b32 s22, s22, 3")
    e.salu("s_lshr_b32 s23, s3, 5")
    e.salu("s_and_b32 s23, s23, 15")
    e.salu("s_lshr_b32 s24, s3, 9")
    e.salu("s_lshl_b32 s25, s24, 4")
    e.salu("s_add_u32 s25, s25, s23")
    e.salu("s_lshl_b32 s25, s25, 5")
    e.salu("s_add_u32 s25, s25, s22")
    e.salu("s_lshl_b32 s25, s25, 14")
    e.salu("s_lshl_b32 s26, s21, 12")
    e.salu("s_add_u32 s25, s25, s26")
    e.salu("s_lshl_b32 s26, s20, 11")
    e.salu("s_add_u32 s25, s25, s26")
    e.salu("s_lshl_b32 s27, s23, 17")
    e.salu("s_lshl_b32 s26, s21, 15")
    e.salu("s_add_u32 s27, s27, s26")
    e.salu("s_lshl_b32 s26, s24, 10")
    e.salu("s_add_u32 s27, s27, s26")
    e.salu("s_lshl_b32 s26, s22, 8")
    e.salu("s_add_u32 s27, s27, s26")
    e.salu("s_lshl_b32 s26, s20, 5")
    e.salu("s_add_u32 s27, s27, s26")
    e.salu("s_mov_b32 s28, 0xffff0000")
    e.salu("s_waitcnt lgkmcnt(0)")
    e.salu("s_mov_b32 s10, 0x200000")
    e.salu("s_mov_b32 s11, 0x00020000")
    e.salu("s_mov_b32 s14, 0x2000000")
    e.salu("s_mov_b32 s15, 0x00020000")
    base = 32
    for hg in range(8):
        for rr in range(2):
            d = base + (hg * 2 + rr) * 4
            e.ins("buffer_load_dwordx4 %s, v3, s[12:15], s25 offen offset:%d" % (vr(d, 4), rr * 1024), "vload", V(3), V(d, 4), tag=("p", hg))
        if hg < 7:
            e.salu("s_add_u32 s25, s25, 0x10000")
    accb = 8
    for hg in range(8):
        e.wait_vm(("p", hg))
        for rr in range(2):
            for q in range(4):
                s_ = base + (hg * 2 + rr) * 4 + q
                a0 = accb + rr * 8 + 2 * q
                if hg == 0:
                    e.ins("v_lshlrev_b32 v%d, 16, v%d" % (a0, s_), "valu", V(s_), V(a0))
                    e.ins("v_and_b32 v%d, s28, v%d" % (a0 + 1, s_), "valu", V(s_), V(a0 + 1))
                else:
                    e.ins("v_lshlrev_b32 v24, 16, v%d" % s_, "valu", V(s_), V(24))
                    e.ins("v_and_b32 v25, s28, v%d" % s_, "valu", V(s_), V(25))
                    e.ins("v_pk_add_f32 %s, %s, v[24:25]" % (vr(a0, 2), vr(a0, 2)), "valu", V(a0, 2) + V(24, 2), V(a0, 2))
    for rr in range(2):
        d = 24 + rr * 4
        for q in range(4):
            a0 = accb + rr * 8 + 2 * q
            e.ins("v_cvt_pk_bf16_f32 v%d, v%d, v%d" % (d + q, a0, a0 + 1), "valu", V(a0, 2), V(d + q))
        e.ins("buffer_store_dwordx4 %s, v4, s[8:11], s27 offen offset:%d" % (vr(d, 4), rr * 16), "vstore", V(d, 4) + V(4), (), tag="o")
    e.label("reduce_done")
    e.salu("s_endpgm")
    return e.lines


HEADER = """; Fused two-branch attention block: Q-proj + attention + out-proj partials, then a reduce kernel.
; @launch kernel=main_kernel grid=(256,1,1) block=(256,1,1) lds=131072
; @launch kernel=reduce_kernel grid=(256,1,1) block=(256,1,1) lds=0
.amdgcn_target "amdgcn-amd-amdhsa--gfx950"
.text
"""


def main():
    hdr = HEADER
    kernels = [("main_kernel", gen_main()), ("reduce_kernel", gen_reduce_bf() if BFP else gen_reduce())]
    if FUSE:
        hdr = hdr.replace("; @launch kernel=reduce_kernel grid=(256,1,1) block=(256,1,1) lds=0\n", "")
        kernels = kernels[:1]
    out = [hdr]
    for name, lines in kernels:
        out.append(".globl %s\n.p2align 8\n.type %s,@function\n" % (name, name))
        out.append("\n".join(lines) + "\n")
    out.append('.section .rodata,"a"\n')
    out.append(kd("main_kernel", 512, 102, 256))
    if not FUSE:
        out.append(kd("reduce_kernel", 144, 32, 144))
    text = "".join(out)
    path = sys.argv[1] if len(sys.argv) > 1 else "cdna_kernels/%s.s" % NAME
    open(path, "w").write(text)
    print("wrote", path, len(text), "bytes")


if __name__ == "__main__":
    main()
```

```python
import struct, sys
from gen import Emit, V, A, vr, ar, f32bits, NAME, gen_reduce, kd

STAMP = len(sys.argv) > 2 and sys.argv[2] == "stamp"
OPT = dict(a.split("=") for a in sys.argv[3:])
TOUCH = int(OPT.get("touch", 1))
KVNT = int(OPT.get("kvnt", 1))
PRE = int(OPT.get("pre", 2))
NOKV = int(OPT.get("nokv", 0))
KVALL = int(OPT.get("kvall", 0))
STAG = int(OPT.get("stag", 0))
LATE = int(OPT.get("late", 0))
G4 = int(OPT.get("g4", 0))
KLDS = int(OPT.get("klds", 0))
FUSE = int(OPT.get("fuse", 0))
NOW = int(OPT.get("now", 0))
XQ = int(OPT.get("xq", 0))
ILP = int(OPT.get("ilp", 0))
MZ = int(OPT.get("mz", 0))
VO = int(OPT.get("vo", 0))
TLB = int(OPT.get("tlb", 0))
BFP = int(OPT.get("bfp", 0))
DIAG = OPT.get("diag", "")
SPIN = int(OPT.get("spin", 4000))
PBAR = int(OPT.get("pbar", 0))
STAGBIT = int(OPT.get("stagbit", 4))
ETOUCH = int(OPT.get("etouch", 0))
WOQ = int(OPT.get("woq", 0))
WNT = " nt" if int(OPT.get("wnt", 0)) else ""
XNT = " nt" if int(OPT.get("xnt", 0)) else ""
STF = OPT.get("stf", "").replace("+", " ")
STF = (" " + STF) if STF else ""
TNT = " nt" if int(OPT.get("tnt", 0)) else ""

D = 4
vL = 1
vWC = 2
vXr = 10
vK = 14
vV = 15
vRAW = 16
vFRAG = 144
vVRAW = 176
vOw = 240
vSt = 244
vT = 245

aACC = 0
aXF = 128
aKF = 160
aS = 224

sBR, sHG, sRB, sW = 4, 5, 6, 7
SRD_X, SRD_K, SRD_V, SRD_WQ, SRD_WO, SRD_WS, SRD_WC = 40, 44, 48, 52, 56, 60, 64
sWCo, sWCinc = 68, 69
sKV = 70
sSelLo, sSelHi = 74, 75
sSt = 76
sScale, sLog2e, sMask = 77, 78, 79
sXo = 8
sH = 9
sIt = 10
sWOo = 11
sR8 = 12
LDS_O = 65536


def srd(n):
    return "s[%d:%d]" % (n, n + 3)


def acc(rb, c):
    return aACC + (rb * 8 + c) * 4


def gen_main():
    e = Emit()
    nst = [0]

    def stamp():
        if not STAMP:
            return
        e.salu("s_memtime s[%d:%d]" % (80 + 2 * nst[0], 81 + 2 * nst[0]))
        nst[0] += 1

    e.label("main_kernel")
    e.salu("s_cmp_ge_u32 s2, 256")
    e.salu("s_cbranch_scc1 main_done")
    stamp()
    e.salu("s_load_dwordx16 s[16:31], s[0:1], 0")
    e.salu("s_load_dwordx4 s[32:35], s[0:1], 64")
    e.salu("s_load_dwordx2 s[36:37], s[0:1], 96")
    if STAMP or FUSE:
        e.salu("s_load_dwordx2 s[38:39], s[0:1], 88")
    if FUSE:
        e.salu("s_load_dwordx2 s[98:99], s[0:1], 80")
    e.ins("v_lshrrev_b32 v2, 6, v0", "valu", V(0), V(2))
    e.ins("v_and_b32 v%d, 63, v0" % vL, "valu", V(0), V(vL))
    e.ins("v_readfirstlane_b32 s%d, v2" % sW, "rfl", V(2), [("s", sW)])
    e.salu("s_and_b32 s3, s2, 7")
    e.salu("s_lshr_b32 s13, s2, 3")
    e.salu("s_lshr_b32 s%d, s3, 2" % sBR)
    e.salu("s_and_b32 s%d, s3, 3" % sHG)
    e.salu("s_lshl_b32 s%d, s%d, 1" % (sHG, sHG))
    e.salu("s_and_b32 s14, s13, 1")
    e.salu("s_or_b32 s%d, s%d, s14" % (sHG, sHG))
    e.salu("s_lshr_b32 s%d, s13, 1" % sRB)
    e.salu("s_lshr_b32 s12, s2, %d" % int(OPT.get("g4bit", 4)))
    e.salu("s_and_b32 s12, s12, 3")
    e.salu("s_mov_b32 s%d, 0x05040100" % sSelLo)
    e.salu("s_mov_b32 s%d, 0x07060302" % sSelHi)
    e.salu("s_mov_b32 s%d, 0x%08x" % (sScale, f32bits(128 ** -0.5)))
    e.salu("s_mov_b32 s%d, 0x%08x" % (sLog2e, f32bits(1.4426950408889634)))
    e.salu("s_mov_b32 s%d, 0xffff0000" % sMask)
    ti, tg, tt, t3 = vT, vT + 1, vT + 2, vT + 3
    e.ins("v_and_b32 v%d, 15, v%d" % (ti, vL), "valu", V(vL), V(ti))
    e.ins("v_lshrrev_b32 v%d, 4, v%d" % (tg, vL), "valu", V(vL), V(tg))
    e.ins("v_lshlrev_b32 v%d, 4, v%d" % (tt, ti), "valu", V(ti), V(tt))
    e.ins("v_lshl_add_u32 v%d, v%d, 16, v%d" % (vWC, tg, tt), "valu", V(tg) + V(tt), V(vWC))
    for j in range(1, 8):
        e.ins("v_add_u32 v%d, 0x%x, v%d" % (vWC + j, j * 8192, vWC), "valu", V(vWC), V(vWC + j))
    e.ins("v_lshlrev_b32 v%d, 8, v%d" % (vK, ti), "valu", V(ti), V(vK))
    e.ins("v_lshl_add_u32 v%d, v%d, 6, v%d" % (vK, tg, vK), "valu", V(tg) + V(vK), V(vK))
    e.ins("v_lshl_add_u32 v%d, v%d, 10, v%d" % (vV, tg, tt), "valu", V(tg) + V(tt), V(vV))
    e.ins("v_lshlrev_b32 v%d, 4, v%d" % (vSt, vL), "valu", V(vL), V(vSt))
    for slo in range(4):
        e.ins("v_add_u32 v%d, %d, v%d" % (t3, 4 * slo, tg), "valu", V(tg), V(t3))
        e.ins("v_xor_b32 v%d, v%d, v%d" % (t3, t3, ti), "valu", V(t3) + V(ti), V(t3))
        e.ins("v_lshlrev_b32 v%d, 4, v%d" % (t3, t3), "valu", V(t3), V(t3))
        e.ins("v_lshl_add_u32 v%d, v%d, 10, v%d" % (vXr + slo, ti, t3), "valu", V(ti) + V(t3), V(vXr + slo))
    tq, to = vT + 4, vT + 5
    e.ins("v_lshrrev_b32 v%d, 3, v%d" % (tq, vL), "valu", V(vL), V(tq))
    e.ins("v_and_b32 v%d, 7, v%d" % (t3, vL), "valu", V(vL), V(t3))
    e.ins("v_lshlrev_b32 v%d, 7, v%d" % (t3, t3), "valu", V(t3), V(t3))
    e.ins("v_lshl_add_u32 v%d, v%d, 13, v%d" % (tq, tq, t3), "valu", V(tq) + V(t3), V(tq))
    e.ins("v_lshlrev_b32 v%d, 7, v%d" % (to, vL), "valu", V(vL), V(to))
    e.salu("s_waitcnt lgkmcnt(0)")
    e.salu("s_cmp_eq_u32 s%d, 0" % sBR)
    e.salu("s_cselect_b64 s[%d:%d], s[16:17], s[26:27]" % (SRD_X, SRD_X + 1))
    e.salu("s_cselect_b64 s[%d:%d], s[18:19], s[28:29]" % (SRD_K, SRD_K + 1))
    e.salu("s_cselect_b64 s[%d:%d], s[20:21], s[30:31]" % (SRD_V, SRD_V + 1))
    e.salu("s_cselect_b64 s[%d:%d], s[22:23], s[32:33]" % (SRD_WQ, SRD_WQ + 1))
    e.salu("s_cselect_b64 s[%d:%d], s[24:25], s[34:35]" % (SRD_WO, SRD_WO + 1))
    e.salu("s_cselect_b64 s[%d:%d], s[22:23], s[32:33]" % (SRD_WC, SRD_WC + 1))
    e.salu("s_mov_b64 s[%d:%d], s[36:37]" % (SRD_WS, SRD_WS + 1))
    for base, size in ((SRD_X, 1 << 20), (SRD_K, 8 << 20), (SRD_V, 8 << 20), (SRD_WQ, 4 << 20), (SRD_WO, 4 << 20), (SRD_WS, 32 << 20), (SRD_WC, 4 << 20)):
        e.salu("s_mov_b32 s%d, 0x%x" % (base + 2, size))
        e.salu("s_mov_b32 s%d, 0x00020000" % (base + 3))
    if NOW:
        e.salu("s_mov_b32 s%d, 0" % (SRD_WC + 2))
    e.salu("s_lshl_b32 s%d, s%d, 2" % (sH, sHG))
    e.salu("s_add_u32 s%d, s%d, s%d" % (sH, sH, sW))
    e.salu("s_lshl_b32 s%d, s%d, 8" % (sWCo, sH))
    e.salu("s_mov_b32 s%d, 0x40000" % sWCinc)
    e.salu("s_lshl_b32 s%d, s%d, 19" % (sWOo, sHG))
    e.salu("s_lshl_b32 s3, s%d, 8" % sW)
    e.salu("s_add_u32 s%d, s%d, s3" % (sWOo, sWOo))
    e.salu("s_lshl_b32 s3, s%d, 6" % sRB)
    e.salu("s_add_u32 s3, s3, s%d" % sH)
    e.salu("s_lshl_b32 s%d, s3, 13" % sKV)
    e.salu("s_add_u32 s%d, s%d, 0x1000" % (sKV + 1, sKV))
    e.salu("s_add_u32 s%d, s%d, 0x40000" % (sKV + 2, sKV))
    e.salu("s_add_u32 s%d, s%d, 0x41000" % (sKV + 3, sKV))
    e.salu("s_lshl_b32 s%d, s%d, 16" % (sXo, sRB))
    e.salu("s_lshl_b32 s3, s%d, 14" % sW)
    e.salu("s_add_u32 s%d, s%d, s3" % (sXo, sXo))
    e.salu("s_lshl_b32 s3, s%d, 4" % sBR)
    e.salu("s_add_u32 s3, s3, s%d" % sRB)
    e.salu("s_lshl_b32 s3, s3, 3")
    e.salu("s_add_u32 s3, s3, s%d" % sHG)
    e.salu("s_lshl_b32 s3, s3, 2")
    e.salu("s_add_u32 s3, s3, s%d" % sW)
    e.salu("s_lshl_b32 s%d, s3, 15" % sSt)
    e.salu("s_lshl_b32 s13, s%d, 2" % sRB)
    e.salu("s_add_u32 s13, s13, s%d" % sW)
    e.salu("s_lshl_b32 s14, s13, 16")
    e.salu("s_lshl_b32 s3, s%d, 10" % sHG)
    e.salu("s_add_u32 s14, s14, s3")
    if WOQ:
        e.salu("s_mov_b64 s[%d:%d], s[%d:%d]" % (SRD_WC, SRD_WC + 1, SRD_WO, SRD_WO + 1))
        e.salu("s_mov_b32 s%d, s%d" % (sWCo, sWOo))
        e.salu("s_mov_b32 s%d, 0x8000" % sWCinc)
        e.ins("v_lshl_add_u32 v%d, v%d, 13, v%d" % (vWC, tg, tt), "valu", V(tg) + V(tt), V(vWC))
        for j in range(1, 8):
            e.ins("v_add_u32 v%d, 0x%x, v%d" % (vWC + j, j * 1024, vWC), "valu", V(vWC), V(vWC + j))
    if ETOUCH:
        e.ins("buffer_load_dword v%d, v%d, %s, s14 offen%s" % (vT + 6, tq, srd(SRD_WQ), TNT), "vload", V(tq), V(vT + 6), tag="touch")
    if TLB:
        tz = vT + 10
        e.ins("v_mov_b32 v%d, 0" % tz, "valu", (), V(tz))
        k = 0
        for srdn, so in ((SRD_K, sKV), (SRD_K, sKV + 2), (SRD_V, sKV), (SRD_V, sKV + 2), (SRD_WO, sWOo), (SRD_WS, sSt)):
            e.ins("buffer_load_dword v%d, v%d, %s, s%d offen" % (vFRAG + k, tz, srd(srdn), so), "vload", V(tz), V(vFRAG + k), tag="tlb")
            k += 1
    xa = vOw
    xv = vT + 9
    def xq_load(q):
        for n in range(4):
            d = vVRAW + q * 16 + n * 4
            e.salu("s_add_u32 s3, s%d, %d" % (sXo, n * 4096))
            e.ins("buffer_load_dwordx4 %s, v%d, %s, s3 offen offset:%d%s" % (vr(d, 4), xv, srd(SRD_X), q * 256, XNT),
                  "vload", V(xv), V(d, 4), tag=("x", q))
    def xq_write(q):
        e.wait_vm(("x", q))
        for n in range(4):
            d = vVRAW + q * 16 + n * 4
            e.ins("ds_write_b128 v%d, %s offset:%d" % (xa + n, vr(d, 4), n * 4096 + q * 256), "dswrite", V(xa + n) + V(d, 4), (), tag="xw")
    if XQ:
        e.ins("v_lshl_add_u32 v%d, v%d, 10, v%d" % (xv, tg, tt), "valu", V(tg) + V(tt), V(xv))
        e.ins("v_xor_b32 v%d, v%d, v%d" % (t3, ti, tg), "valu", V(ti) + V(tg), V(t3))
        e.ins("v_lshlrev_b32 v%d, 4, v%d" % (t3, t3), "valu", V(t3), V(t3))
        e.ins("v_lshl_add_u32 v%d, v%d, 10, v%d" % (t3, tg, t3), "valu", V(tg) + V(t3), V(t3))
        e.salu("s_lshl_b32 s3, s%d, 14" % sW)
        e.ins("v_add_u32 v%d, s3, v%d" % (xa, t3), "valu", V(t3), V(xa))
        for n in range(1, 4):
            e.ins("v_xor_b32 v%d, %d, v%d" % (xa + n, n * 64, xa), "valu", V(xa), V(xa + n))
        xq_load(0)
        xq_load(1)
    else:
      for r in range(16):
        if r and r % 4 == 0:
            e.salu("s_add_u32 s%d, s%d, 0x1000" % (sXo, sXo))
        d = vVRAW + 4 * r
        e.ins("buffer_load_dwordx4 %s, v%d, %s, s%d offen offset:%d%s" % (vr(d, 4), vSt, srd(SRD_X), sXo, (r % 4) * 1024, XNT),
              "vload", V(vSt), V(d, 4), tag="x")

    def wloads(t):
        out = []
        buf = vRAW + (t % D) * 32
        for j in range(8):
            d = buf + 4 * j
            def f(d=d, j=j):
                e.ins("buffer_load_dwordx4 %s, v%d, %s, s%d offen%s" % (vr(d, 4), vWC + j, srd(SRD_WC), sWCo, WNT),
                      "vload", V(vWC + j), V(d, 4), tag=("w", t))
            out.append(f)
        out.append(lambda: e.salu("s_add_u32 s%d, s%d, s%d" % (sWCo, sWCo, sWCinc)))
        return out

    for t in range(PRE):
        for f in wloads(t):
            f()
    if XQ:
        xq_load(2)
        xq_load(3)

    nt = " nt" if KVNT else ""

    def kv_burst(idx):
        if NOKV:
            return
        bb, isv = idx // 2, idx % 2
        for n in range(8):
            if not isv:
                kt, sp = n // 4, n % 4
                d = aKF + bb * 32 + (kt * 4 + sp) * 4
                e.ins("buffer_load_dwordx4 %s, v%d, %s, s%d offen offset:%d%s" % (ar(d, 4), vK, srd(SRD_K), sKV + bb * 2 + kt, sp * 16, nt),
                      "vload", V(vK), A(d, 4), tag=("kv", bb, 0))
            else:
                d = vVRAW + bb * 32 + n * 4
                e.ins("buffer_load_dwordx4 %s, v%d, %s, s%d offen offset:%d%s" % (vr(d, 4), vV, srd(SRD_V), sKV + bb * 2 + n // 4, (n % 4) * 256, nt),
                      "vload", V(vV), V(d, 4), tag=("kv", bb, 1))

    def zero_acc():
        if MZ:
            z = vT + 4
            z = vFRAG
            for k in range(4):
                e.ins("v_mov_b32 v%d, 0" % (z + k), "valu", (), V(z + k))
            for k in range(32):
                e.ins("v_mfma_f32_16x16x32_bf16 %s, %s, %s, 0" % (ar(aACC + 4 * k, 4), vr(z, 4), vr(z, 4)), "mfma", V(z, 4), A(aACC + 4 * k, 4))
        else:
            for k in range(128):
                e.ins("v_accvgpr_write_b32 a%d, 0" % (aACC + k), "valu", (), A(aACC + k))
    zero_acc()
    if XQ:
        xq_write(0)
        xq_write(1)
        stamp()
    else:
        tb = vT + 8
        e.ins("v_mov_b32 v%d, s%d" % (tb, sW), "valu", [("s", sW)], V(tb))
        e.ins("v_lshlrev_b32 v%d, 14, v%d" % (tb, tb), "valu", V(tb), V(tb))
        e.wait_vm("x")
        stamp()
        for r in range(16):
            ta = vT + 9 + (r % 2)
            e.ins("v_xor_b32 v%d, %d, v%d" % (ta, r, vL), "valu", V(vL), V(ta))
            e.ins("v_lshl_add_u32 v%d, v%d, 4, v%d" % (ta, ta, tb), "valu", V(ta) + V(tb), V(ta))
            d = vVRAW + 4 * r
            e.ins("ds_write_b128 v%d, %s offset:%d" % (ta, vr(d, 4), r * 1024), "dswrite", V(ta) + V(d, 4), (), tag="xw")
    if PBAR:
        e.wait_lgkm()
        e.salu("s_barrier")
    for t in range(PRE, D):
        for f in wloads(t):
            f()
    if TOUCH and not ETOUCH:
        e.ins("buffer_load_dword v%d, v%d, %s, s14 offen%s" % (vT + 6, tq, srd(SRD_WQ), TNT), "vload", V(tq), V(vT + 6), tag="touch")
    e.salu("s_lshl_b32 s14, s%d, 19" % sHG)
    e.salu("s_lshl_b32 s3, s13, 13")
    e.salu("s_add_u32 s14, s14, s3")
    if not PBAR:
        e.wait_lgkm()
        e.salu("s_barrier")
    if STAG:
        e.salu("s_bitcmp1_b32 s2, %d" % STAGBIT)
        e.salu("s_cbranch_scc1 skip_early_kv")
        for i in range(4):
            kv_burst(i)
        e.label("skip_early_kv")
    elif not LATE:
        kv_burst(0)
        if KVALL:
            kv_burst(1)
            kv_burst(2)
            kv_burst(3)
    stamp()

    def xf_read(u, rb):
        d = aXF + (u % 2) * 16 + rb * 4
        off = rb * 16384 + (256 if u == 4 else 0)
        e.ins("ds_read_b128 %s, v%d offset:%d" % (ar(d, 4), vXr + (u % 4), off), "dsread", V(vXr + (u % 4)), A(d, 4), tag=("xf", u % 4))

    def perm(t, c, p):
        buf = vRAW + (t % D) * 32
        s0 = buf + 4 * (2 * p + 1) + (c >> 1)
        s1 = buf + 4 * (2 * p) + (c >> 1)
        dd = vFRAG + c * 4 + p
        sel = sSelHi if (c & 1) else sSelLo
        e.ins("v_perm_b32 v%d, v%d, v%d, s%d" % (dd, s0, s1, sel), "valu", V(s0) + V(s1), V(dd))

    def phase_entry():
        for rb in range(4):
            xf_read(0, rb)
        e.wait_vm(("w", 0))
        for c in range(8):
            for p in range(4):
                perm(0, c, p)

    def loop_body():
        for u in range(4):
            e.comment("step %d" % u)
            e.wait_lgkm(("xf", u))
            if VO and u == 2:
                e.salu("s_cmp_eq_u32 s%d, 3" % sIt)
                e.salu("s_cselect_b32 s%d, 0, s%d" % (SRD_WC + 2, SRD_WC + 2))
            wl = wloads(u + D)
            m = 0
            for c in range(8):
                for rb in range(4):
                    ac = acc(rb, c)
                    xf = aXF + (u % 2) * 16 + rb * 4
                    e.ins("v_mfma_f32_16x16x32_bf16 %s, %s, %s, %s" % (ar(ac, 4), vr(vFRAG + c * 4, 4), ar(xf, 4), ar(ac, 4)), "mfma",
                          V(vFRAG + c * 4, 4) + A(xf, 4) + A(ac, 4), A(ac, 4), creads=A(ac, 4))
                    if c == 0 and "L" not in DIAG:
                        wl[2 * rb]()
                        wl[2 * rb + 1]()
                        if rb == 3:
                            wl[8]()
                            e.wait_vm(("w", u + 1))
                    if c >= 1 and "P" not in DIAG:
                        perm(u + 1, c - 1, rb)
                    if c == 2 and "X" not in DIAG:
                        xf_read(u + 1, rb)
                    m += 1
            for p in range(4):
                if "P" not in DIAG:
                    perm(u + 1, 7, p)
        for slo in range(4):
            e.ins("v_add_u32 v%d, 0x100, v%d" % (vXr + slo, vXr + slo), "valu", V(vXr + slo), V(vXr + slo))

    e.salu("s_mov_b32 s%d, 0" % sIt)
    phase_entry()
    e.label("gemm_loop")
    e.vm = [("w", 1)] * 8 + [("w", 2)] * 8 + [("w", 3)] * 8
    e.lgkm = [("xf", 0)] * 4
    e.last_w = {}
    e.nop(2)
    loop_body()
    e.salu("s_add_u32 s%d, s%d, 1" % (sIt, sIt))
    e.salu("s_cmp_eq_u32 s%d, 4" % sIt)
    e.salu("s_cbranch_scc1 attention")
    e.salu("s_cmp_eq_u32 s%d, 8" % sIt)
    e.salu("s_cbranch_scc1 epilogue")
    e.salu("s_cmp_eq_u32 s%d, 7" % sIt)
    e.salu("s_cbranch_scc1 it7")
    e.salu("s_cmp_gt_u32 s%d, 4" % sIt)
    e.salu("s_cbranch_scc1 gemm_loop")
    e.salu("s_cmp_eq_u32 s%d, 2" % sIt)
    e.salu("s_cbranch_scc1 it2")
    e.salu("s_cmp_eq_u32 s%d, 3" % sIt)
    e.salu("s_cbranch_scc1 it3")
    e.label("it1")
    if not FUSE:
        stamp()
    if XQ:
        e.lgkm = [("xf", 0)] * 4
        for n in range(4):
            d = vVRAW + 2 * 16 + n * 4
            e.ins("ds_write_b128 v%d, %s offset:%d" % (xa + n, vr(d, 4), n * 4096 + 2 * 256), "dswrite", V(xa + n) + V(d, 4), (), tag="xw")
        e.wait_lgkm()
        e.salu("s_barrier")
    if G4:
        e.salu("s_cmp_lg_u32 s12, 1")
        e.salu("s_cbranch_scc1 g4skip1")
        for i in range(4):
            kv_burst(i)
        e.label("g4skip1")
    if not KVALL and not STAG and not LATE:
        kv_burst(1)
    if TOUCH:
        e.ins("buffer_load_dword v%d, v%d, %s, s14 offen%s" % (vT + 6, to, srd(SRD_WO), TNT), "vload", V(to), V(vT + 6), tag="touch")
    e.salu("s_branch gemm_loop")
    e.label("it2")
    if not FUSE:
        stamp()
    if XQ:
        e.lgkm = [("xf", 0)] * 4
        for n in range(4):
            d = vVRAW + 3 * 16 + n * 4
            e.ins("ds_write_b128 v%d, %s offset:%d" % (xa + n, vr(d, 4), n * 4096 + 3 * 256), "dswrite", V(xa + n) + V(d, 4), (), tag="xw")
        e.wait_lgkm()
        e.salu("s_barrier")
    if G4:
        e.salu("s_cmp_lg_u32 s12, 2")
        e.salu("s_cbranch_scc1 g4skip2")
        for i in range(4):
            kv_burst(i)
        e.label("g4skip2")
    if not KVALL and not STAG and not LATE:
        kv_burst(2)
    e.salu("s_branch gemm_loop")
    e.label("it3")
    if not FUSE:
        stamp()
    if G4:
        e.salu("s_cmp_lg_u32 s12, 3")
        e.salu("s_cbranch_scc1 g4skip3")
        for i in range(4):
            kv_burst(i)
        e.label("g4skip3")
    if not KVALL and not STAG and not LATE:
        kv_burst(3)
    if LATE == 2:
        for i in range(4):
            kv_burst(i)
    e.salu("s_mov_b64 s[%d:%d], s[%d:%d]" % (SRD_WC, SRD_WC + 1, SRD_WO, SRD_WO + 1))
    e.salu("s_mov_b32 s%d, s%d" % (sWCo, sWOo))
    e.salu("s_mov_b32 s%d, 0x8000" % sWCinc)
    e.ins("v_and_b32 v%d, 15, v%d" % (ti, vL), "valu", V(vL), V(ti))
    e.ins("v_lshrrev_b32 v%d, 4, v%d" % (tg, vL), "valu", V(vL), V(tg))
    e.ins("v_lshlrev_b32 v%d, 4, v%d" % (tt, ti), "valu", V(ti), V(tt))
    e.ins("v_lshl_add_u32 v%d, v%d, 13, v%d" % (vWC, tg, tt), "valu", V(tg) + V(tt), V(vWC))
    for j in range(1, 8):
        e.ins("v_add_u32 v%d, 0x%x, v%d" % (vWC + j, j * 1024, vWC), "valu", V(vWC), V(vWC + j))
    e.salu("s_branch gemm_loop")
    e.label("it7")
    e.salu("s_mov_b32 s%d, 0" % (SRD_WC + 2))
    e.salu("s_branch gemm_loop")

    e.label("attention")
    stamp()
    e.last_w = {}
    e.nop(10)
    e.vm = [("w", 1)] * 8 + [("w", 2)] * 8 + [("w", 3)] * 8
    e.lgkm = [("xf", 0)] * 4
    e.wait_lgkm()
    if KLDS:
        e.salu("s_barrier")
        kb0 = vT + 4
        e.ins("v_and_b32 v%d, 15, v%d" % (ti, vL), "valu", V(vL), V(ti))
        e.ins("v_lshrrev_b32 v%d, 4, v%d" % (tg, vL), "valu", V(vL), V(tg))
        e.ins("v_xor_b32 v%d, v%d, v%d" % (t3, ti, tg), "valu", V(ti) + V(tg), V(t3))
        e.ins("v_lshlrev_b32 v%d, 4, v%d" % (t3, t3), "valu", V(t3), V(t3))
        e.ins("v_lshl_add_u32 v%d, v%d, 8, v%d" % (kb0, tg, t3), "valu", V(tg) + V(t3), V(kb0))
        for q in range(1, 4):
            e.ins("v_xor_b32 v%d, %d, v%d" % (kb0 + q, q * 64, kb0), "valu", V(kb0), V(kb0 + q))
        e.salu("s_lshl_b32 s13, s%d, 14" % sW)
        for bb in range(2):
            for n in range(8):
                e.salu("s_add_u32 s14, s13, %d" % (bb * 8192 + n * 1024))
                e.salu("s_add_u32 s3, s%d, %d" % (sKV + bb * 2, n * 1024))
                e.salu("s_mov_b32 m0, s14")
                e.salu("s_nop 0")
                e.ins("buffer_load_dwordx4 v%d, %s, s3 offen%s lds" % (kb0 + n % 4, srd(SRD_K), nt), "vload", V(kb0 + n % 4), (), tag=("kv", bb, 0))
            kv_burst(2 * bb + 1)
    elif LATE == 1:
        if G4:
            e.salu("s_cmp_lg_u32 s12, 0")
            e.salu("s_cbranch_scc1 g4skip0")
        for i in range(4):
            kv_burst(i)
        if G4:
            e.label("g4skip0")
    if STAG:
        e.salu("s_bitcmp1_b32 s2, %d" % STAGBIT)
        e.salu("s_cbranch_scc0 skip_late_kv")
        for i in range(4):
            kv_burst(i)
        e.salu("s_waitcnt vmcnt(0)")
        e.label("skip_late_kv")
        e.vm = []
    e.ins("v_and_b32 v%d, 15, v%d" % (ti, vL), "valu", V(vL), V(ti))
    e.ins("v_lshrrev_b32 v%d, 4, v%d" % (tg, vL), "valu", V(vL), V(tg))
    e.salu("s_lshl_b32 s3, s%d, 8" % sW)
    e.salu("s_add_u32 s3, s3, 0x%x" % LDS_O)
    for r in range(4):
        e.ins("v_lshl_add_u32 v%d, v%d, 2, %d" % (t3, tg, r), "valu", V(tg), V(t3))
        e.ins("v_xor_b32 v%d, v%d, v%d" % (t3, t3, ti), "valu", V(t3) + V(ti), V(t3))
        e.ins("v_lshlrev_b32 v%d, 4, v%d" % (t3, t3), "valu", V(t3), V(t3))
        e.ins("v_lshl_add_u32 v%d, v%d, 10, v%d" % (t3, ti, t3), "valu", V(ti) + V(t3), V(t3))
        e.ins("v_add_u32 v%d, s3, v%d" % (vOw + r, t3), "valu", V(t3), V(vOw + r))
    for slo in range(4):
        e.ins("v_add_u32 v%d, 0x%x, v%d" % (vXr + slo, LDS_O - 1024, vXr + slo), "valu", V(vXr + slo), V(vXr + slo))
    if ILP:
        QF = vFRAG
        def pack8(aregs, dq):
            for k in range(8):
                e.ins("v_accvgpr_read_b32 v%d, a%d" % (vT + k, aregs[k]), "valu", A(aregs[k]), V(vT + k))
            for p in range(4):
                e.ins("v_cvt_pk_bf16_f32 v%d, v%d, v%d" % (dq + p, vT + 2 * p, vT + 2 * p + 1), "valu", V(vT + 2 * p) + V(vT + 2 * p + 1), V(dq + p))
        def softmax_stream(vals, PFq, T):
            L = []
            def I(text, kind, r, w):
                L.append((text, kind, r, w))
            for rnd in range(2):
                for k in range(0, 8, 2):
                    I("v_cvt_pk_bf16_f32 v%d, v%d, v%d" % (T + k // 2, vals[k], vals[k + 1]), "valu", V(vals[k]) + V(vals[k + 1]), V(T + k // 2))
                for k in range(0, 8, 2):
                    I("v_lshlrev_b32 v%d, 16, v%d" % (vals[k], T + k // 2), "valu", V(T + k // 2), V(vals[k]))
                    I("v_and_b32 v%d, s%d, v%d" % (vals[k + 1], sMask, T + k // 2), "valu", V(T + k // 2), V(vals[k + 1]))
                if rnd == 0:
                    for x in vals:
                        I("v_mul_f32 v%d, s%d, v%d" % (x, sScale, x), "valu", V(x), V(x))
            mx, m2 = T, T + 1
            I("v_max3_f32 v%d, v%d, v%d, v%d" % (mx, vals[0], vals[1], vals[2]), "valu", V(vals[0]) + V(vals[1]) + V(vals[2]), V(mx))
            I("v_max3_f32 v%d, v%d, v%d, v%d" % (m2, vals[3], vals[4], vals[5]), "valu", V(vals[3]) + V(vals[4]) + V(vals[5]), V(m2))
            I("v_max3_f32 v%d, v%d, v%d, v%d" % (mx, mx, vals[6], vals[7]), "valu", V(mx) + V(vals[6]) + V(vals[7]), V(mx))
            I("v_max_f32 v%d, v%d, v%d" % (mx, mx, m2), "valu", V(mx) + V(m2), V(mx))
            for sw in ("v_permlane16_swap_b32", "v_permlane32_swap_b32"):
                I("v_mov_b32 v%d, v%d" % (m2, mx), "valu", V(mx), V(m2))
                I("%s v%d, v%d" % (sw, mx, m2), "permlane", V(mx) + V(m2), V(mx) + V(m2))
                I("v_max_f32 v%d, v%d, v%d" % (mx, mx, m2), "valu", V(mx) + V(m2), V(mx))
            for x in vals:
                I("v_sub_f32 v%d, v%d, v%d" % (x, x, mx), "valu", V(x) + V(mx), V(x))
            for x in vals:
                I("v_mul_f32 v%d, s%d, v%d" % (x, sLog2e, x), "valu", V(x), V(x))
            for x in vals:
                I("v_exp_f32 v%d, v%d" % (x, x), "trans", V(x), V(x))
            sm, s2_, s3_, s4_ = T, T + 1, T + 2, T + 3
            I("v_add_f32 v%d, v%d, v%d" % (sm, vals[0], vals[1]), "valu", V(vals[0]) + V(vals[1]), V(sm))
            I("v_add_f32 v%d, v%d, v%d" % (s2_, vals[2], vals[3]), "valu", V(vals[2]) + V(vals[3]), V(s2_))
            I("v_add_f32 v%d, v%d, v%d" % (s3_, vals[4], vals[5]), "valu", V(vals[4]) + V(vals[5]), V(s3_))
            I("v_add_f32 v%d, v%d, v%d" % (s4_, vals[6], vals[7]), "valu", V(vals[6]) + V(vals[7]), V(s4_))
            I("v_add_f32 v%d, v%d, v%d" % (sm, sm, s2_), "valu", V(sm) + V(s2_), V(sm))
            I("v_add_f32 v%d, v%d, v%d" % (s3_, s3_, s4_), "valu", V(s3_) + V(s4_), V(s3_))
            I("v_add_f32 v%d, v%d, v%d" % (sm, sm, s3_), "valu", V(sm) + V(s3_), V(sm))
            for sw in ("v_permlane16_swap_b32", "v_permlane32_swap_b32"):
                I("v_mov_b32 v%d, v%d" % (s2_, sm), "valu", V(sm), V(s2_))
                I("%s v%d, v%d" % (sw, sm, s2_), "permlane", V(sm) + V(s2_), V(sm) + V(s2_))
                I("v_add_f32 v%d, v%d, v%d" % (sm, sm, s2_), "valu", V(sm) + V(s2_), V(sm))
            I("v_rcp_f32 v%d, v%d" % (sm, sm), "trans", V(sm), V(sm))
            for x in vals:
                I("v_mul_f32 v%d, v%d, v%d" % (x, x, sm), "valu", V(x) + V(sm), V(x))
            for p in range(4):
                I("v_cvt_pk_bf16_f32 v%d, v%d, v%d" % (PFq + p, vals[2 * p], vals[2 * p + 1]), "valu", V(vals[2 * p]) + V(vals[2 * p + 1]), V(PFq + p))
            return L
        for bb in range(2):
            vb = vVRAW + bb * 32
            for qt in range(2):
                rb = 2 * bb + qt
                for sp in range(4):
                    pack8([acc(rb, c) + sp for c in range(8)], QF + (qt * 4 + sp) * 4)
            e.wait_vm(("kv", bb, 0))
            OV = vRAW + 64
            if VO and bb == 0:
                e.salu("s_waitcnt vmcnt(0)")
                e.vm = []
            for sp in range(4):
                for kt in range(2):
                    for qt in range(2):
                        kf = aKF + bb * 32 + (kt * 4 + sp) * 4
                        qf = QF + (qt * 4 + sp) * 4
                        if VO:
                            sd = OV + qt * 8 + kt * 4
                            if sp == 0:
                                e.ins("v_mfma_f32_16x16x32_bf16 %s, %s, %s, 0" % (vr(sd, 4), ar(kf, 4), vr(qf, 4)), "mfma",
                                      A(kf, 4) + V(qf, 4), V(sd, 4))
                            else:
                                e.ins("v_mfma_f32_16x16x32_bf16 %s, %s, %s, %s" % (vr(sd, 4), ar(kf, 4), vr(qf, 4), vr(sd, 4)), "mfma",
                                      A(kf, 4) + V(qf, 4) + V(sd, 4), V(sd, 4), creads=V(sd, 4))
                            continue
                        sd = aS + (kt * 2 + qt) * 4
                        if sp == 0:
                            e.ins("v_mfma_f32_16x16x32_bf16 %s, %s, %s, 0" % (ar(sd, 4), ar(kf, 4), vr(qf, 4)), "mfma",
                                  A(kf, 4) + V(qf, 4), A(sd, 4))
                        else:
                            e.ins("v_mfma_f32_16x16x32_bf16 %s, %s, %s, %s" % (ar(sd, 4), ar(kf, 4), vr(qf, 4), ar(sd, 4)), "mfma",
                                  A(kf, 4) + V(qf, 4) + A(sd, 4), A(sd, 4), creads=A(sd, 4))
            e.wait_vm(("kv", bb, 1))
            for c in range(8):
                for p in range(4):
                    s0 = vb + 4 * (2 * p + 1) + (c >> 1)
                    s1 = vb + 4 * (2 * p) + (c >> 1)
                    dd = QF + c * 4 + p
                    sel = sSelHi if (c & 1) else sSelLo
                    e.ins("v_perm_b32 v%d, v%d, v%d, s%d" % (dd, s0, s1, sel), "valu", V(s0) + V(s1), V(dd))
            SV = vb
            PF = vb + 16
            TT = vb + 24
            if VO:
                SS_ = OV
            else:
                SS_ = SV
                for qt in range(2):
                    for kt in range(2):
                        for r in range(4):
                            a_ = aS + (kt * 2 + qt) * 4 + r
                            d_ = SV + qt * 8 + kt * 4 + r
                            e.ins("v_accvgpr_read_b32 v%d, a%d" % (d_, a_), "valu", A(a_), V(d_))
            s0l = softmax_stream([SS_ + k for k in range(8)], PF, TT)
            s1l = softmax_stream([SS_ + 8 + k for k in range(8)], PF + 4, TT + 4)
            for x, y in zip(s0l, s1l):
                e.ins(*x)
                e.ins(*y)
            for qt in range(2):
                for c in range(8):
                    if VO:
                        od = OV + (qt * 8 + c) * 4
                        e.ins("v_mfma_f32_16x16x32_bf16 %s, %s, %s, 0" % (vr(od, 4), vr(QF + c * 4, 4), vr(PF + qt * 4, 4)), "mfma",
                              V(QF + c * 4, 4) + V(PF + qt * 4, 4), V(od, 4))
                        continue
                    ac = acc(2 * bb + qt, c)
                    e.ins("v_mfma_f32_16x16x32_bf16 %s, %s, %s, 0" % (ar(ac, 4), vr(QF + c * 4, 4), vr(PF + qt * 4, 4)), "mfma",
                          V(QF + c * 4, 4) + V(PF + qt * 4, 4), A(ac, 4))
            n = 0
            for qt in range(2):
                for r in range(4):
                    dq = SV + (n % 4) * 4
                    n += 1
                    if VO:
                        for p in range(4):
                            o0 = OV + (qt * 8 + 2 * p) * 4 + r
                            o1 = OV + (qt * 8 + 2 * p + 1) * 4 + r
                            e.ins("v_cvt_pk_bf16_f32 v%d, v%d, v%d" % (dq + p, o0, o1), "valu", V(o0) + V(o1), V(dq + p))
                    else:
                        pack8([acc(2 * bb + qt, c) + r for c in range(8)], dq)
                    e.ins("ds_write_b128 v%d, %s offset:%d" % (vOw + r, vr(dq, 4), (32 * bb + 16 * qt) * 1024), "dswrite",
                          V(vOw + r) + V(dq, 4), (), tag="ow")
    else:
        QF = vFRAG
        for bb in range(2):
            vb = vVRAW + bb * 32
            for qt in range(2):
                rb = 2 * bb + qt
                for sp in range(4):
                    for p in range(4):
                        t0 = vT + (p % 2) * 2
                        t1 = t0 + 1
                        a0 = acc(rb, 2 * p) + sp
                        a1 = acc(rb, 2 * p + 1) + sp
                        e.ins("v_accvgpr_read_b32 v%d, a%d" % (t0, a0), "valu", A(a0), V(t0))
                        e.ins("v_accvgpr_read_b32 v%d, a%d" % (t1, a1), "valu", A(a1), V(t1))
                        dd = QF + (qt * 4 + sp) * 4 + p
                        e.ins("v_cvt_pk_bf16_f32 v%d, v%d, v%d" % (dd, t0, t1), "valu", V(t0) + V(t1), V(dd))
            e.wait_vm(("kv", bb, 0))
            if KLDS:
                e.salu("s_lshl_b32 s3, s%d, 14" % sW)
                ki, kg = vT + 8, vT + 9
                e.ins("v_and_b32 v%d, 15, v%d" % (ki, vL), "valu", V(vL), V(ki))
                e.ins("v_lshrrev_b32 v%d, 4, v%d" % (kg, vL), "valu", V(vL), V(kg))
                for sp in range(4):
                    ka = vT + 4 + (sp % 2)
                    e.ins("v_lshl_add_u32 v%d, v%d, 2, %d" % (ka, kg, sp), "valu", V(kg), V(ka))
                    e.ins("v_xor_b32 v%d, v%d, v%d" % (ka, ka, ki), "valu", V(ka) + V(ki), V(ka))
                    e.ins("v_lshlrev_b32 v%d, 4, v%d" % (ka, ka), "valu", V(ka), V(ka))
                    e.ins("v_lshl_add_u32 v%d, v%d, 8, v%d" % (ka, ki, ka), "valu", V(ki) + V(ka), V(ka))
                    e.ins("v_add_u32 v%d, s3, v%d" % (ka, ka), "valu", V(ka), V(ka))
                    for kt in range(2):
                        d = aKF + bb * 32 + (kt * 4 + sp) * 4
                        e.ins("ds_read_b128 %s, v%d offset:%d" % (ar(d, 4), ka, bb * 8192 + kt * 4096), "dsread", V(ka), A(d, 4), tag="kf")
                e.wait_lgkm()
            for sp in range(4):
                for kt in range(2):
                    for qt in range(2):
                        sd = aS + (kt * 2 + qt) * 4
                        kf = aKF + bb * 32 + (kt * 4 + sp) * 4
                        qf = QF + (qt * 4 + sp) * 4
                        if sp == 0:
                            e.ins("v_mfma_f32_16x16x32_bf16 %s, %s, %s, 0" % (ar(sd, 4), ar(kf, 4), vr(qf, 4)), "mfma",
                                  A(kf, 4) + V(qf, 4), A(sd, 4))
                        else:
                            e.ins("v_mfma_f32_16x16x32_bf16 %s, %s, %s, %s" % (ar(sd, 4), ar(kf, 4), vr(qf, 4), ar(sd, 4)), "mfma",
                                  A(kf, 4) + V(qf, 4) + A(sd, 4), A(sd, 4), creads=A(sd, 4))
            e.wait_vm(("kv", bb, 1))
            for c in range(8):
                for p in range(4):
                    s0 = vb + 4 * (2 * p + 1) + (c >> 1)
                    s1 = vb + 4 * (2 * p) + (c >> 1)
                    dd = QF + c * 4 + p
                    sel = sSelHi if (c & 1) else sSelLo
                    e.ins("v_perm_b32 v%d, v%d, v%d, s%d" % (dd, s0, s1, sel), "valu", V(s0) + V(s1), V(dd))
            SV = vb
            PF = vb + 16
            TT = vb + 24
            for qt in range(2):
                for kt in range(2):
                    for r in range(4):
                        a_ = aS + (kt * 2 + qt) * 4 + r
                        d_ = SV + qt * 8 + kt * 4 + r
                        e.ins("v_accvgpr_read_b32 v%d, a%d" % (d_, a_), "valu", A(a_), V(d_))
            for qt in range(2):
                vals = [SV + qt * 8 + k for k in range(8)]
                for rnd in range(2):
                    for k in range(0, 8, 2):
                        x0, x1 = vals[k], vals[k + 1]
                        tp = TT
                        e.ins("v_cvt_pk_bf16_f32 v%d, v%d, v%d" % (tp, x0, x1), "valu", V(x0) + V(x1), V(tp))
                        e.ins("v_lshlrev_b32 v%d, 16, v%d" % (x0, tp), "valu", V(tp), V(x0))
                        e.ins("v_and_b32 v%d, s%d, v%d" % (x1, sMask, tp), "valu", V(tp), V(x1))
                        if rnd == 0:
                            e.ins("v_mul_f32 v%d, s%d, v%d" % (x0, sScale, x0), "valu", V(x0), V(x0))
                            e.ins("v_mul_f32 v%d, s%d, v%d" % (x1, sScale, x1), "valu", V(x1), V(x1))
                mx, m2 = TT + 1, TT + 2
                e.ins("v_max3_f32 v%d, v%d, v%d, v%d" % (mx, vals[0], vals[1], vals[2]), "valu", V(vals[0]) + V(vals[1]) + V(vals[2]), V(mx))
                e.ins("v_max3_f32 v%d, v%d, v%d, v%d" % (mx, mx, vals[3], vals[4]), "valu", V(mx) + V(vals[3]) + V(vals[4]), V(mx))
                e.ins("v_max3_f32 v%d, v%d, v%d, v%d" % (mx, mx, vals[5], vals[6]), "valu", V(mx) + V(vals[5]) + V(vals[6]), V(mx))
                e.ins("v_max_f32 v%d, v%d, v%d" % (mx, mx, vals[7]), "valu", V(mx) + V(vals[7]), V(mx))
                for sw in ("v_permlane16_swap_b32", "v_permlane32_swap_b32"):
                    e.ins("v_mov_b32 v%d, v%d" % (m2, mx), "valu", V(mx), V(m2))
                    e.ins("%s v%d, v%d" % (sw, mx, m2), "permlane", V(mx) + V(m2), V(mx) + V(m2))
                    e.ins("v_max_f32 v%d, v%d, v%d" % (mx, mx, m2), "valu", V(mx) + V(m2), V(mx))
                for x in vals:
                    e.ins("v_sub_f32 v%d, v%d, v%d" % (x, x, mx), "valu", V(x) + V(mx), V(x))
                for x in vals:
                    e.ins("v_mul_f32 v%d, s%d, v%d" % (x, sLog2e, x), "valu", V(x), V(x))
                for x in vals:
                    e.ins("v_exp_f32 v%d, v%d" % (x, x), "trans", V(x), V(x))
                sm, s2_ = TT + 3, TT + 4
                e.ins("v_add_f32 v%d, v%d, v%d" % (sm, vals[0], vals[1]), "valu", V(vals[0]) + V(vals[1]), V(sm))
                e.ins("v_add_f32 v%d, v%d, v%d" % (s2_, vals[2], vals[3]), "valu", V(vals[2]) + V(vals[3]), V(s2_))
                e.ins("v_add_f32 v%d, v%d, v%d" % (sm, sm, s2_), "valu", V(sm) + V(s2_), V(sm))
                e.ins("v_add_f32 v%d, v%d, v%d" % (s2_, vals[4], vals[5]), "valu", V(vals[4]) + V(vals[5]), V(s2_))
                e.ins("v_add_f32 v%d, v%d, v%d" % (sm, sm, s2_), "valu", V(sm) + V(s2_), V(sm))
                e.ins("v_add_f32 v%d, v%d, v%d" % (s2_, vals[6], vals[7]), "valu", V(vals[6]) + V(vals[7]), V(s2_))
                e.ins("v_add_f32 v%d, v%d, v%d" % (sm, sm, s2_), "valu", V(sm) + V(s2_), V(sm))
                for sw in ("v_permlane16_swap_b32", "v_permlane32_swap_b32"):
                    e.ins("v_mov_b32 v%d, v%d" % (s2_, sm), "valu", V(sm), V(s2_))
                    e.ins("%s v%d, v%d" % (sw, sm, s2_), "permlane", V(sm) + V(s2_), V(sm) + V(s2_))
                    e.ins("v_add_f32 v%d, v%d, v%d" % (sm, sm, s2_), "valu", V(sm) + V(s2_), V(sm))
                e.ins("v_rcp_f32 v%d, v%d" % (sm, sm), "trans", V(sm), V(sm))
                for x in vals:
                    e.ins("v_mul_f32 v%d, v%d, v%d" % (x, x, sm), "valu", V(x) + V(sm), V(x))
                for p in range(4):
                    dd = PF + qt * 4 + p
                    e.ins("v_cvt_pk_bf16_f32 v%d, v%d, v%d" % (dd, vals[2 * p], vals[2 * p + 1]), "valu", V(vals[2 * p]) + V(vals[2 * p + 1]), V(dd))
            for qt in range(2):
                for c in range(8):
                    ac = acc(2 * bb + qt, c)
                    e.ins("v_mfma_f32_16x16x32_bf16 %s, %s, %s, 0" % (ar(ac, 4), vr(QF + c * 4, 4), vr(PF + qt * 4, 4)), "mfma",
                          V(QF + c * 4, 4) + V(PF + qt * 4, 4), A(ac, 4))
            n = 0
            for qt in range(2):
                for r in range(4):
                    dq = SV + (n % 4) * 4
                    n += 1
                    for p in range(4):
                        t0 = vT + (p % 2) * 2
                        t1 = t0 + 1
                        a0 = acc(2 * bb + qt, 2 * p) + r
                        a1 = acc(2 * bb + qt, 2 * p + 1) + r
                        e.ins("v_accvgpr_read_b32 v%d, a%d" % (t0, a0), "valu", A(a0), V(t0))
                        e.ins("v_accvgpr_read_b32 v%d, a%d" % (t1, a1), "valu", A(a1), V(t1))
                        e.ins("v_cvt_pk_bf16_f32 v%d, v%d, v%d" % (dq + p, t0, t1), "valu", V(t0) + V(t1), V(dq + p))
                    e.ins("ds_write_b128 v%d, %s offset:%d" % (vOw + r, vr(dq, 4), (32 * bb + 16 * qt) * 1024), "dswrite",
                          V(vOw + r) + V(dq, 4), (), tag="ow")
    zero_acc()
    if VO:
        e.salu("s_mov_b32 s%d, 0x400000" % (SRD_WC + 2))
        e.salu("s_add_u32 s%d, s%d, 0x10000" % (sWCo, sWOo))
        for t in (2, 3):
            for f in wloads(t):
                f()
    e.wait_lgkm()
    stamp()
    e.salu("s_barrier")
    stamp()
    for rb in range(4):
        xf_read(0, rb)
    for c in range(8):
        for p in range(4):
            perm(0, c, p)
    e.salu("s_branch gemm_loop")

    e.label("epilogue")
    stamp()
    e.last_w = {}
    e.nop(10)
    n = 0
    if BFP:
        e.salu("s_lshr_b32 s%d, s%d, 1" % (sSt, sSt))
        for rb in range(4):
            for r in range(4):
                if n and n % 4 == 0:
                    e.salu("s_add_u32 s%d, s%d, 0x1000" % (sSt, sSt))
                dq = vRAW + (n % 8) * 4
                for p in range(4):
                    t0 = vT + (p % 2) * 2
                    t1 = t0 + 1
                    a0 = acc(rb, 2 * p) + r
                    a1 = acc(rb, 2 * p + 1) + r
                    e.ins("v_accvgpr_read_b32 v%d, a%d" % (t0, a0), "valu", A(a0), V(t0))
                    e.ins("v_accvgpr_read_b32 v%d, a%d" % (t1, a1), "valu", A(a1), V(t1))
                    e.ins("v_cvt_pk_bf16_f32 v%d, v%d, v%d" % (dq + p, t0, t1), "valu", V(t0) + V(t1), V(dq + p))
                e.ins("buffer_store_dwordx4 %s, v%d, %s, s%d offen offset:%d%s" % (vr(dq, 4), vSt, srd(SRD_WS), sSt, (n % 4) * 1024, STF),
                      "vstore", V(dq, 4) + V(vSt), (), tag="st")
                n += 1
    else:
      for rb in range(4):
        for c in range(8):
            if n and n % 4 == 0:
                e.salu("s_add_u32 s%d, s%d, 0x1000" % (sSt, sSt))
            ac = acc(rb, c)
            e.ins("buffer_store_dwordx4 %s, v%d, %s, s%d offen offset:%d%s" % (ar(ac, 4), vSt, srd(SRD_WS), sSt, (n % 4) * 1024, STF),
                  "vstore", A(ac, 4) + V(vSt), (), tag="st")
            n += 1
    if FUSE:
        SRD_D, SRD_O = SRD_X, SRD_K
        e.salu("s_waitcnt vmcnt(0)")
        stamp()
        e.salu("s_barrier")
        e.salu("s_mov_b32 s%d, s38" % SRD_D)
        e.salu("s_mov_b32 s%d, s39" % (SRD_D + 1))
        e.salu("s_mov_b32 s%d, 256" % (SRD_D + 2))
        e.salu("s_mov_b32 s%d, s98" % SRD_O)
        e.salu("s_mov_b32 s%d, s99" % (SRD_O + 1))
        e.salu("s_mov_b32 s%d, 0x200000" % (SRD_O + 2))
        e.salu("s_lshl_b32 s13, s%d, 4" % sBR)
        e.salu("s_add_u32 s13, s13, s%d" % sRB)
        e.salu("s_lshl_b32 s14, 1, s%d" % sHG)
        e.salu("s_cmp_lg_u32 s%d, 0" % sW)
        e.salu("s_cbranch_scc1 f_wait")
        e.salu("s_mov_b64 exec, 1")
        e.raw("v_mov_b32 v3, s13")
        e.raw("v_lshlrev_b32 v3, 2, v3")
        e.raw("v_mov_b32 v2, 1")
        e.raw("buffer_atomic_add v2, v3, s[%d:%d], 0 offen sc0 sc1" % (SRD_D, SRD_D + 3))
        e.salu("s_waitcnt vmcnt(0)")
        e.raw("v_readfirstlane_b32 s15, v2")
        e.salu("s_nop 3")
        e.salu("s_cmp_eq_u32 s15, 7")
        e.salu("s_cbranch_scc1 f_last")
        e.salu("s_mov_b32 s3, 0")
        e.label("f_spin")
        e.salu("s_sleep 4")
        e.raw("v_mov_b32 v2, 0")
        e.raw("buffer_atomic_add v2, v3, s[%d:%d], 0 offen sc0 sc1" % (SRD_D, SRD_D + 3))
        e.salu("s_waitcnt vmcnt(0)")
        e.raw("v_readfirstlane_b32 s15, v2")
        e.salu("s_nop 3")
        e.salu("s_cmp_eq_u32 s15, 8")
        e.salu("s_cbranch_scc1 f_decided")
        e.salu("s_add_u32 s3, s3, 1")
        e.salu("s_cmp_lt_u32 s3, %d" % SPIN)
        e.salu("s_cbranch_scc1 f_spin")
        e.raw("v_mov_b32 v2, s14")
        e.raw("buffer_atomic_or v2, v3, s[%d:%d], 0 offen offset:128 sc0 sc1" % (SRD_D, SRD_D + 3))
        e.salu("s_waitcnt vmcnt(0)")
        e.raw("v_mov_b32 v2, 0")
        e.raw("buffer_atomic_add v2, v3, s[%d:%d], 0 offen sc0 sc1" % (SRD_D, SRD_D + 3))
        e.salu("s_waitcnt vmcnt(0)")
        e.raw("v_readfirstlane_b32 s15, v2")
        e.salu("s_nop 3")
        e.salu("s_cmp_eq_u32 s15, 8")
        e.salu("s_cbranch_scc1 f_decided")
        e.salu("s_mov_b32 s14, 0")
        e.salu("s_branch f_decided")
        e.label("f_last")
        e.raw("v_mov_b32 v2, 0")
        e.raw("buffer_atomic_or v2, v3, s[%d:%d], 0 offen offset:128 sc0 sc1" % (SRD_D, SRD_D + 3))
        e.salu("s_waitcnt vmcnt(0)")
        e.raw("v_readfirstlane_b32 s15, v2")
        e.salu("s_nop 3")
        e.salu("s_or_b32 s14, s14, s15")
        e.label("f_decided")
        e.raw("v_mov_b32 v2, s14")
        e.raw("v_mov_b32 v3, 0")
        e.raw("ds_write_b32 v3, v2")
        e.salu("s_waitcnt lgkmcnt(0)")
        e.salu("s_mov_b64 exec, -1")
        e.label("f_wait")
        e.salu("s_barrier")
        stamp()
        e.raw("v_mov_b32 v3, 0")
        e.raw("ds_read_b32 v2, v3")
        e.salu("s_waitcnt lgkmcnt(0)")
        e.raw("v_readfirstlane_b32 s14, v2")
        e.raw("v_and_b32 v4, 15, v%d" % vL)
        e.raw("v_lshrrev_b32 v5, 4, v%d" % vL)
        e.raw("v_lshlrev_b32 v5, 6, v5")
        e.raw("v_lshl_add_u32 v4, v4, 11, v5")
        e.label("f_loop")
        e.salu("s_cmp_eq_u32 s14, 0")
        e.salu("s_cbranch_scc1 f_end")
        e.salu("s_ff1_i32_b32 s15, s14")
        e.salu("s_bitset0_b32 s14, s15")
        e.salu("s_lshr_b32 s20, s15, 1")
        e.salu("s_and_b32 s21, s15, 1")
        e.salu("s_lshl_b32 s21, s21, 1")
        e.salu("s_lshr_b32 s22, s%d, 1" % sW)
        e.salu("s_add_u32 s21, s21, s22")
        e.salu("s_and_b32 s22, s%d, 1" % sW)
        e.salu("s_lshl_b32 s25, s13, 5")
        e.salu("s_add_u32 s25, s25, s20")
        e.salu("s_lshl_b32 s25, s25, 15")
        e.salu("s_lshl_b32 s26, s21, 13")
        e.salu("s_add_u32 s25, s25, s26")
        e.salu("s_lshl_b32 s26, s22, 12")
        e.salu("s_add_u32 s25, s25, s26")
        e.salu("s_lshl_b32 s27, s%d, 17" % sRB)
        e.salu("s_lshl_b32 s26, s21, 15")
        e.salu("s_add_u32 s27, s27, s26")
        e.salu("s_lshl_b32 s26, s%d, 10" % sBR)
        e.salu("s_add_u32 s27, s27, s26")
        e.salu("s_lshl_b32 s26, s20, 8")
        e.salu("s_add_u32 s27, s27, s26")
        e.salu("s_lshl_b32 s26, s22, 3")
        e.salu("s_add_u32 s27, s27, s26")
        e.vm = []
        e.last_w = {}
        base = 16
        for hg in range(8):
            for cc in range(4):
                d = base + (hg * 4 + cc) * 4
                e.ins("buffer_load_dwordx4 %s, v%d, %s, s25 offen offset:%d sc1" % (vr(d, 4), vSt, srd(SRD_WS), cc * 1024), "vload", V(vSt), V(d, 4), tag=("p", hg))
            if hg < 7:
                e.salu("s_add_u32 s25, s25, 0x20000")
        for hg in range(1, 8):
            e.wait_vm(("p", hg))
            for cc in range(4):
                for r in range(0, 4, 2):
                    a_ = base + cc * 4 + r
                    b_ = base + (hg * 4 + cc) * 4 + r
                    e.ins("v_pk_add_f32 %s, %s, %s" % (vr(a_, 2), vr(a_, 2), vr(b_, 2)), "valu", V(a_, 2) + V(b_, 2), V(a_, 2))
        for r in range(4):
            d = 8 + (r % 2) * 2
            e.ins("v_cvt_pk_bf16_f32 v%d, v%d, v%d" % (d, base + r, base + 4 + r), "valu", V(base + r) + V(base + 4 + r), V(d))
            e.ins("v_cvt_pk_bf16_f32 v%d, v%d, v%d" % (d + 1, base + 8 + r, base + 12 + r), "valu", V(base + 8 + r) + V(base + 12 + r), V(d + 1))
            e.ins("buffer_store_dwordx2 %s, v4, s[%d:%d], s27 offen offset:%d" % (vr(d, 2), SRD_O, SRD_O + 3, r * 16), "vstore", V(d, 2) + V(4), (), tag="o")
        e.salu("s_waitcnt vmcnt(0)")
        e.salu("s_branch f_loop")
        e.label("f_end")
    if STAMP:
        e.salu("s_waitcnt vmcnt(0)")
        stamp()
        e.salu("s_waitcnt lgkmcnt(0)")
        e.salu("s_cmp_lg_u32 s2, %d" % int(OPT.get("dumpwg", 0)))
        e.salu("s_cbranch_scc1 main_done")
        e.salu("s_mov_b32 s%d, s38" % SRD_X)
        e.salu("s_mov_b32 s%d, s39" % (SRD_X + 1))
        e.salu("s_mov_b32 s%d, 1024" % (SRD_X + 2))
        e.salu("s_lshl_b32 s3, s%d, 6" % sW)
        e.salu("s_add_u32 s3, s3, 512")
        e.raw("v_mov_b32 v2, 0")
        for k in range(1, nst[0]):
            e.salu("s_sub_u32 s13, s%d, s80" % (80 + 2 * k))
            e.raw("v_mov_b32 v3, s13")
            e.raw("buffer_store_dword v3, v2, s[%d:%d], s3 offen offset:%d" % (SRD_X, SRD_X + 3, 4 * (k - 1)))
    e.label("main_done")
    e.salu("s_endpgm")
    return e.lines


def gen_reduce_bf():
    e = Emit()
    e.label("reduce_kernel")
    e.salu("s_cmp_ge_u32 s2, 256")
    e.salu("s_cbranch_scc1 reduce_done")
    e.salu("s_load_dwordx2 s[8:9], s[0:1], 80")
    e.salu("s_load_dwordx2 s[12:13], s[0:1], 96")
    e.ins("v_lshrrev_b32 v2, 6, v0", "valu", V(0), V(2))
    e.ins("v_and_b32 v1, 63, v0", "valu", V(0), V(1))
    e.ins("v_readfirstlane_b32 s7, v2", "rfl", V(2), [("s", 7)])
    e.ins("v_lshlrev_b32 v3, 4, v1", "valu", V(1), V(3))
    e.ins("v_and_b32 v4, 15, v1", "valu", V(1), V(4))
    e.ins("v_lshrrev_b32 v5, 4, v1", "valu", V(1), V(5))
    e.ins("v_lshlrev_b32 v5, 6, v5", "valu", V(5), V(5))
    e.ins("v_lshl_add_u32 v4, v4, 11, v5", "valu", V(4) + V(5), V(4))
    e.salu("s_nop 2")
    e.salu("s_lshl_b32 s3, s2, 2")
    e.salu("s_add_u32 s3, s3, s7")
    e.salu("s_and_b32 s20, s3, 1")
    e.salu("s_lshr_b32 s21, s3, 1")
    e.salu("s_and_b32 s21, s21, 3")
    e.salu("s_lshr_b32 s22, s3, 3")
    e.salu("s_and_b32 s22, s22, 3")
    e.salu("s_lshr_b32 s23, s3, 5")
    e.salu("s_and_b32 s23, s23, 15")
    e.salu("s_lshr_b32 s24, s3, 9")
    e.salu("s_lshl_b32 s25, s24, 4")
    e.salu("s_add_u32 s25, s25, s23")
    e.salu("s_lshl_b32 s25, s25, 5")
    e.salu("s_add_u32 s25, s25, s22")
    e.salu("s_lshl_b32 s25, s25, 14")
    e.salu("s_lshl_b32 s26, s21, 12")
    e.salu("s_add_u32 s25, s25, s26")
    e.salu("s_lshl_b32 s26, s20, 11")
    e.salu("s_add_u32 s25, s25, s26")
    e.salu("s_lshl_b32 s27, s23, 17")
    e.salu("s_lshl_b32 s26, s21, 15")
    e.salu("s_add_u32 s27, s27, s26")
    e.salu("s_lshl_b32 s26, s24, 10")
    e.salu("s_add_u32 s27, s27, s26")
    e.salu("s_lshl_b32 s26, s22, 8")
    e.salu("s_add_u32 s27, s27, s26")
    e.salu("s_lshl_b32 s26, s20, 5")
    e.salu("s_add_u32 s27, s27, s26")
    e.salu("s_mov_b32 s28, 0xffff0000")
    e.salu("s_waitcnt lgkmcnt(0)")
    e.salu("s_mov_b32 s10, 0x200000")
    e.salu("s_mov_b32 s11, 0x00020000")
    e.salu("s_mov_b32 s14, 0x2000000")
    e.salu("s_mov_b32 s15, 0x00020000")
    base = 32
    for hg in range(8):
        for rr in range(2):
            d = base + (hg * 2 + rr) * 4
            e.ins("buffer_load_dwordx4 %s, v3, s[12:15], s25 offen offset:%d" % (vr(d, 4), rr * 1024), "vload", V(3), V(d, 4), tag=("p", hg))
        if hg < 7:
            e.salu("s_add_u32 s25, s25, 0x10000")
    accb = 8
    for hg in range(8):
        e.wait_vm(("p", hg))
        for rr in range(2):
            for q in range(4):
                s_ = base + (hg * 2 + rr) * 4 + q
                a0 = accb + rr * 8 + 2 * q
                if hg == 0:
                    e.ins("v_lshlrev_b32 v%d, 16, v%d" % (a0, s_), "valu", V(s_), V(a0))
                    e.ins("v_and_b32 v%d, s28, v%d" % (a0 + 1, s_), "valu", V(s_), V(a0 + 1))
                else:
                    e.ins("v_lshlrev_b32 v24, 16, v%d" % s_, "valu", V(s_), V(24))
                    e.ins("v_and_b32 v25, s28, v%d" % s_, "valu", V(s_), V(25))
                    e.ins("v_pk_add_f32 %s, %s, v[24:25]" % (vr(a0, 2), vr(a0, 2)), "valu", V(a0, 2) + V(24, 2), V(a0, 2))
    for rr in range(2):
        d = 24 + rr * 4
        for q in range(4):
            a0 = accb + rr * 8 + 2 * q
            e.ins("v_cvt_pk_bf16_f32 v%d, v%d, v%d" % (d + q, a0, a0 + 1), "valu", V(a0, 2), V(d + q))
        e.ins("buffer_store_dwordx4 %s, v4, s[8:11], s27 offen offset:%d" % (vr(d, 4), rr * 16), "vstore", V(d, 4) + V(4), (), tag="o")
    e.label("reduce_done")
    e.salu("s_endpgm")
    return e.lines


HEADER = """; Fused two-branch attention block: Q-proj + attention + out-proj partials, then a reduce kernel.
; @launch kernel=main_kernel grid=(256,1,1) block=(256,1,1) lds=131072
; @launch kernel=reduce_kernel grid=(256,1,1) block=(256,1,1) lds=0
.amdgcn_target "amdgcn-amd-amdhsa--gfx950"
.text
"""


def main():
    hdr = HEADER
    kernels = [("main_kernel", gen_main()), ("reduce_kernel", gen_reduce_bf() if BFP else gen_reduce())]
    if FUSE:
        hdr = hdr.replace("; @launch kernel=reduce_kernel grid=(256,1,1) block=(256,1,1) lds=0\n", "")
        kernels = kernels[:1]
    rl = OPT.get("rl", "").replace("+", " ")
    ro = OPT.get("ro", "").replace("+", " ")
    if rl or ro:
        nk = []
        for name, lines in kernels:
            if name == "reduce_kernel":
                lines = [(l + " " + rl) if ("buffer_load_dwordx4" in l and rl) else ((l + " " + ro) if ("buffer_store" in l and ro) else l) for l in lines]
            nk.append((name, lines))
        kernels = nk
    out = [hdr]
    for name, lines in kernels:
        out.append(".globl %s\n.p2align 8\n.type %s,@function\n" % (name, name))
        out.append("\n".join(lines) + "\n")
    out.append('.section .rodata,"a"\n')
    out.append(kd("main_kernel", 512, 102, 256))
    if not FUSE:
        out.append(kd("reduce_kernel", 144, 32, 144))
    text = "".join(out)
    path = sys.argv[1] if len(sys.argv) > 1 else "cdna_kernels/%s.s" % NAME
    open(path, "w").write(text)
    print("wrote", path, len(text), "bytes")


if __name__ == "__main__":
    main()
```

```python
import struct, sys
from gen import Emit, V, A, vr, ar, f32bits, NAME, gen_reduce, kd

STAMP = len(sys.argv) > 2 and sys.argv[2] == "stamp"
OPT = dict(a.split("=") for a in sys.argv[3:])
TOUCH = int(OPT.get("touch", 1))
KVNT = int(OPT.get("kvnt", 1))
PRE = int(OPT.get("pre", 2))
NOKV = int(OPT.get("nokv", 0))
KVALL = int(OPT.get("kvall", 0))
STAG = int(OPT.get("stag", 0))
LATE = int(OPT.get("late", 0))
G4 = int(OPT.get("g4", 0))
KLDS = int(OPT.get("klds", 0))
FUSE = int(OPT.get("fuse", 0))
NOW = int(OPT.get("now", 0))
XQ = int(OPT.get("xq", 0))
ILP = int(OPT.get("ilp", 0))
MZ = int(OPT.get("mz", 0))
VO = int(OPT.get("vo", 0))
TLB = int(OPT.get("tlb", 0))
BFP = int(OPT.get("bfp", 0))
DIAG = OPT.get("diag", "")
SPIN = int(OPT.get("spin", 4000))
PBAR = int(OPT.get("pbar", 0))
STAGBIT = int(OPT.get("stagbit", 4))
ETOUCH = int(OPT.get("etouch", 0))
WOQ = int(OPT.get("woq", 0))
WNT = " nt" if int(OPT.get("wnt", 0)) else ""
XNT = " nt" if int(OPT.get("xnt", 0)) else ""
STF = OPT.get("stf", "").replace("+", " ")
STF = (" " + STF) if STF else ""
TNT = " nt" if int(OPT.get("tnt", 0)) else ""

D = 4
vL = 1
vWC = 2
vXr = 10
vK = 14
vV = 15
vRAW = 16
vFRAG = 144
vVRAW = 176
vOw = 240
vSt = 244
vT = 245

aACC = 0
aXF = 128
aKF = 160
aS = 224

sBR, sHG, sRB, sW = 4, 5, 6, 7
SRD_X, SRD_K, SRD_V, SRD_WQ, SRD_WO, SRD_WS, SRD_WC = 40, 44, 48, 52, 56, 60, 64
sWCo, sWCinc = 68, 69
sKV = 70
sSelLo, sSelHi = 74, 75
sSt = 76
sScale, sLog2e, sMask = 77, 78, 79
sXo = 8
sH = 9
sIt = 10
sWOo = 11
sR8 = 12
LDS_O = 65536


def srd(n):
    return "s[%d:%d]" % (n, n + 3)


def acc(rb, c):
    return aACC + (rb * 8 + c) * 4


def gen_main():
    e = Emit()
    nst = [0]

    def stamp():
        if not STAMP:
            return
        e.salu("s_memtime s[%d:%d]" % (80 + 2 * nst[0], 81 + 2 * nst[0]))
        nst[0] += 1

    e.label("main_kernel")
    e.salu("s_cmp_ge_u32 s2, 256")
    e.salu("s_cbranch_scc1 main_done")
    stamp()
    e.salu("s_load_dwordx16 s[16:31], s[0:1], 0")
    e.salu("s_load_dwordx4 s[32:35], s[0:1], 64")
    e.salu("s_load_dwordx2 s[36:37], s[0:1], 96")
    if STAMP or FUSE:
        e.salu("s_load_dwordx2 s[38:39], s[0:1], 88")
    if FUSE:
        e.salu("s_load_dwordx2 s[98:99], s[0:1], 80")
    e.ins("v_lshrrev_b32 v2, 6, v0", "valu", V(0), V(2))
    e.ins("v_and_b32 v%d, 63, v0" % vL, "valu", V(0), V(vL))
    e.ins("v_readfirstlane_b32 s%d, v2" % sW, "rfl", V(2), [("s", sW)])
    e.salu("s_and_b32 s3, s2, 7")
    e.salu("s_lshr_b32 s13, s2, 3")
    e.salu("s_lshr_b32 s%d, s3, 2" % sBR)
    e.salu("s_and_b32 s%d, s3, 3" % sHG)
    e.salu("s_lshl_b32 s%d, s%d, 1" % (sHG, sHG))
    e.salu("s_and_b32 s14, s13, 1")
    e.salu("s_or_b32 s%d, s%d, s14" % (sHG, sHG))
    e.salu("s_lshr_b32 s%d, s13, 1" % sRB)
    e.salu("s_lshr_b32 s12, s2, %d" % int(OPT.get("g4bit", 4)))
    e.salu("s_and_b32 s12, s12, 3")
    e.salu("s_mov_b32 s%d, 0x05040100" % sSelLo)
    e.salu("s_mov_b32 s%d, 0x07060302" % sSelHi)
    e.salu("s_mov_b32 s%d, 0x%08x" % (sScale, f32bits(128 ** -0.5)))
    e.salu("s_mov_b32 s%d, 0x%08x" % (sLog2e, f32bits(1.4426950408889634)))
    e.salu("s_mov_b32 s%d, 0xffff0000" % sMask)
    ti, tg, tt, t3 = vT, vT + 1, vT + 2, vT + 3
    e.ins("v_and_b32 v%d, 15, v%d" % (ti, vL), "valu", V(vL), V(ti))
    e.ins("v_lshrrev_b32 v%d, 4, v%d" % (tg, vL), "valu", V(vL), V(tg))
    e.ins("v_lshlrev_b32 v%d, 4, v%d" % (tt, ti), "valu", V(ti), V(tt))
    e.ins("v_lshl_add_u32 v%d, v%d, 16, v%d" % (vWC, tg, tt), "valu", V(tg) + V(tt), V(vWC))
    for j in range(1, 8):
        e.ins("v_add_u32 v%d, 0x%x, v%d" % (vWC + j, j * 8192, vWC), "valu", V(vWC), V(vWC + j))
    e.ins("v_lshlrev_b32 v%d, 8, v%d" % (vK, ti), "valu", V(ti), V(vK))
    e.ins("v_lshl_add_u32 v%d, v%d, 6, v%d" % (vK, tg, vK), "valu", V(tg) + V(vK), V(vK))
    e.ins("v_lshl_add_u32 v%d, v%d, 10, v%d" % (vV, tg, tt), "valu", V(tg) + V(tt), V(vV))
    e.ins("v_lshlrev_b32 v%d, 4, v%d" % (vSt, vL), "valu", V(vL), V(vSt))
    for slo in range(4):
        e.ins("v_add_u32 v%d, %d, v%d" % (t3, 4 * slo, tg), "valu", V(tg), V(t3))
        e.ins("v_xor_b32 v%d, v%d, v%d" % (t3, t3, ti), "valu", V(t3) + V(ti), V(t3))
        e.ins("v_lshlrev_b32 v%d, 4, v%d" % (t3, t3), "valu", V(t3), V(t3))
        e.ins("v_lshl_add_u32 v%d, v%d, 10, v%d" % (vXr + slo, ti, t3), "valu", V(ti) + V(t3), V(vXr + slo))
    tq, to = vT + 4, vT + 5
    e.ins("v_lshrrev_b32 v%d, 3, v%d" % (tq, vL), "valu", V(vL), V(tq))
    e.ins("v_and_b32 v%d, 7, v%d" % (t3, vL), "valu", V(vL), V(t3))
    e.ins("v_lshlrev_b32 v%d, 7, v%d" % (t3, t3), "valu", V(t3), V(t3))
    e.ins("v_lshl_add_u32 v%d, v%d, 13, v%d" % (tq, tq, t3), "valu", V(tq) + V(t3), V(tq))
    e.ins("v_lshlrev_b32 v%d, 7, v%d" % (to, vL), "valu", V(vL), V(to))
    e.salu("s_waitcnt lgkmcnt(0)")
    e.salu("s_cmp_eq_u32 s%d, 0" % sBR)
    e.salu("s_cselect_b64 s[%d:%d], s[16:17], s[26:27]" % (SRD_X, SRD_X + 1))
    e.salu("s_cselect_b64 s[%d:%d], s[18:19], s[28:29]" % (SRD_K, SRD_K + 1))
    e.salu("s_cselect_b64 s[%d:%d], s[20:21], s[30:31]" % (SRD_V, SRD_V + 1))
    e.salu("s_cselect_b64 s[%d:%d], s[22:23], s[32:33]" % (SRD_WQ, SRD_WQ + 1))
    e.salu("s_cselect_b64 s[%d:%d], s[24:25], s[34:35]" % (SRD_WO, SRD_WO + 1))
    e.salu("s_cselect_b64 s[%d:%d], s[22:23], s[32:33]" % (SRD_WC, SRD_WC + 1))
    e.salu("s_mov_b64 s[%d:%d], s[36:37]" % (SRD_WS, SRD_WS + 1))
    for base, size in ((SRD_X, 1 << 20), (SRD_K, 8 << 20), (SRD_V, 8 << 20), (SRD_WQ, 4 << 20), (SRD_WO, 4 << 20), (SRD_WS, 32 << 20), (SRD_WC, 4 << 20)):
        e.salu("s_mov_b32 s%d, 0x%x" % (base + 2, size))
        e.salu("s_mov_b32 s%d, 0x00020000" % (base + 3))
    if NOW:
        e.salu("s_mov_b32 s%d, 0" % (SRD_WC + 2))
    e.salu("s_lshl_b32 s%d, s%d, 2" % (sH, sHG))
    e.salu("s_add_u32 s%d, s%d, s%d" % (sH, sH, sW))
    e.salu("s_lshl_b32 s%d, s%d, 8" % (sWCo, sH))
    e.salu("s_mov_b32 s%d, 0x40000" % sWCinc)
    e.salu("s_lshl_b32 s%d, s%d, 19" % (sWOo, sHG))
    e.salu("s_lshl_b32 s3, s%d, 8" % sW)
    e.salu("s_add_u32 s%d, s%d, s3" % (sWOo, sWOo))
    e.salu("s_lshl_b32 s3, s%d, 6" % sRB)
    e.salu("s_add_u32 s3, s3, s%d" % sH)
    e.salu("s_lshl_b32 s%d, s3, 13" % sKV)
    e.salu("s_add_u32 s%d, s%d, 0x1000" % (sKV + 1, sKV))
    e.salu("s_add_u32 s%d, s%d, 0x40000" % (sKV + 2, sKV))
    e.salu("s_add_u32 s%d, s%d, 0x41000" % (sKV + 3, sKV))
    e.salu("s_lshl_b32 s%d, s%d, 16" % (sXo, sRB))
    e.salu("s_lshl_b32 s3, s%d, 14" % sW)
    e.salu("s_add_u32 s%d, s%d, s3" % (sXo, sXo))
    e.salu("s_lshl_b32 s3, s%d, 4" % sBR)
    e.salu("s_add_u32 s3, s3, s%d" % sRB)
    e.salu("s_lshl_b32 s3, s3, 3")
    e.salu("s_add_u32 s3, s3, s%d" % sHG)
    e.salu("s_lshl_b32 s3, s3, 2")
    e.salu("s_add_u32 s3, s3, s%d" % sW)
    e.salu("s_lshl_b32 s%d, s3, 15" % sSt)
    e.salu("s_lshl_b32 s13, s%d, 2" % sRB)
    e.salu("s_add_u32 s13, s13, s%d" % sW)
    e.salu("s_lshl_b32 s14, s13, 16")
    e.salu("s_lshl_b32 s3, s%d, 10" % sHG)
    e.salu("s_add_u32 s14, s14, s3")
    if WOQ:
        e.salu("s_mov_b64 s[%d:%d], s[%d:%d]" % (SRD_WC, SRD_WC + 1, SRD_WO, SRD_WO + 1))
        e.salu("s_mov_b32 s%d, s%d" % (sWCo, sWOo))
        e.salu("s_mov_b32 s%d, 0x8000" % sWCinc)
        e.ins("v_lshl_add_u32 v%d, v%d, 13, v%d" % (vWC, tg, tt), "valu", V(tg) + V(tt), V(vWC))
        for j in range(1, 8):
            e.ins("v_add_u32 v%d, 0x%x, v%d" % (vWC + j, j * 1024, vWC), "valu", V(vWC), V(vWC + j))
    if ETOUCH:
        e.ins("buffer_load_dword v%d, v%d, %s, s14 offen%s" % (vT + 6, tq, srd(SRD_WQ), TNT), "vload", V(tq), V(vT + 6), tag="touch")
    if TLB:
        tz = vT + 10
        e.ins("v_mov_b32 v%d, 0" % tz, "valu", (), V(tz))
        k = 0
        for srdn, so in ((SRD_K, sKV), (SRD_K, sKV + 2), (SRD_V, sKV), (SRD_V, sKV + 2), (SRD_WO, sWOo), (SRD_WS, sSt)):
            e.ins("buffer_load_dword v%d, v%d, %s, s%d offen" % (vFRAG + k, tz, srd(srdn), so), "vload", V(tz), V(vFRAG + k), tag="tlb")
            k += 1
    xa = vOw
    xv = vT + 9
    def xq_load(q):
        for n in range(4):
            d = vVRAW + q * 16 + n * 4
            e.salu("s_add_u32 s3, s%d, %d" % (sXo, n * 4096))
            e.ins("buffer_load_dwordx4 %s, v%d, %s, s3 offen offset:%d%s" % (vr(d, 4), xv, srd(SRD_X), q * 256, XNT),
                  "vload", V(xv), V(d, 4), tag=("x", q))
    def xq_write(q):
        e.wait_vm(("x", q))
        for n in range(4):
            d = vVRAW + q * 16 + n * 4
            e.ins("ds_write_b128 v%d, %s offset:%d" % (xa + n, vr(d, 4), n * 4096 + q * 256), "dswrite", V(xa + n) + V(d, 4), (), tag="xw")
    if XQ:
        e.ins("v_lshl_add_u32 v%d, v%d, 10, v%d" % (xv, tg, tt), "valu", V(tg) + V(tt), V(xv))
        e.ins("v_xor_b32 v%d, v%d, v%d" % (t3, ti, tg), "valu", V(ti) + V(tg), V(t3))
        e.ins("v_lshlrev_b32 v%d, 4, v%d" % (t3, t3), "valu", V(t3), V(t3))
        e.ins("v_lshl_add_u32 v%d, v%d, 10, v%d" % (t3, tg, t3), "valu", V(tg) + V(t3), V(t3))
        e.salu("s_lshl_b32 s3, s%d, 14" % sW)
        e.ins("v_add_u32 v%d, s3, v%d" % (xa, t3), "valu", V(t3), V(xa))
        for n in range(1, 4):
            e.ins("v_xor_b32 v%d, %d, v%d" % (xa + n, n * 64, xa), "valu", V(xa), V(xa + n))
        xq_load(0)
        xq_load(1)
    else:
      for r in range(16):
        if r and r % 4 == 0:
            e.salu("s_add_u32 s%d, s%d, 0x1000" % (sXo, sXo))
        d = vVRAW + 4 * r
        e.ins("buffer_load_dwordx4 %s, v%d, %s, s%d offen offset:%d%s" % (vr(d, 4), vSt, srd(SRD_X), sXo, (r % 4) * 1024, XNT),
              "vload", V(vSt), V(d, 4), tag="x")

    def wloads(t):
        out = []
        buf = vRAW + (t % D) * 32
        for j in range(8):
            d = buf + 4 * j
            def f(d=d, j=j):
                e.ins("buffer_load_dwordx4 %s, v%d, %s, s%d offen%s" % (vr(d, 4), vWC + j, srd(SRD_WC), sWCo, WNT),
                      "vload", V(vWC + j), V(d, 4), tag=("w", t))
            out.append(f)
        out.append(lambda: e.salu("s_add_u32 s%d, s%d, s%d" % (sWCo, sWCo, sWCinc)))
        return out

    for t in range(PRE):
        for f in wloads(t):
            f()
    if XQ:
        xq_load(2)
        xq_load(3)

    nt = " nt" if KVNT else ""

    def kv_burst(idx):
        if NOKV:
            return
        bb, isv = idx // 2, idx % 2
        for n in range(8):
            if not isv:
                kt, sp = n // 4, n % 4
                d = aKF + bb * 32 + (kt * 4 + sp) * 4
                e.ins("buffer_load_dwordx4 %s, v%d, %s, s%d offen offset:%d%s" % (ar(d, 4), vK, srd(SRD_K), sKV + bb * 2 + kt, sp * 16, nt),
                      "vload", V(vK), A(d, 4), tag=("kv", bb, 0))
            else:
                d = vVRAW + bb * 32 + n * 4
                e.ins("buffer_load_dwordx4 %s, v%d, %s, s%d offen offset:%d%s" % (vr(d, 4), vV, srd(SRD_V), sKV + bb * 2 + n // 4, (n % 4) * 256, nt),
                      "vload", V(vV), V(d, 4), tag=("kv", bb, 1))

    def zero_acc():
        if MZ:
            z = vT + 4
            z = vFRAG
            for k in range(4):
                e.ins("v_mov_b32 v%d, 0" % (z + k), "valu", (), V(z + k))
            for k in range(32):
                e.ins("v_mfma_f32_16x16x32_bf16 %s, %s, %s, 0" % (ar(aACC + 4 * k, 4), vr(z, 4), vr(z, 4)), "mfma", V(z, 4), A(aACC + 4 * k, 4))
        else:
            for k in range(128):
                e.ins("v_accvgpr_write_b32 a%d, 0" % (aACC + k), "valu", (), A(aACC + k))
    zero_acc()
    if XQ:
        xq_write(0)
        xq_write(1)
        stamp()
    else:
        tb = vT + 8
        e.ins("v_mov_b32 v%d, s%d" % (tb, sW), "valu", [("s", sW)], V(tb))
        e.ins("v_lshlrev_b32 v%d, 14, v%d" % (tb, tb), "valu", V(tb), V(tb))
        e.wait_vm("x")
        stamp()
        for r in range(16):
            ta = vT + 9 + (r % 2)
            e.ins("v_xor_b32 v%d, %d, v%d" % (ta, r, vL), "valu", V(vL), V(ta))
            e.ins("v_lshl_add_u32 v%d, v%d, 4, v%d" % (ta, ta, tb), "valu", V(ta) + V(tb), V(ta))
            d = vVRAW + 4 * r
            e.ins("ds_write_b128 v%d, %s offset:%d" % (ta, vr(d, 4), r * 1024), "dswrite", V(ta) + V(d, 4), (), tag="xw")
    if PBAR:
        e.wait_lgkm()
        e.salu("s_barrier")
    for t in range(PRE, D):
        for f in wloads(t):
            f()
    if TOUCH and not ETOUCH:
        e.ins("buffer_load_dword v%d, v%d, %s, s14 offen%s" % (vT + 6, tq, srd(SRD_WQ), TNT), "vload", V(tq), V(vT + 6), tag="touch")
    e.salu("s_lshl_b32 s14, s%d, 19" % sHG)
    e.salu("s_lshl_b32 s3, s13, 13")
    e.salu("s_add_u32 s14, s14, s3")
    if not PBAR:
        e.wait_lgkm()
        e.salu("s_barrier")
    if STAG:
        e.salu("s_bitcmp1_b32 s2, %d" % STAGBIT)
        e.salu("s_cbranch_scc1 skip_early_kv")
        for i in range(4):
            kv_burst(i)
        e.label("skip_early_kv")
    elif not LATE:
        kv_burst(0)
        if KVALL:
            kv_burst(1)
            kv_burst(2)
            kv_burst(3)
    stamp()

    def xf_read(u, rb):
        d = aXF + (u % 2) * 16 + rb * 4
        off = rb * 16384 + (256 if u == 4 else 0)
        e.ins("ds_read_b128 %s, v%d offset:%d" % (ar(d, 4), vXr + (u % 4), off), "dsread", V(vXr + (u % 4)), A(d, 4), tag=("xf", u % 4))

    def perm(t, c, p):
        buf = vRAW + (t % D) * 32
        s0 = buf + 4 * (2 * p + 1) + (c >> 1)
        s1 = buf + 4 * (2 * p) + (c >> 1)
        dd = vFRAG + c * 4 + p
        sel = sSelHi if (c & 1) else sSelLo
        e.ins("v_perm_b32 v%d, v%d, v%d, s%d" % (dd, s0, s1, sel), "valu", V(s0) + V(s1), V(dd))

    def phase_entry():
        for rb in range(4):
            xf_read(0, rb)
        e.wait_vm(("w", 0))
        for c in range(8):
            for p in range(4):
                perm(0, c, p)

    def loop_body():
        for u in range(4):
            e.comment("step %d" % u)
            e.wait_lgkm(("xf", u))
            if VO and u == 2:
                e.salu("s_cmp_eq_u32 s%d, 3" % sIt)
                e.salu("s_cselect_b32 s%d, 0, s%d" % (SRD_WC + 2, SRD_WC + 2))
            wl = wloads(u + D)
            m = 0
            for c in range(8):
                for rb in range(4):
                    ac = acc(rb, c)
                    xf = aXF + (u % 2) * 16 + rb * 4
                    e.ins("v_mfma_f32_16x16x32_bf16 %s, %s, %s, %s" % (ar(ac, 4), vr(vFRAG + c * 4, 4), ar(xf, 4), ar(ac, 4)), "mfma",
                          V(vFRAG + c * 4, 4) + A(xf, 4) + A(ac, 4), A(ac, 4), creads=A(ac, 4))
                    if c == 0 and "L" not in DIAG:
                        wl[2 * rb]()
                        wl[2 * rb + 1]()
                        if rb == 3:
                            wl[8]()
                            e.wait_vm(("w", u + 1))
                    if c >= 1 and "P" not in DIAG:
                        perm(u + 1, c - 1, rb)
                    if c == 2 and "X" not in DIAG:
                        xf_read(u + 1, rb)
                    m += 1
            for p in range(4):
                if "P" not in DIAG:
                    perm(u + 1, 7, p)
        for slo in range(4):
            e.ins("v_add_u32 v%d, 0x100, v%d" % (vXr + slo, vXr + slo), "valu", V(vXr + slo), V(vXr + slo))

    e.salu("s_mov_b32 s%d, 0" % sIt)
    phase_entry()
    e.label("gemm_loop")
    e.vm = [("w", 1)] * 8 + [("w", 2)] * 8 + [("w", 3)] * 8
    e.lgkm = [("xf", 0)] * 4
    e.last_w = {}
    e.nop(2)
    loop_body()
    e.salu("s_add_u32 s%d, s%d, 1" % (sIt, sIt))
    e.salu("s_cmp_eq_u32 s%d, 4" % sIt)
    e.salu("s_cbranch_scc1 attention")
    e.salu("s_cmp_eq_u32 s%d, 8" % sIt)
    e.salu("s_cbranch_scc1 epilogue")
    e.salu("s_cmp_eq_u32 s%d, 7" % sIt)
    e.salu("s_cbranch_scc1 it7")
    e.salu("s_cmp_gt_u32 s%d, 4" % sIt)
    e.salu("s_cbranch_scc1 gemm_loop")
    e.salu("s_cmp_eq_u32 s%d, 2" % sIt)
    e.salu("s_cbranch_scc1 it2")
    e.salu("s_cmp_eq_u32 s%d, 3" % sIt)
    e.salu("s_cbranch_scc1 it3")
    e.label("it1")
    if not FUSE:
        stamp()
    if XQ:
        e.lgkm = [("xf", 0)] * 4
        for n in range(4):
            d = vVRAW + 2 * 16 + n * 4
            e.ins("ds_write_b128 v%d, %s offset:%d" % (xa + n, vr(d, 4), n * 4096 + 2 * 256), "dswrite", V(xa + n) + V(d, 4), (), tag="xw")
        e.wait_lgkm()
        e.salu("s_barrier")
    if G4:
        e.salu("s_cmp_lg_u32 s12, 1")
        e.salu("s_cbranch_scc1 g4skip1")
        for i in range(4):
            kv_burst(i)
        e.label("g4skip1")
    if not KVALL and not STAG and not LATE:
        kv_burst(1)
    if TOUCH:
        e.ins("buffer_load_dword v%d, v%d, %s, s14 offen%s" % (vT + 6, to, srd(SRD_WO), TNT), "vload", V(to), V(vT + 6), tag="touch")
    e.salu("s_branch gemm_loop")
    e.label("it2")
    if not FUSE:
        stamp()
    if XQ:
        e.lgkm = [("xf", 0)] * 4
        for n in range(4):
            d = vVRAW + 3 * 16 + n * 4
            e.ins("ds_write_b128 v%d, %s offset:%d" % (xa + n, vr(d, 4), n * 4096 + 3 * 256), "dswrite", V(xa + n) + V(d, 4), (), tag="xw")
        e.wait_lgkm()
        e.salu("s_barrier")
    if G4:
        e.salu("s_cmp_lg_u32 s12, 2")
        e.salu("s_cbranch_scc1 g4skip2")
        for i in range(4):
            kv_burst(i)
        e.label("g4skip2")
    if not KVALL and not STAG and not LATE:
        kv_burst(2)
    e.salu("s_branch gemm_loop")
    e.label("it3")
    if not FUSE:
        stamp()
    if G4:
        e.salu("s_cmp_lg_u32 s12, 3")
        e.salu("s_cbranch_scc1 g4skip3")
        for i in range(4):
            kv_burst(i)
        e.label("g4skip3")
    if not KVALL and not STAG and not LATE:
        kv_burst(3)
    if LATE == 2:
        for i in range(4):
            kv_burst(i)
    e.salu("s_mov_b64 s[%d:%d], s[%d:%d]" % (SRD_WC, SRD_WC + 1, SRD_WO, SRD_WO + 1))
    e.salu("s_mov_b32 s%d, s%d" % (sWCo, sWOo))
    e.salu("s_mov_b32 s%d, 0x8000" % sWCinc)
    e.ins("v_and_b32 v%d, 15, v%d" % (ti, vL), "valu", V(vL), V(ti))
    e.ins("v_lshrrev_b32 v%d, 4, v%d" % (tg, vL), "valu", V(vL), V(tg))
    e.ins("v_lshlrev_b32 v%d, 4, v%d" % (tt, ti), "valu", V(ti), V(tt))
    e.ins("v_lshl_add_u32 v%d, v%d, 13, v%d" % (vWC, tg, tt), "valu", V(tg) + V(tt), V(vWC))
    for j in range(1, 8):
        e.ins("v_add_u32 v%d, 0x%x, v%d" % (vWC + j, j * 1024, vWC), "valu", V(vWC), V(vWC + j))
    e.salu("s_branch gemm_loop")
    e.label("it7")
    e.salu("s_mov_b32 s%d, 0" % (SRD_WC + 2))
    e.salu("s_branch gemm_loop")

    e.label("attention")
    stamp()
    e.last_w = {}
    e.nop(10)
    e.vm = [("w", 1)] * 8 + [("w", 2)] * 8 + [("w", 3)] * 8
    e.lgkm = [("xf", 0)] * 4
    e.wait_lgkm()
    if KLDS:
        e.salu("s_barrier")
        kb0 = vT + 4
        e.ins("v_and_b32 v%d, 15, v%d" % (ti, vL), "valu", V(vL), V(ti))
        e.ins("v_lshrrev_b32 v%d, 4, v%d" % (tg, vL), "valu", V(vL), V(tg))
        e.ins("v_xor_b32 v%d, v%d, v%d" % (t3, ti, tg), "valu", V(ti) + V(tg), V(t3))
        e.ins("v_lshlrev_b32 v%d, 4, v%d" % (t3, t3), "valu", V(t3), V(t3))
        e.ins("v_lshl_add_u32 v%d, v%d, 8, v%d" % (kb0, tg, t3), "valu", V(tg) + V(t3), V(kb0))
        for q in range(1, 4):
            e.ins("v_xor_b32 v%d, %d, v%d" % (kb0 + q, q * 64, kb0), "valu", V(kb0), V(kb0 + q))
        e.salu("s_lshl_b32 s13, s%d, 14" % sW)
        for bb in range(2):
            for n in range(8):
                e.salu("s_add_u32 s14, s13, %d" % (bb * 8192 + n * 1024))
                e.salu("s_add_u32 s3, s%d, %d" % (sKV + bb * 2, n * 1024))
                e.salu("s_mov_b32 m0, s14")
                e.salu("s_nop 0")
                e.ins("buffer_load_dwordx4 v%d, %s, s3 offen%s lds" % (kb0 + n % 4, srd(SRD_K), nt), "vload", V(kb0 + n % 4), (), tag=("kv", bb, 0))
            kv_burst(2 * bb + 1)
    elif LATE == 1:
        if G4:
            e.salu("s_cmp_lg_u32 s12, 0")
            e.salu("s_cbranch_scc1 g4skip0")
        for i in range(4):
            kv_burst(i)
        if G4:
            e.label("g4skip0")
    if STAG:
        e.salu("s_bitcmp1_b32 s2, %d" % STAGBIT)
        e.salu("s_cbranch_scc0 skip_late_kv")
        for i in range(4):
            kv_burst(i)
        e.salu("s_waitcnt vmcnt(0)")
        e.label("skip_late_kv")
        e.vm = []
    e.ins("v_and_b32 v%d, 15, v%d" % (ti, vL), "valu", V(vL), V(ti))
    e.ins("v_lshrrev_b32 v%d, 4, v%d" % (tg, vL), "valu", V(vL), V(tg))
    e.salu("s_lshl_b32 s3, s%d, 8" % sW)
    e.salu("s_add_u32 s3, s3, 0x%x" % LDS_O)
    for r in range(4):
        e.ins("v_lshl_add_u32 v%d, v%d, 2, %d" % (t3, tg, r), "valu", V(tg), V(t3))
        e.ins("v_xor_b32 v%d, v%d, v%d" % (t3, t3, ti), "valu", V(t3) + V(ti), V(t3))
        e.ins("v_lshlrev_b32 v%d, 4, v%d" % (t3, t3), "valu", V(t3), V(t3))
        e.ins("v_lshl_add_u32 v%d, v%d, 10, v%d" % (t3, ti, t3), "valu", V(ti) + V(t3), V(t3))
        e.ins("v_add_u32 v%d, s3, v%d" % (vOw + r, t3), "valu", V(t3), V(vOw + r))
    for slo in range(4):
        e.ins("v_add_u32 v%d, 0x%x, v%d" % (vXr + slo, LDS_O - 1024, vXr + slo), "valu", V(vXr + slo), V(vXr + slo))
    if ILP:
        QF = vFRAG
        def pack8(aregs, dq):
            for k in range(8):
                e.ins("v_accvgpr_read_b32 v%d, a%d" % (vT + k, aregs[k]), "valu", A(aregs[k]), V(vT + k))
            for p in range(4):
                e.ins("v_cvt_pk_bf16_f32 v%d, v%d, v%d" % (dq + p, vT + 2 * p, vT + 2 * p + 1), "valu", V(vT + 2 * p) + V(vT + 2 * p + 1), V(dq + p))
        def softmax_stream(vals, PFq, T):
            L = []
            def I(text, kind, r, w):
                L.append((text, kind, r, w))
            for rnd in range(2):
                for k in range(0, 8, 2):
                    I("v_cvt_pk_bf16_f32 v%d, v%d, v%d" % (T + k // 2, vals[k], vals[k + 1]), "valu", V(vals[k]) + V(vals[k + 1]), V(T + k // 2))
                for k in range(0, 8, 2):
                    I("v_lshlrev_b32 v%d, 16, v%d" % (vals[k], T + k // 2), "valu", V(T + k // 2), V(vals[k]))
                    I("v_and_b32 v%d, s%d, v%d" % (vals[k + 1], sMask, T + k // 2), "valu", V(T + k // 2), V(vals[k + 1]))
                if rnd == 0:
                    for x in vals:
                        I("v_mul_f32 v%d, s%d, v%d" % (x, sScale, x), "valu", V(x), V(x))
            mx, m2 = T, T + 1
            I("v_max3_f32 v%d, v%d, v%d, v%d" % (mx, vals[0], vals[1], vals[2]), "valu", V(vals[0]) + V(vals[1]) + V(vals[2]), V(mx))
            I("v_max3_f32 v%d, v%d, v%d, v%d" % (m2, vals[3], vals[4], vals[5]), "valu", V(vals[3]) + V(vals[4]) + V(vals[5]), V(m2))
            I("v_max3_f32 v%d, v%d, v%d, v%d" % (mx, mx, vals[6], vals[7]), "valu", V(mx) + V(vals[6]) + V(vals[7]), V(mx))
            I("v_max_f32 v%d, v%d, v%d" % (mx, mx, m2), "valu", V(mx) + V(m2), V(mx))
            for sw in ("v_permlane16_swap_b32", "v_permlane32_swap_b32"):
                I("v_mov_b32 v%d, v%d" % (m2, mx), "valu", V(mx), V(m2))
                I("%s v%d, v%d" % (sw, mx, m2), "permlane", V(mx) + V(m2), V(mx) + V(m2))
                I("v_max_f32 v%d, v%d, v%d" % (mx, mx, m2), "valu", V(mx) + V(m2), V(mx))
            for x in vals:
                I("v_sub_f32 v%d, v%d, v%d" % (x, x, mx), "valu", V(x) + V(mx), V(x))
            for x in vals:
                I("v_mul_f32 v%d, s%d, v%d" % (x, sLog2e, x), "valu", V(x), V(x))
            for x in vals:
                I("v_exp_f32 v%d, v%d" % (x, x), "trans", V(x), V(x))
            sm, s2_, s3_, s4_ = T, T + 1, T + 2, T + 3
            I("v_add_f32 v%d, v%d, v%d" % (sm, vals[0], vals[1]), "valu", V(vals[0]) + V(vals[1]), V(sm))
            I("v_add_f32 v%d, v%d, v%d" % (s2_, vals[2], vals[3]), "valu", V(vals[2]) + V(vals[3]), V(s2_))
            I("v_add_f32 v%d, v%d, v%d" % (s3_, vals[4], vals[5]), "valu", V(vals[4]) + V(vals[5]), V(s3_))
            I("v_add_f32 v%d, v%d, v%d" % (s4_, vals[6], vals[7]), "valu", V(vals[6]) + V(vals[7]), V(s4_))
            I("v_add_f32 v%d, v%d, v%d" % (sm, sm, s2_), "valu", V(sm) + V(s2_), V(sm))
            I("v_add_f32 v%d, v%d, v%d" % (s3_, s3_, s4_), "valu", V(s3_) + V(s4_), V(s3_))
            I("v_add_f32 v%d, v%d, v%d" % (sm, sm, s3_), "valu", V(sm) + V(s3_), V(sm))
            for sw in ("v_permlane16_swap_b32", "v_permlane32_swap_b32"):
                I("v_mov_b32 v%d, v%d" % (s2_, sm), "valu", V(sm), V(s2_))
                I("%s v%d, v%d" % (sw, sm, s2_), "permlane", V(sm) + V(s2_), V(sm) + V(s2_))
                I("v_add_f32 v%d, v%d, v%d" % (sm, sm, s2_), "valu", V(sm) + V(s2_), V(sm))
            I("v_rcp_f32 v%d, v%d" % (sm, sm), "trans", V(sm), V(sm))
            for x in vals:
                I("v_mul_f32 v%d, v%d, v%d" % (x, x, sm), "valu", V(x) + V(sm), V(x))
            for p in range(4):
                I("v_cvt_pk_bf16_f32 v%d, v%d, v%d" % (PFq + p, vals[2 * p], vals[2 * p + 1]), "valu", V(vals[2 * p]) + V(vals[2 * p + 1]), V(PFq + p))
            return L
        for bb in range(2):
            vb = vVRAW + bb * 32
            for qt in range(2):
                rb = 2 * bb + qt
                for sp in range(4):
                    pack8([acc(rb, c) + sp for c in range(8)], QF + (qt * 4 + sp) * 4)
            e.wait_vm(("kv", bb, 0))
            OV = vRAW + 64
            if VO and bb == 0:
                e.salu("s_waitcnt vmcnt(0)")
                e.vm = []
            for sp in range(4):
                for kt in range(2):
                    for qt in range(2):
                        kf = aKF + bb * 32 + (kt * 4 + sp) * 4
                        qf = QF + (qt * 4 + sp) * 4
                        if VO:
                            sd = OV + qt * 8 + kt * 4
                            if sp == 0:
                                e.ins("v_mfma_f32_16x16x32_bf16 %s, %s, %s, 0" % (vr(sd, 4), ar(kf, 4), vr(qf, 4)), "mfma",
                                      A(kf, 4) + V(qf, 4), V(sd, 4))
                            else:
                                e.ins("v_mfma_f32_16x16x32_bf16 %s, %s, %s, %s" % (vr(sd, 4), ar(kf, 4), vr(qf, 4), vr(sd, 4)), "mfma",
                                      A(kf, 4) + V(qf, 4) + V(sd, 4), V(sd, 4), creads=V(sd, 4))
                            continue
                        sd = aS + (kt * 2 + qt) * 4
                        if sp == 0:
                            e.ins("v_mfma_f32_16x16x32_bf16 %s, %s, %s, 0" % (ar(sd, 4), ar(kf, 4), vr(qf, 4)), "mfma",
                                  A(kf, 4) + V(qf, 4), A(sd, 4))
                        else:
                            e.ins("v_mfma_f32_16x16x32_bf16 %s, %s, %s, %s" % (ar(sd, 4), ar(kf, 4), vr(qf, 4), ar(sd, 4)), "mfma",
                                  A(kf, 4) + V(qf, 4) + A(sd, 4), A(sd, 4), creads=A(sd, 4))
            e.wait_vm(("kv", bb, 1))
            for c in range(8):
                for p in range(4):
                    s0 = vb + 4 * (2 * p + 1) + (c >> 1)
                    s1 = vb + 4 * (2 * p) + (c >> 1)
                    dd = QF + c * 4 + p
                    sel = sSelHi if (c & 1) else sSelLo
                    e.ins("v_perm_b32 v%d, v%d, v%d, s%d" % (dd, s0, s1, sel), "valu", V(s0) + V(s1), V(dd))
            SV = vb
            PF = vb + 16
            TT = vb + 24
            if VO:
                SS_ = OV
            else:
                SS_ = SV
                for qt in range(2):
                    for kt in range(2):
                        for r in range(4):
                            a_ = aS + (kt * 2 + qt) * 4 + r
                            d_ = SV + qt * 8 + kt * 4 + r
                            e.ins("v_accvgpr_read_b32 v%d, a%d" % (d_, a_), "valu", A(a_), V(d_))
            s0l = softmax_stream([SS_ + k for k in range(8)], PF, TT)
            s1l = softmax_stream([SS_ + 8 + k for k in range(8)], PF + 4, TT + 4)
            for x, y in zip(s0l, s1l):
                e.ins(*x)
                e.ins(*y)
            for qt in range(2):
                for c in range(8):
                    if VO:
                        od = OV + (qt * 8 + c) * 4
                        e.ins("v_mfma_f32_16x16x32_bf16 %s, %s, %s, 0" % (vr(od, 4), vr(QF + c * 4, 4), vr(PF + qt * 4, 4)), "mfma",
                              V(QF + c * 4, 4) + V(PF + qt * 4, 4), V(od, 4))
                        continue
                    ac = acc(2 * bb + qt, c)
                    e.ins("v_mfma_f32_16x16x32_bf16 %s, %s, %s, 0" % (ar(ac, 4), vr(QF + c * 4, 4), vr(PF + qt * 4, 4)), "mfma",
                          V(QF + c * 4, 4) + V(PF + qt * 4, 4), A(ac, 4))
            n = 0
            for qt in range(2):
                for r in range(4):
                    dq = SV + (n % 4) * 4
                    n += 1
                    if VO:
                        for p in range(4):
                            o0 = OV + (qt * 8 + 2 * p) * 4 + r
                            o1 = OV + (qt * 8 + 2 * p + 1) * 4 + r
                            e.ins("v_cvt_pk_bf16_f32 v%d, v%d, v%d" % (dq + p, o0, o1), "valu", V(o0) + V(o1), V(dq + p))
                    else:
                        pack8([acc(2 * bb + qt, c) + r for c in range(8)], dq)
                    e.ins("ds_write_b128 v%d, %s offset:%d" % (vOw + r, vr(dq, 4), (32 * bb + 16 * qt) * 1024), "dswrite",
                          V(vOw + r) + V(dq, 4), (), tag="ow")
    else:
        QF = vFRAG
        for bb in range(2):
            vb = vVRAW + bb * 32
            for qt in range(2):
                rb = 2 * bb + qt
                for sp in range(4):
                    for p in range(4):
                        t0 = vT + (p % 2) * 2
                        t1 = t0 + 1
                        a0 = acc(rb, 2 * p) + sp
                        a1 = acc(rb, 2 * p + 1) + sp
                        e.ins("v_accvgpr_read_b32 v%d, a%d" % (t0, a0), "valu", A(a0), V(t0))
                        e.ins("v_accvgpr_read_b32 v%d, a%d" % (t1, a1), "valu", A(a1), V(t1))
                        dd = QF + (qt * 4 + sp) * 4 + p
                        e.ins("v_cvt_pk_bf16_f32 v%d, v%d, v%d" % (dd, t0, t1), "valu", V(t0) + V(t1), V(dd))
            e.wait_vm(("kv", bb, 0))
            if KLDS:
                e.salu("s_lshl_b32 s3, s%d, 14" % sW)
                ki, kg = vT + 8, vT + 9
                e.ins("v_and_b32 v%d, 15, v%d" % (ki, vL), "valu", V(vL), V(ki))
                e.ins("v_lshrrev_b32 v%d, 4, v%d" % (kg, vL), "valu", V(vL), V(kg))
                for sp in range(4):
                    ka = vT + 4 + (sp % 2)
                    e.ins("v_lshl_add_u32 v%d, v%d, 2, %d" % (ka, kg, sp), "valu", V(kg), V(ka))
                    e.ins("v_xor_b32 v%d, v%d, v%d" % (ka, ka, ki), "valu", V(ka) + V(ki), V(ka))
                    e.ins("v_lshlrev_b32 v%d, 4, v%d" % (ka, ka), "valu", V(ka), V(ka))
                    e.ins("v_lshl_add_u32 v%d, v%d, 8, v%d" % (ka, ki, ka), "valu", V(ki) + V(ka), V(ka))
                    e.ins("v_add_u32 v%d, s3, v%d" % (ka, ka), "valu", V(ka), V(ka))
                    for kt in range(2):
                        d = aKF + bb * 32 + (kt * 4 + sp) * 4
                        e.ins("ds_read_b128 %s, v%d offset:%d" % (ar(d, 4), ka, bb * 8192 + kt * 4096), "dsread", V(ka), A(d, 4), tag="kf")
                e.wait_lgkm()
            for sp in range(4):
                for kt in range(2):
                    for qt in range(2):
                        sd = aS + (kt * 2 + qt) * 4
                        kf = aKF + bb * 32 + (kt * 4 + sp) * 4
                        qf = QF + (qt * 4 + sp) * 4
                        if sp == 0:
                            e.ins("v_mfma_f32_16x16x32_bf16 %s, %s, %s, 0" % (ar(sd, 4), ar(kf, 4), vr(qf, 4)), "mfma",
                                  A(kf, 4) + V(qf, 4), A(sd, 4))
                        else:
                            e.ins("v_mfma_f32_16x16x32_bf16 %s, %s, %s, %s" % (ar(sd, 4), ar(kf, 4), vr(qf, 4), ar(sd, 4)), "mfma",
                                  A(kf, 4) + V(qf, 4) + A(sd, 4), A(sd, 4), creads=A(sd, 4))
            e.wait_vm(("kv", bb, 1))
            for c in range(8):
                for p in range(4):
                    s0 = vb + 4 * (2 * p + 1) + (c >> 1)
                    s1 = vb + 4 * (2 * p) + (c >> 1)
                    dd = QF + c * 4 + p
                    sel = sSelHi if (c & 1) else sSelLo
                    e.ins("v_perm_b32 v%d, v%d, v%d, s%d" % (dd, s0, s1, sel), "valu", V(s0) + V(s1), V(dd))
            SV = vb
            PF = vb + 16
            TT = vb + 24
            for qt in range(2):
                for kt in range(2):
                    for r in range(4):
                        a_ = aS + (kt * 2 + qt) * 4 + r
                        d_ = SV + qt * 8 + kt * 4 + r
                        e.ins("v_accvgpr_read_b32 v%d, a%d" % (d_, a_), "valu", A(a_), V(d_))
            for qt in range(2):
                vals = [SV + qt * 8 + k for k in range(8)]
                for rnd in range(2):
                    for k in range(0, 8, 2):
                        x0, x1 = vals[k], vals[k + 1]
                        tp = TT
                        e.ins("v_cvt_pk_bf16_f32 v%d, v%d, v%d" % (tp, x0, x1), "valu", V(x0) + V(x1), V(tp))
                        e.ins("v_lshlrev_b32 v%d, 16, v%d" % (x0, tp), "valu", V(tp), V(x0))
                        e.ins("v_and_b32 v%d, s%d, v%d" % (x1, sMask, tp), "valu", V(tp), V(x1))
                        if rnd == 0:
                            e.ins("v_mul_f32 v%d, s%d, v%d" % (x0, sScale, x0), "valu", V(x0), V(x0))
                            e.ins("v_mul_f32 v%d, s%d, v%d" % (x1, sScale, x1), "valu", V(x1), V(x1))
                mx, m2 = TT + 1, TT + 2
                e.ins("v_max3_f32 v%d, v%d, v%d, v%d" % (mx, vals[0], vals[1], vals[2]), "valu", V(vals[0]) + V(vals[1]) + V(vals[2]), V(mx))
                e.ins("v_max3_f32 v%d, v%d, v%d, v%d" % (mx, mx, vals[3], vals[4]), "valu", V(mx) + V(vals[3]) + V(vals[4]), V(mx))
                e.ins("v_max3_f32 v%d, v%d, v%d, v%d" % (mx, mx, vals[5], vals[6]), "valu", V(mx) + V(vals[5]) + V(vals[6]), V(mx))
                e.ins("v_max_f32 v%d, v%d, v%d" % (mx, mx, vals[7]), "valu", V(mx) + V(vals[7]), V(mx))
                for sw in ("v_permlane16_swap_b32", "v_permlane32_swap_b32"):
                    e.ins("v_mov_b32 v%d, v%d" % (m2, mx), "valu", V(mx), V(m2))
                    e.ins("%s v%d, v%d" % (sw, mx, m2), "permlane", V(mx) + V(m2), V(mx) + V(m2))
                    e.ins("v_max_f32 v%d, v%d, v%d" % (mx, mx, m2), "valu", V(mx) + V(m2), V(mx))
                for x in vals:
                    e.ins("v_sub_f32 v%d, v%d, v%d" % (x, x, mx), "valu", V(x) + V(mx), V(x))
                for x in vals:
                    e.ins("v_mul_f32 v%d, s%d, v%d" % (x, sLog2e, x), "valu", V(x), V(x))
                for x in vals:
                    e.ins("v_exp_f32 v%d, v%d" % (x, x), "trans", V(x), V(x))
                sm, s2_ = TT + 3, TT + 4
                e.ins("v_add_f32 v%d, v%d, v%d" % (sm, vals[0], vals[1]), "valu", V(vals[0]) + V(vals[1]), V(sm))
                e.ins("v_add_f32 v%d, v%d, v%d" % (s2_, vals[2], vals[3]), "valu", V(vals[2]) + V(vals[3]), V(s2_))
                e.ins("v_add_f32 v%d, v%d, v%d" % (sm, sm, s2_), "valu", V(sm) + V(s2_), V(sm))
                e.ins("v_add_f32 v%d, v%d, v%d" % (s2_, vals[4], vals[5]), "valu", V(vals[4]) + V(vals[5]), V(s2_))
                e.ins("v_add_f32 v%d, v%d, v%d" % (sm, sm, s2_), "valu", V(sm) + V(s2_), V(sm))
                e.ins("v_add_f32 v%d, v%d, v%d" % (s2_, vals[6], vals[7]), "valu", V(vals[6]) + V(vals[7]), V(s2_))
                e.ins("v_add_f32 v%d, v%d, v%d" % (sm, sm, s2_), "valu", V(sm) + V(s2_), V(sm))
                for sw in ("v_permlane16_swap_b32", "v_permlane32_swap_b32"):
                    e.ins("v_mov_b32 v%d, v%d" % (s2_, sm), "valu", V(sm), V(s2_))
                    e.ins("%s v%d, v%d" % (sw, sm, s2_), "permlane", V(sm) + V(s2_), V(sm) + V(s2_))
                    e.ins("v_add_f32 v%d, v%d, v%d" % (sm, sm, s2_), "valu", V(sm) + V(s2_), V(sm))
                e.ins("v_rcp_f32 v%d, v%d" % (sm, sm), "trans", V(sm), V(sm))
                for x in vals:
                    e.ins("v_mul_f32 v%d, v%d, v%d" % (x, x, sm), "valu", V(x) + V(sm), V(x))
                for p in range(4):
                    dd = PF + qt * 4 + p
                    e.ins("v_cvt_pk_bf16_f32 v%d, v%d, v%d" % (dd, vals[2 * p], vals[2 * p + 1]), "valu", V(vals[2 * p]) + V(vals[2 * p + 1]), V(dd))
            for qt in range(2):
                for c in range(8):
                    ac = acc(2 * bb + qt, c)
                    e.ins("v_mfma_f32_16x16x32_bf16 %s, %s, %s, 0" % (ar(ac, 4), vr(QF + c * 4, 4), vr(PF + qt * 4, 4)), "mfma",
                          V(QF + c * 4, 4) + V(PF + qt * 4, 4), A(ac, 4))
            n = 0
            for qt in range(2):
                for r in range(4):
                    dq = SV + (n % 4) * 4
                    n += 1
                    for p in range(4):
                        t0 = vT + (p % 2) * 2
                        t1 = t0 + 1
                        a0 = acc(2 * bb + qt, 2 * p) + r
                        a1 = acc(2 * bb + qt, 2 * p + 1) + r
                        e.ins("v_accvgpr_read_b32 v%d, a%d" % (t0, a0), "valu", A(a0), V(t0))
                        e.ins("v_accvgpr_read_b32 v%d, a%d" % (t1, a1), "valu", A(a1), V(t1))
                        e.ins("v_cvt_pk_bf16_f32 v%d, v%d, v%d" % (dq + p, t0, t1), "valu", V(t0) + V(t1), V(dq + p))
                    e.ins("ds_write_b128 v%d, %s offset:%d" % (vOw + r, vr(dq, 4), (32 * bb + 16 * qt) * 1024), "dswrite",
                          V(vOw + r) + V(dq, 4), (), tag="ow")
    zero_acc()
    if VO:
        e.salu("s_mov_b32 s%d, 0x400000" % (SRD_WC + 2))
        e.salu("s_add_u32 s%d, s%d, 0x10000" % (sWCo, sWOo))
        for t in (2, 3):
            for f in wloads(t):
                f()
    e.wait_lgkm()
    stamp()
    e.salu("s_barrier")
    stamp()
    for rb in range(4):
        xf_read(0, rb)
    for c in range(8):
        for p in range(4):
            perm(0, c, p)
    e.salu("s_branch gemm_loop")

    e.label("epilogue")
    stamp()
    e.last_w = {}
    e.nop(10)
    n = 0
    if BFP == 2:
        B0 = vRAW
        e.salu("s_waitcnt vmcnt(0)")
        for rb in range(4):
            for r in range(4):
                for c in range(8):
                    d = B0 + (rb * 4 + r) * 8 + c
                    a0 = acc(rb, c) + r
                    e.ins("v_accvgpr_read_b32 v%d, a%d" % (d, a0), "valu", A(a0), V(d))
        m0, m1 = vT, vT + 1
        e.ins("v_max3_f32 v%d, |v%d|, |v%d|, |v%d|" % (m0, B0, B0 + 1, B0 + 2), "valu", V(B0, 3), V(m0))
        e.ins("v_max3_f32 v%d, |v%d|, |v%d|, |v%d|" % (m1, B0 + 3, B0 + 4, B0 + 5), "valu", V(B0 + 3, 3), V(m1))
        k = 6
        tog = 0
        while k < 128:
            mm = m0 if tog == 0 else m1
            e.ins("v_max3_f32 v%d, |v%d|, |v%d|, v%d" % (mm, B0 + k, B0 + k + 1, mm), "valu", V(B0 + k, 2) + V(mm), V(mm))
            k += 2
            tog ^= 1
        e.ins("v_max_f32 v%d, v%d, v%d" % (m0, m0, m1), "valu", V(m0) + V(m1), V(m0))
        e.ins("v_frexp_exp_i32_f32 v%d, v%d" % (m1, m0), "valu", V(m0), V(m1))
        e.ins("v_sub_u32 v%d, 15, v%d" % (m1, m1), "valu", V(m1), V(m1))
        e.salu("s_movk_i32 s3, 0xff82")
        e.salu("s_movk_i32 s13, 126")
        e.ins("v_mov_b32 v%d, s13" % (vT + 2), "valu", (), V(vT + 2))
        e.ins("v_med3_i32 v%d, v%d, s3, v%d" % (m1, m1, vT + 2), "valu", V(m1) + V(vT + 2), V(m1))
        sc0, inv = vT + 3, vT + 5
        e.ins("v_ldexp_f32 v%d, 1.0, v%d" % (sc0, m1), "valu", V(m1), V(sc0))
        e.ins("v_mov_b32 v%d, v%d" % (sc0 + 1, sc0), "valu", V(sc0), V(sc0 + 1))
        e.ins("v_sub_u32 v%d, 0, v%d" % (m1, m1), "valu", V(m1), V(m1))
        e.ins("v_ldexp_f32 v%d, 1.0, v%d" % (inv, m1), "valu", V(m1), V(inv))
        e.salu("s_lshr_b32 s3, s%d, 7" % sSt)
        e.salu("s_add_u32 s3, s3, 0x1000000")
        e.ins("v_lshlrev_b32 v%d, 2, v%d" % (vT + 6, vL), "valu", V(vL), V(vT + 6))
        e.ins("buffer_store_dword v%d, v%d, %s, s3 offen%s" % (inv, vT + 6, srd(SRD_WS), STF), "vstore", V(inv) + V(vT + 6), (), tag="st")
        e.salu("s_lshr_b32 s%d, s%d, 1" % (sSt, sSt))
        for rb in range(4):
            for r in range(4):
                if n and n % 4 == 0:
                    e.salu("s_add_u32 s%d, s%d, 0x1000" % (sSt, sSt))
                b = B0 + (rb * 4 + r) * 8
                dq = vFRAG + (n % 8) * 4
                for p in range(4):
                    e.ins("v_pk_mul_f32 %s, %s, %s" % (vr(b + 2 * p, 2), vr(b + 2 * p, 2), vr(sc0, 2)), "valu", V(b + 2 * p, 2) + V(sc0, 2), V(b + 2 * p, 2))
                for p in range(4):
                    e.ins("v_cvt_pk_f16_f32 v%d, v%d, v%d" % (dq + p, b + 2 * p, b + 2 * p + 1), "valu", V(b + 2 * p, 2), V(dq + p))
                e.ins("buffer_store_dwordx4 %s, v%d, %s, s%d offen offset:%d%s" % (vr(dq, 4), vSt, srd(SRD_WS), sSt, (n % 4) * 1024, STF),
                      "vstore", V(dq, 4) + V(vSt), (), tag="st")
                n += 1
    elif BFP:
        e.salu("s_lshr_b32 s%d, s%d, 1" % (sSt, sSt))
        for rb in range(4):
            for r in range(4):
                if n and n % 4 == 0:
                    e.salu("s_add_u32 s%d, s%d, 0x1000" % (sSt, sSt))
                dq = vRAW + (n % 8) * 4
                for p in range(4):
                    t0 = vT + (p % 2) * 2
                    t1 = t0 + 1
                    a0 = acc(rb, 2 * p) + r
                    a1 = acc(rb, 2 * p + 1) + r
                    e.ins("v_accvgpr_read_b32 v%d, a%d" % (t0, a0), "valu", A(a0), V(t0))
                    e.ins("v_accvgpr_read_b32 v%d, a%d" % (t1, a1), "valu", A(a1), V(t1))
                    e.ins("v_cvt_pk_bf16_f32 v%d, v%d, v%d" % (dq + p, t0, t1), "valu", V(t0) + V(t1), V(dq + p))
                e.ins("buffer_store_dwordx4 %s, v%d, %s, s%d offen offset:%d%s" % (vr(dq, 4), vSt, srd(SRD_WS), sSt, (n % 4) * 1024, STF),
                      "vstore", V(dq, 4) + V(vSt), (), tag="st")
                n += 1
    else:
      for rb in range(4):
        for c in range(8):
            if n and n % 4 == 0:
                e.salu("s_add_u32 s%d, s%d, 0x1000" % (sSt, sSt))
            ac = acc(rb, c)
            e.ins("buffer_store_dwordx4 %s, v%d, %s, s%d offen offset:%d%s" % (ar(ac, 4), vSt, srd(SRD_WS), sSt, (n % 4) * 1024, STF),
                  "vstore", A(ac, 4) + V(vSt), (), tag="st")
            n += 1
    if FUSE:
        SRD_D, SRD_O = SRD_X, SRD_K
        e.salu("s_waitcnt vmcnt(0)")
        stamp()
        e.salu("s_barrier")
        e.salu("s_mov_b32 s%d, s38" % SRD_D)
        e.salu("s_mov_b32 s%d, s39" % (SRD_D + 1))
        e.salu("s_mov_b32 s%d, 256" % (SRD_D + 2))
        e.salu("s_mov_b32 s%d, s98" % SRD_O)
        e.salu("s_mov_b32 s%d, s99" % (SRD_O + 1))
        e.salu("s_mov_b32 s%d, 0x200000" % (SRD_O + 2))
        e.salu("s_lshl_b32 s13, s%d, 4" % sBR)
        e.salu("s_add_u32 s13, s13, s%d" % sRB)
        e.salu("s_lshl_b32 s14, 1, s%d" % sHG)
        e.salu("s_cmp_lg_u32 s%d, 0" % sW)
        e.salu("s_cbranch_scc1 f_wait")
        e.salu("s_mov_b64 exec, 1")
        e.raw("v_mov_b32 v3, s13")
        e.raw("v_lshlrev_b32 v3, 2, v3")
        e.raw("v_mov_b32 v2, 1")
        e.raw("buffer_atomic_add v2, v3, s[%d:%d], 0 offen sc0 sc1" % (SRD_D, SRD_D + 3))
        e.salu("s_waitcnt vmcnt(0)")
        e.raw("v_readfirstlane_b32 s15, v2")
        e.salu("s_nop 3")
        e.salu("s_cmp_eq_u32 s15, 7")
        e.salu("s_cbranch_scc1 f_last")
        e.salu("s_mov_b32 s3, 0")
        e.label("f_spin")
        e.salu("s_sleep 4")
        e.raw("v_mov_b32 v2, 0")
        e.raw("buffer_atomic_add v2, v3, s[%d:%d], 0 offen sc0 sc1" % (SRD_D, SRD_D + 3))
        e.salu("s_waitcnt vmcnt(0)")
        e.raw("v_readfirstlane_b32 s15, v2")
        e.salu("s_nop 3")
        e.salu("s_cmp_eq_u32 s15, 8")
        e.salu("s_cbranch_scc1 f_decided")
        e.salu("s_add_u32 s3, s3, 1")
        e.salu("s_cmp_lt_u32 s3, %d" % SPIN)
        e.salu("s_cbranch_scc1 f_spin")
        e.raw("v_mov_b32 v2, s14")
        e.raw("buffer_atomic_or v2, v3, s[%d:%d], 0 offen offset:128 sc0 sc1" % (SRD_D, SRD_D + 3))
        e.salu("s_waitcnt vmcnt(0)")
        e.raw("v_mov_b32 v2, 0")
        e.raw("buffer_atomic_add v2, v3, s[%d:%d], 0 offen sc0 sc1" % (SRD_D, SRD_D + 3))
        e.salu("s_waitcnt vmcnt(0)")
        e.raw("v_readfirstlane_b32 s15, v2")
        e.salu("s_nop 3")
        e.salu("s_cmp_eq_u32 s15, 8")
        e.salu("s_cbranch_scc1 f_decided")
        e.salu("s_mov_b32 s14, 0")
        e.salu("s_branch f_decided")
        e.label("f_last")
        e.raw("v_mov_b32 v2, 0")
        e.raw("buffer_atomic_or v2, v3, s[%d:%d], 0 offen offset:128 sc0 sc1" % (SRD_D, SRD_D + 3))
        e.salu("s_waitcnt vmcnt(0)")
        e.raw("v_readfirstlane_b32 s15, v2")
        e.salu("s_nop 3")
        e.salu("s_or_b32 s14, s14, s15")
        e.label("f_decided")
        e.raw("v_mov_b32 v2, s14")
        e.raw("v_mov_b32 v3, 0")
        e.raw("ds_write_b32 v3, v2")
        e.salu("s_waitcnt lgkmcnt(0)")
        e.salu("s_mov_b64 exec, -1")
        e.label("f_wait")
        e.salu("s_barrier")
        stamp()
        e.raw("v_mov_b32 v3, 0")
        e.raw("ds_read_b32 v2, v3")
        e.salu("s_waitcnt lgkmcnt(0)")
        e.raw("v_readfirstlane_b32 s14, v2")
        e.raw("v_and_b32 v4, 15, v%d" % vL)
        e.raw("v_lshrrev_b32 v5, 4, v%d" % vL)
        e.raw("v_lshlrev_b32 v5, 6, v5")
        e.raw("v_lshl_add_u32 v4, v4, 11, v5")
        e.label("f_loop")
        e.salu("s_cmp_eq_u32 s14, 0")
        e.salu("s_cbranch_scc1 f_end")
        e.salu("s_ff1_i32_b32 s15, s14")
        e.salu("s_bitset0_b32 s14, s15")
        e.salu("s_lshr_b32 s20, s15, 1")
        e.salu("s_and_b32 s21, s15, 1")
        e.salu("s_lshl_b32 s21, s21, 1")
        e.salu("s_lshr_b32 s22, s%d, 1" % sW)
        e.salu("s_add_u32 s21, s21, s22")
        e.salu("s_and_b32 s22, s%d, 1" % sW)
        e.salu("s_lshl_b32 s25, s13, 5")
        e.salu("s_add_u32 s25, s25, s20")
        e.salu("s_lshl_b32 s25, s25, 15")
        e.salu("s_lshl_b32 s26, s21, 13")
        e.salu("s_add_u32 s25, s25, s26")
        e.salu("s_lshl_b32 s26, s22, 12")
        e.salu("s_add_u32 s25, s25, s26")
        e.salu("s_lshl_b32 s27, s%d, 17" % sRB)
        e.salu("s_lshl_b32 s26, s21, 15")
        e.salu("s_add_u32 s27, s27, s26")
        e.salu("s_lshl_b32 s26, s%d, 10" % sBR)
        e.salu("s_add_u32 s27, s27, s26")
        e.salu("s_lshl_b32 s26, s20, 8")
        e.salu("s_add_u32 s27, s27, s26")
        e.salu("s_lshl_b32 s26, s22, 3")
        e.salu("s_add_u32 s27, s27, s26")
        e.vm = []
        e.last_w = {}
        base = 16
        for hg in range(8):
            for cc in range(4):
                d = base + (hg * 4 + cc) * 4
                e.ins("buffer_load_dwordx4 %s, v%d, %s, s25 offen offset:%d sc1" % (vr(d, 4), vSt, srd(SRD_WS), cc * 1024), "vload", V(vSt), V(d, 4), tag=("p", hg))
            if hg < 7:
                e.salu("s_add_u32 s25, s25, 0x20000")
        for hg in range(1, 8):
            e.wait_vm(("p", hg))
            for cc in range(4):
                for r in range(0, 4, 2):
                    a_ = base + cc * 4 + r
                    b_ = base + (hg * 4 + cc) * 4 + r
                    e.ins("v_pk_add_f32 %s, %s, %s" % (vr(a_, 2), vr(a_, 2), vr(b_, 2)), "valu", V(a_, 2) + V(b_, 2), V(a_, 2))
        for r in range(4):
            d = 8 + (r % 2) * 2
            e.ins("v_cvt_pk_bf16_f32 v%d, v%d, v%d" % (d, base + r, base + 4 + r), "valu", V(base + r) + V(base + 4 + r), V(d))
            e.ins("v_cvt_pk_bf16_f32 v%d, v%d, v%d" % (d + 1, base + 8 + r, base + 12 + r), "valu", V(base + 8 + r) + V(base + 12 + r), V(d + 1))
            e.ins("buffer_store_dwordx2 %s, v4, s[%d:%d], s27 offen offset:%d" % (vr(d, 2), SRD_O, SRD_O + 3, r * 16), "vstore", V(d, 2) + V(4), (), tag="o")
        e.salu("s_waitcnt vmcnt(0)")
        e.salu("s_branch f_loop")
        e.label("f_end")
    if STAMP:
        e.salu("s_waitcnt vmcnt(0)")
        stamp()
        e.salu("s_waitcnt lgkmcnt(0)")
        e.salu("s_cmp_lg_u32 s2, %d" % int(OPT.get("dumpwg", 0)))
        e.salu("s_cbranch_scc1 main_done")
        e.salu("s_mov_b32 s%d, s38" % SRD_X)
        e.salu("s_mov_b32 s%d, s39" % (SRD_X + 1))
        e.salu("s_mov_b32 s%d, 1024" % (SRD_X + 2))
        e.salu("s_lshl_b32 s3, s%d, 6" % sW)
        e.salu("s_add_u32 s3, s3, 512")
        e.raw("v_mov_b32 v2, 0")
        for k in range(1, nst[0]):
            e.salu("s_sub_u32 s13, s%d, s80" % (80 + 2 * k))
            e.raw("v_mov_b32 v3, s13")
            e.raw("buffer_store_dword v3, v2, s[%d:%d], s3 offen offset:%d" % (SRD_X, SRD_X + 3, 4 * (k - 1)))
    e.label("main_done")
    e.salu("s_endpgm")
    return e.lines


def gen_reduce_bf():
    e = Emit()
    e.label("reduce_kernel")
    e.salu("s_cmp_ge_u32 s2, 256")
    e.salu("s_cbranch_scc1 reduce_done")
    e.salu("s_load_dwordx2 s[8:9], s[0:1], 80")
    e.salu("s_load_dwordx2 s[12:13], s[0:1], 96")
    e.ins("v_lshrrev_b32 v2, 6, v0", "valu", V(0), V(2))
    e.ins("v_and_b32 v1, 63, v0", "valu", V(0), V(1))
    e.ins("v_readfirstlane_b32 s7, v2", "rfl", V(2), [("s", 7)])
    e.ins("v_lshlrev_b32 v3, 4, v1", "valu", V(1), V(3))
    e.ins("v_and_b32 v4, 15, v1", "valu", V(1), V(4))
    e.ins("v_lshrrev_b32 v5, 4, v1", "valu", V(1), V(5))
    e.ins("v_lshlrev_b32 v5, 6, v5", "valu", V(5), V(5))
    e.ins("v_lshl_add_u32 v4, v4, 11, v5", "valu", V(4) + V(5), V(4))
    e.salu("s_nop 2")
    e.salu("s_lshl_b32 s3, s2, 2")
    e.salu("s_add_u32 s3, s3, s7")
    e.salu("s_and_b32 s20, s3, 1")
    e.salu("s_lshr_b32 s21, s3, 1")
    e.salu("s_and_b32 s21, s21, 3")
    e.salu("s_lshr_b32 s22, s3, 3")
    e.salu("s_and_b32 s22, s22, 3")
    e.salu("s_lshr_b32 s23, s3, 5")
    e.salu("s_and_b32 s23, s23, 15")
    e.salu("s_lshr_b32 s24, s3, 9")
    e.salu("s_lshl_b32 s25, s24, 4")
    e.salu("s_add_u32 s25, s25, s23")
    e.salu("s_lshl_b32 s25, s25, 5")
    e.salu("s_add_u32 s25, s25, s22")
    e.salu("s_lshl_b32 s25, s25, 14")
    e.salu("s_lshl_b32 s26, s21, 12")
    e.salu("s_add_u32 s25, s25, s26")
    e.salu("s_lshl_b32 s26, s20, 11")
    e.salu("s_add_u32 s25, s25, s26")
    e.salu("s_lshl_b32 s27, s23, 17")
    e.salu("s_lshl_b32 s26, s21, 15")
    e.salu("s_add_u32 s27, s27, s26")
    e.salu("s_lshl_b32 s26, s24, 10")
    e.salu("s_add_u32 s27, s27, s26")
    e.salu("s_lshl_b32 s26, s22, 8")
    e.salu("s_add_u32 s27, s27, s26")
    e.salu("s_lshl_b32 s26, s20, 5")
    e.salu("s_add_u32 s27, s27, s26")
    e.salu("s_mov_b32 s28, 0xffff0000")
    e.salu("s_waitcnt lgkmcnt(0)")
    e.salu("s_mov_b32 s10, 0x200000")
    e.salu("s_mov_b32 s11, 0x00020000")
    e.salu("s_mov_b32 s14, 0x2000000")
    e.salu("s_mov_b32 s15, 0x00020000")
    base = 32
    if BFP == 2:
        e.salu("s_lshl_b32 s29, s24, 4")
        e.salu("s_add_u32 s29, s29, s23")
        e.salu("s_lshl_b32 s29, s29, 5")
        e.salu("s_add_u32 s29, s29, s22")
        e.salu("s_lshl_b32 s29, s29, 8")
        e.salu("s_add_u32 s29, s29, 0x1000000")
        e.ins("v_lshlrev_b32 v6, 2, v1", "valu", V(1), V(6))
    for hg in range(8):
        if BFP == 2:
            e.ins("buffer_load_dword v%d, v6, s[12:15], s29 offen" % (96 + hg), "vload", V(6), V(96 + hg), tag=("p", hg))
            e.salu("s_add_u32 s29, s29, 1024")
        for rr in range(2):
            d = base + (hg * 2 + rr) * 4
            e.ins("buffer_load_dwordx4 %s, v3, s[12:15], s25 offen offset:%d" % (vr(d, 4), rr * 1024), "vload", V(3), V(d, 4), tag=("p", hg))
        if hg < 7:
            e.salu("s_add_u32 s25, s25, 0x10000")
    accb = 8
    if BFP == 2:
        for k in range(16):
            e.ins("v_mov_b32 v%d, 0" % (accb + k), "valu", (), V(accb + k))
    for hg in range(8):
        e.wait_vm(("p", hg))
        for rr in range(2):
            for q in range(4):
                s_ = base + (hg * 2 + rr) * 4 + q
                a0 = accb + rr * 8 + 2 * q
                if BFP == 2:
                    e.ins("v_fma_mix_f32 v%d, v%d, v%d, v%d op_sel_hi:[1,0,0]" % (a0, s_, 96 + hg, a0), "valu", V(s_) + V(96 + hg) + V(a0), V(a0))
                    e.ins("v_fma_mix_f32 v%d, v%d, v%d, v%d op_sel:[1,0,0] op_sel_hi:[1,0,0]" % (a0 + 1, s_, 96 + hg, a0 + 1), "valu", V(s_) + V(96 + hg) + V(a0 + 1), V(a0 + 1))
                elif hg == 0:
                    e.ins("v_lshlrev_b32 v%d, 16, v%d" % (a0, s_), "valu", V(s_), V(a0))
                    e.ins("v_and_b32 v%d, s28, v%d" % (a0 + 1, s_), "valu", V(s_), V(a0 + 1))
                else:
                    e.ins("v_lshlrev_b32 v24, 16, v%d" % s_, "valu", V(s_), V(24))
                    e.ins("v_and_b32 v25, s28, v%d" % s_, "valu", V(s_), V(25))
                    e.ins("v_pk_add_f32 %s, %s, v[24:25]" % (vr(a0, 2), vr(a0, 2)), "valu", V(a0, 2) + V(24, 2), V(a0, 2))
    for rr in range(2):
        d = 24 + rr * 4
        for q in range(4):
            a0 = accb + rr * 8 + 2 * q
            e.ins("v_cvt_pk_bf16_f32 v%d, v%d, v%d" % (d + q, a0, a0 + 1), "valu", V(a0, 2), V(d + q))
        e.ins("buffer_store_dwordx4 %s, v4, s[8:11], s27 offen offset:%d" % (vr(d, 4), rr * 16), "vstore", V(d, 4) + V(4), (), tag="o")
    e.label("reduce_done")
    e.salu("s_endpgm")
    return e.lines


HEADER = """; Fused two-branch attention block: Q-proj + attention + out-proj partials, then a reduce kernel.
; @launch kernel=main_kernel grid=(256,1,1) block=(256,1,1) lds=132096
; @launch kernel=reduce_kernel grid=(256,1,1) block=(256,1,1) lds=0
.amdgcn_target "amdgcn-amd-amdhsa--gfx950"
.text
"""


def main():
    hdr = HEADER
    kernels = [("main_kernel", gen_main()), ("reduce_kernel", gen_reduce_bf() if BFP else gen_reduce())]
    if FUSE:
        hdr = hdr.replace("; @launch kernel=reduce_kernel grid=(256,1,1) block=(256,1,1) lds=0\n", "")
        kernels = kernels[:1]
    rl = OPT.get("rl", "").replace("+", " ")
    ro = OPT.get("ro", "").replace("+", " ")
    if rl or ro:
        nk = []
        for name, lines in kernels:
            if name == "reduce_kernel":
                lines = [(l + " " + rl) if ("buffer_load_dwordx4" in l and rl) else ((l + " " + ro) if ("buffer_store" in l and ro) else l) for l in lines]
            nk.append((name, lines))
        kernels = nk
    out = [hdr]
    for name, lines in kernels:
        out.append(".globl %s\n.p2align 8\n.type %s,@function\n" % (name, name))
        out.append("\n".join(lines) + "\n")
    out.append('.section .rodata,"a"\n')
    out.append(kd("main_kernel", 512, 102, 256))
    if not FUSE:
        out.append(kd("reduce_kernel", 144, 32, 144))
    text = "".join(out)
    path = sys.argv[1] if len(sys.argv) > 1 else "cdna_kernels/%s.s" % NAME
    open(path, "w").write(text)
    print("wrote", path, len(text), "bytes")


if __name__ == "__main__":
    main()
```

```python
import struct, sys
from gen import Emit, V, A, vr, ar, f32bits, NAME, gen_reduce, kd

STAMP = len(sys.argv) > 2 and sys.argv[2] == "stamp"
OPT = dict(a.split("=") for a in sys.argv[3:])
TOUCH = int(OPT.get("touch", 1))
KVNT = int(OPT.get("kvnt", 1))
PRE = int(OPT.get("pre", 2))
NOKV = int(OPT.get("nokv", 0))
KVALL = int(OPT.get("kvall", 0))
STAG = int(OPT.get("stag", 0))
LATE = int(OPT.get("late", 0))
G4 = int(OPT.get("g4", 0))
KLDS = int(OPT.get("klds", 0))
FUSE = int(OPT.get("fuse", 0))
NOW = int(OPT.get("now", 0))
XQ = int(OPT.get("xq", 0))
XR = int(OPT.get("xr", 0))
ILP = int(OPT.get("ilp", 0))
MZ = int(OPT.get("mz", 0))
VO = int(OPT.get("vo", 0))
TLB = int(OPT.get("tlb", 0))
BFP = int(OPT.get("bfp", 0))
DIAG = OPT.get("diag", "")
SPIN = int(OPT.get("spin", 4000))
PBAR = int(OPT.get("pbar", 0))
STAGBIT = int(OPT.get("stagbit", 4))
ETOUCH = int(OPT.get("etouch", 0))
WOQ = int(OPT.get("woq", 0))
WNT = " nt" if int(OPT.get("wnt", 0)) else ""
XNT = " nt" if int(OPT.get("xnt", 0)) else ""
STF = OPT.get("stf", "").replace("+", " ")
STF = (" " + STF) if STF else ""
TNT = " nt" if int(OPT.get("tnt", 0)) else ""

D = 4
vL = 1
vWC = 2
vXr = 10
vK = 14
vV = 15
vRAW = 16
vFRAG = 144
vVRAW = 176
vOw = 240
vSt = 244
vT = 245

aACC = 0
aXF = 128
aKF = 160
aS = 224

sBR, sHG, sRB, sW = 4, 5, 6, 7
SRD_X, SRD_K, SRD_V, SRD_WQ, SRD_WO, SRD_WS, SRD_WC = 40, 44, 48, 52, 56, 60, 64
sWCo, sWCinc = 68, 69
sKV = 70
sSelLo, sSelHi = 74, 75
sSt = 76
sScale, sLog2e, sMask = 77, 78, 79
sXo = 8
sH = 9
sIt = 10
sWOo = 11
sR8 = 12
LDS_O = 65536


def srd(n):
    return "s[%d:%d]" % (n, n + 3)


def acc(rb, c):
    return aACC + (rb * 8 + c) * 4


def gen_main():
    e = Emit()
    nst = [0]

    def stamp():
        if not STAMP:
            return
        e.salu("s_memtime s[%d:%d]" % (80 + 2 * nst[0], 81 + 2 * nst[0]))
        nst[0] += 1

    e.label("main_kernel")
    e.salu("s_cmp_ge_u32 s2, 256")
    e.salu("s_cbranch_scc1 main_done")
    stamp()
    e.salu("s_load_dwordx16 s[16:31], s[0:1], 0")
    e.salu("s_load_dwordx4 s[32:35], s[0:1], 64")
    e.salu("s_load_dwordx2 s[36:37], s[0:1], 96")
    if STAMP or FUSE:
        e.salu("s_load_dwordx2 s[38:39], s[0:1], 88")
    if FUSE:
        e.salu("s_load_dwordx2 s[98:99], s[0:1], 80")
    e.ins("v_lshrrev_b32 v2, 6, v0", "valu", V(0), V(2))
    e.ins("v_and_b32 v%d, 63, v0" % vL, "valu", V(0), V(vL))
    e.ins("v_readfirstlane_b32 s%d, v2" % sW, "rfl", V(2), [("s", sW)])
    e.salu("s_and_b32 s3, s2, 7")
    e.salu("s_lshr_b32 s13, s2, 3")
    e.salu("s_lshr_b32 s%d, s3, 2" % sBR)
    e.salu("s_and_b32 s%d, s3, 3" % sHG)
    e.salu("s_lshl_b32 s%d, s%d, 1" % (sHG, sHG))
    e.salu("s_and_b32 s14, s13, 1")
    e.salu("s_or_b32 s%d, s%d, s14" % (sHG, sHG))
    e.salu("s_lshr_b32 s%d, s13, 1" % sRB)
    e.salu("s_lshr_b32 s12, s2, %d" % int(OPT.get("g4bit", 4)))
    e.salu("s_and_b32 s12, s12, 3")
    e.salu("s_mov_b32 s%d, 0x05040100" % sSelLo)
    e.salu("s_mov_b32 s%d, 0x07060302" % sSelHi)
    e.salu("s_mov_b32 s%d, 0x%08x" % (sScale, f32bits(128 ** -0.5)))
    e.salu("s_mov_b32 s%d, 0x%08x" % (sLog2e, f32bits(1.4426950408889634)))
    e.salu("s_mov_b32 s%d, 0xffff0000" % sMask)
    ti, tg, tt, t3 = vT, vT + 1, vT + 2, vT + 3
    e.ins("v_and_b32 v%d, 15, v%d" % (ti, vL), "valu", V(vL), V(ti))
    e.ins("v_lshrrev_b32 v%d, 4, v%d" % (tg, vL), "valu", V(vL), V(tg))
    e.ins("v_lshlrev_b32 v%d, 4, v%d" % (tt, ti), "valu", V(ti), V(tt))
    e.ins("v_lshl_add_u32 v%d, v%d, 16, v%d" % (vWC, tg, tt), "valu", V(tg) + V(tt), V(vWC))
    for j in range(1, 8):
        e.ins("v_add_u32 v%d, 0x%x, v%d" % (vWC + j, j * 8192, vWC), "valu", V(vWC), V(vWC + j))
    e.ins("v_lshlrev_b32 v%d, 8, v%d" % (vK, ti), "valu", V(ti), V(vK))
    e.ins("v_lshl_add_u32 v%d, v%d, 6, v%d" % (vK, tg, vK), "valu", V(tg) + V(vK), V(vK))
    e.ins("v_lshl_add_u32 v%d, v%d, 10, v%d" % (vV, tg, tt), "valu", V(tg) + V(tt), V(vV))
    e.ins("v_lshlrev_b32 v%d, 4, v%d" % (vSt, vL), "valu", V(vL), V(vSt))
    for slo in range(4):
        e.ins("v_add_u32 v%d, %d, v%d" % (t3, 4 * slo, tg), "valu", V(tg), V(t3))
        e.ins("v_xor_b32 v%d, v%d, v%d" % (t3, t3, ti), "valu", V(t3) + V(ti), V(t3))
        e.ins("v_lshlrev_b32 v%d, 4, v%d" % (t3, t3), "valu", V(t3), V(t3))
        e.ins("v_lshl_add_u32 v%d, v%d, 10, v%d" % (vXr + slo, ti, t3), "valu", V(ti) + V(t3), V(vXr + slo))
    tq, to = vT + 4, vT + 5
    e.ins("v_lshrrev_b32 v%d, 3, v%d" % (tq, vL), "valu", V(vL), V(tq))
    e.ins("v_and_b32 v%d, 7, v%d" % (t3, vL), "valu", V(vL), V(t3))
    e.ins("v_lshlrev_b32 v%d, 7, v%d" % (t3, t3), "valu", V(t3), V(t3))
    e.ins("v_lshl_add_u32 v%d, v%d, 13, v%d" % (tq, tq, t3), "valu", V(tq) + V(t3), V(tq))
    e.ins("v_lshlrev_b32 v%d, 7, v%d" % (to, vL), "valu", V(vL), V(to))
    e.salu("s_waitcnt lgkmcnt(0)")
    e.salu("s_cmp_eq_u32 s%d, 0" % sBR)
    e.salu("s_cselect_b64 s[%d:%d], s[16:17], s[26:27]" % (SRD_X, SRD_X + 1))
    e.salu("s_cselect_b64 s[%d:%d], s[18:19], s[28:29]" % (SRD_K, SRD_K + 1))
    e.salu("s_cselect_b64 s[%d:%d], s[20:21], s[30:31]" % (SRD_V, SRD_V + 1))
    e.salu("s_cselect_b64 s[%d:%d], s[22:23], s[32:33]" % (SRD_WQ, SRD_WQ + 1))
    e.salu("s_cselect_b64 s[%d:%d], s[24:25], s[34:35]" % (SRD_WO, SRD_WO + 1))
    e.salu("s_cselect_b64 s[%d:%d], s[22:23], s[32:33]" % (SRD_WC, SRD_WC + 1))
    e.salu("s_mov_b64 s[%d:%d], s[36:37]" % (SRD_WS, SRD_WS + 1))
    for base, size in ((SRD_X, 1 << 20), (SRD_K, 8 << 20), (SRD_V, 8 << 20), (SRD_WQ, 4 << 20), (SRD_WO, 4 << 20), (SRD_WS, 32 << 20), (SRD_WC, 4 << 20)):
        e.salu("s_mov_b32 s%d, 0x%x" % (base + 2, size))
        e.salu("s_mov_b32 s%d, 0x00020000" % (base + 3))
    if NOW:
        e.salu("s_mov_b32 s%d, 0" % (SRD_WC + 2))
    e.salu("s_lshl_b32 s%d, s%d, 2" % (sH, sHG))
    e.salu("s_add_u32 s%d, s%d, s%d" % (sH, sH, sW))
    e.salu("s_lshl_b32 s%d, s%d, 8" % (sWCo, sH))
    e.salu("s_mov_b32 s%d, 0x40000" % sWCinc)
    e.salu("s_lshl_b32 s%d, s%d, 19" % (sWOo, sHG))
    e.salu("s_lshl_b32 s3, s%d, 8" % sW)
    e.salu("s_add_u32 s%d, s%d, s3" % (sWOo, sWOo))
    e.salu("s_lshl_b32 s3, s%d, 6" % sRB)
    e.salu("s_add_u32 s3, s3, s%d" % sH)
    e.salu("s_lshl_b32 s%d, s3, 13" % sKV)
    e.salu("s_add_u32 s%d, s%d, 0x1000" % (sKV + 1, sKV))
    e.salu("s_add_u32 s%d, s%d, 0x40000" % (sKV + 2, sKV))
    e.salu("s_add_u32 s%d, s%d, 0x41000" % (sKV + 3, sKV))
    e.salu("s_lshl_b32 s%d, s%d, 16" % (sXo, sRB))
    e.salu("s_lshl_b32 s3, s%d, 14" % sW)
    e.salu("s_add_u32 s%d, s%d, s3" % (sXo, sXo))
    e.salu("s_lshl_b32 s3, s%d, 4" % sBR)
    e.salu("s_add_u32 s3, s3, s%d" % sRB)
    e.salu("s_lshl_b32 s3, s3, 3")
    e.salu("s_add_u32 s3, s3, s%d" % sHG)
    e.salu("s_lshl_b32 s3, s3, 2")
    e.salu("s_add_u32 s3, s3, s%d" % sW)
    e.salu("s_lshl_b32 s%d, s3, 15" % sSt)
    e.salu("s_lshl_b32 s13, s%d, 2" % sRB)
    e.salu("s_add_u32 s13, s13, s%d" % sW)
    e.salu("s_lshl_b32 s14, s13, 16")
    e.salu("s_lshl_b32 s3, s%d, 10" % sHG)
    e.salu("s_add_u32 s14, s14, s3")
    if WOQ:
        e.salu("s_mov_b64 s[%d:%d], s[%d:%d]" % (SRD_WC, SRD_WC + 1, SRD_WO, SRD_WO + 1))
        e.salu("s_mov_b32 s%d, s%d" % (sWCo, sWOo))
        e.salu("s_mov_b32 s%d, 0x8000" % sWCinc)
        e.ins("v_lshl_add_u32 v%d, v%d, 13, v%d" % (vWC, tg, tt), "valu", V(tg) + V(tt), V(vWC))
        for j in range(1, 8):
            e.ins("v_add_u32 v%d, 0x%x, v%d" % (vWC + j, j * 1024, vWC), "valu", V(vWC), V(vWC + j))
    if ETOUCH:
        e.ins("buffer_load_dword v%d, v%d, %s, s14 offen%s" % (vT + 6, tq, srd(SRD_WQ), TNT), "vload", V(tq), V(vT + 6), tag="touch")
    if TLB:
        tz = vT + 10
        e.ins("v_mov_b32 v%d, 0" % tz, "valu", (), V(tz))
        k = 0
        for srdn, so in ((SRD_K, sKV), (SRD_K, sKV + 2), (SRD_V, sKV), (SRD_V, sKV + 2), (SRD_WO, sWOo), (SRD_WS, sSt)):
            e.ins("buffer_load_dword v%d, v%d, %s, s%d offen" % (vFRAG + k, tz, srd(srdn), so), "vload", V(tz), V(vFRAG + k), tag="tlb")
            k += 1
    xa = vOw
    xv = vT + 9
    def xq_load(q):
        for n in range(4):
            d = vVRAW + q * 16 + n * 4
            e.salu("s_add_u32 s3, s%d, %d" % (sXo, n * 4096))
            e.ins("buffer_load_dwordx4 %s, v%d, %s, s3 offen offset:%d%s" % (vr(d, 4), xv, srd(SRD_X), q * 256, XNT),
                  "vload", V(xv), V(d, 4), tag=("x", q))
    def xq_write(q):
        e.wait_vm(("x", q))
        for n in range(4):
            d = vVRAW + q * 16 + n * 4
            e.ins("ds_write_b128 v%d, %s offset:%d" % (xa + n, vr(d, 4), n * 4096 + q * 256), "dswrite", V(xa + n) + V(d, 4), (), tag="xw")
    if XQ:
        e.ins("v_lshl_add_u32 v%d, v%d, 10, v%d" % (xv, tg, tt), "valu", V(tg) + V(tt), V(xv))
        e.ins("v_xor_b32 v%d, v%d, v%d" % (t3, ti, tg), "valu", V(ti) + V(tg), V(t3))
        e.ins("v_lshlrev_b32 v%d, 4, v%d" % (t3, t3), "valu", V(t3), V(t3))
        e.ins("v_lshl_add_u32 v%d, v%d, 10, v%d" % (t3, tg, t3), "valu", V(tg) + V(t3), V(t3))
        e.salu("s_lshl_b32 s3, s%d, 14" % sW)
        e.ins("v_add_u32 v%d, s3, v%d" % (xa, t3), "valu", V(t3), V(xa))
        for n in range(1, 4):
            e.ins("v_xor_b32 v%d, %d, v%d" % (xa + n, n * 64, xa), "valu", V(xa), V(xa + n))
        xq_load(0)
        xq_load(1)
    else:
      for r in range(16):
        if r and r % 4 == 0:
            e.salu("s_add_u32 s%d, s%d, 0x1000" % (sXo, sXo))
        d = vVRAW + 4 * r
        e.ins("buffer_load_dwordx4 %s, v%d, %s, s%d offen offset:%d%s" % (vr(d, 4), vSt, srd(SRD_X), sXo, (r % 4) * 1024, XNT),
              "vload", V(vSt), V(d, 4), tag="x")

    def wloads(t):
        out = []
        buf = vRAW + (t % D) * 32
        for j in range(8):
            d = buf + 4 * j
            def f(d=d, j=j):
                e.ins("buffer_load_dwordx4 %s, v%d, %s, s%d offen%s" % (vr(d, 4), vWC + j, srd(SRD_WC), sWCo, WNT),
                      "vload", V(vWC + j), V(d, 4), tag=("w", t))
            out.append(f)
        out.append(lambda: e.salu("s_add_u32 s%d, s%d, s%d" % (sWCo, sWCo, sWCinc)))
        return out

    for t in range(PRE):
        for f in wloads(t):
            f()
    if XQ:
        xq_load(2)
        xq_load(3)

    nt = " nt" if KVNT else ""

    def kv_burst(idx):
        if NOKV:
            return
        bb, isv = idx // 2, idx % 2
        for n in range(8):
            if not isv:
                kt, sp = n // 4, n % 4
                d = aKF + bb * 32 + (kt * 4 + sp) * 4
                e.ins("buffer_load_dwordx4 %s, v%d, %s, s%d offen offset:%d%s" % (ar(d, 4), vK, srd(SRD_K), sKV + bb * 2 + kt, sp * 16, nt),
                      "vload", V(vK), A(d, 4), tag=("kv", bb, 0))
            else:
                d = vVRAW + bb * 32 + n * 4
                e.ins("buffer_load_dwordx4 %s, v%d, %s, s%d offen offset:%d%s" % (vr(d, 4), vV, srd(SRD_V), sKV + bb * 2 + n // 4, (n % 4) * 256, nt),
                      "vload", V(vV), V(d, 4), tag=("kv", bb, 1))

    def zero_acc():
        if MZ:
            z = vT + 4
            z = vFRAG
            for k in range(4):
                e.ins("v_mov_b32 v%d, 0" % (z + k), "valu", (), V(z + k))
            for k in range(32):
                e.ins("v_mfma_f32_16x16x32_bf16 %s, %s, %s, 0" % (ar(aACC + 4 * k, 4), vr(z, 4), vr(z, 4)), "mfma", V(z, 4), A(aACC + 4 * k, 4))
        else:
            for k in range(128):
                e.ins("v_accvgpr_write_b32 a%d, 0" % (aACC + k), "valu", (), A(aACC + k))
    zero_acc()
    if XQ:
        xq_write(0)
        xq_write(1)
        stamp()
    else:
        tb = vT + 8
        e.ins("v_mov_b32 v%d, s%d" % (tb, sW), "valu", [("s", sW)], V(tb))
        e.ins("v_lshlrev_b32 v%d, 14, v%d" % (tb, tb), "valu", V(tb), V(tb))
        e.wait_vm("x")
        stamp()
        for r in range(16):
            ta = vT + 9 + (r % 2)
            e.ins("v_xor_b32 v%d, %d, v%d" % (ta, r, vL), "valu", V(vL), V(ta))
            e.ins("v_lshl_add_u32 v%d, v%d, 4, v%d" % (ta, ta, tb), "valu", V(ta) + V(tb), V(ta))
            d = vVRAW + 4 * r
            e.ins("ds_write_b128 v%d, %s offset:%d" % (ta, vr(d, 4), r * 1024), "dswrite", V(ta) + V(d, 4), (), tag="xw")
    if PBAR:
        e.wait_lgkm()
        e.salu("s_barrier")
    for t in range(PRE, D):
        for f in wloads(t):
            f()
    if TOUCH and not ETOUCH:
        e.ins("buffer_load_dword v%d, v%d, %s, s14 offen%s" % (vT + 6, tq, srd(SRD_WQ), TNT), "vload", V(tq), V(vT + 6), tag="touch")
    e.salu("s_lshl_b32 s14, s%d, 19" % sHG)
    e.salu("s_lshl_b32 s3, s13, 13")
    e.salu("s_add_u32 s14, s14, s3")
    if not PBAR:
        e.wait_lgkm()
        e.salu("s_barrier")
    if STAG:
        e.salu("s_bitcmp1_b32 s2, %d" % STAGBIT)
        e.salu("s_cbranch_scc1 skip_early_kv")
        for i in range(4):
            kv_burst(i)
        e.label("skip_early_kv")
    elif not LATE:
        kv_burst(0)
        if KVALL:
            kv_burst(1)
            kv_burst(2)
            kv_burst(3)
    stamp()

    def xf_read(u, rb):
        d = aXF + (u % 2) * 16 + rb * 4
        off = rb * 16384 + (256 if u == 4 else 0)
        e.ins("ds_read_b128 %s, v%d offset:%d" % (ar(d, 4), vXr + (u % 4), off), "dsread", V(vXr + (u % 4)), A(d, 4), tag=("xf", u % 4))

    def perm(t, c, p):
        buf = vRAW + (t % D) * 32
        s0 = buf + 4 * (2 * p + 1) + (c >> 1)
        s1 = buf + 4 * (2 * p) + (c >> 1)
        dd = vFRAG + c * 4 + p
        sel = sSelHi if (c & 1) else sSelLo
        e.ins("v_perm_b32 v%d, v%d, v%d, s%d" % (dd, s0, s1, sel), "valu", V(s0) + V(s1), V(dd))

    def phase_entry():
        for rb in range(4):
            xf_read(0, rb)
        e.wait_vm(("w", 0))
        for c in range(8):
            for p in range(4):
                perm(0, c, p)

    def loop_body():
        for u in range(4):
            e.comment("step %d" % u)
            e.wait_lgkm(("xf", u))
            if VO and u == 2:
                e.salu("s_cmp_eq_u32 s%d, 3" % sIt)
                e.salu("s_cselect_b32 s%d, 0, s%d" % (SRD_WC + 2, SRD_WC + 2))
            wl = wloads(u + D)
            m = 0
            for c in range(8):
                for rb in range(4):
                    ac = acc(rb, c)
                    xf = aXF + (u % 2) * 16 + rb * 4
                    e.ins("v_mfma_f32_16x16x32_bf16 %s, %s, %s, %s" % (ar(ac, 4), vr(vFRAG + c * 4, 4), ar(xf, 4), ar(ac, 4)), "mfma",
                          V(vFRAG + c * 4, 4) + A(xf, 4) + A(ac, 4), A(ac, 4), creads=A(ac, 4))
                    if c == 0 and "L" not in DIAG:
                        wl[2 * rb]()
                        wl[2 * rb + 1]()
                        if rb == 3:
                            wl[8]()
                            e.wait_vm(("w", u + 1))
                    if c >= 1 and "P" not in DIAG:
                        perm(u + 1, c - 1, rb)
                    if c == 2 and "X" not in DIAG:
                        xf_read(u + 1, rb)
                    m += 1
            for p in range(4):
                if "P" not in DIAG:
                    perm(u + 1, 7, p)
        for slo in range(4):
            e.ins("v_add_u32 v%d, 0x100, v%d" % (vXr + slo, vXr + slo), "valu", V(vXr + slo), V(vXr + slo))

    e.salu("s_mov_b32 s%d, 0" % sIt)
    phase_entry()
    e.label("gemm_loop")
    e.vm = [("w", 1)] * 8 + [("w", 2)] * 8 + [("w", 3)] * 8
    e.lgkm = [("xf", 0)] * 4
    e.last_w = {}
    e.nop(2)
    loop_body()
    e.salu("s_add_u32 s%d, s%d, 1" % (sIt, sIt))
    e.salu("s_cmp_eq_u32 s%d, 4" % sIt)
    e.salu("s_cbranch_scc1 attention")
    e.salu("s_cmp_eq_u32 s%d, 8" % sIt)
    e.salu("s_cbranch_scc1 epilogue")
    e.salu("s_cmp_eq_u32 s%d, 7" % sIt)
    e.salu("s_cbranch_scc1 it7")
    e.salu("s_cmp_gt_u32 s%d, 4" % sIt)
    e.salu("s_cbranch_scc1 gemm_loop")
    e.salu("s_cmp_eq_u32 s%d, 2" % sIt)
    e.salu("s_cbranch_scc1 it2")
    e.salu("s_cmp_eq_u32 s%d, 3" % sIt)
    e.salu("s_cbranch_scc1 it3")
    e.label("it1")
    if not FUSE:
        stamp()
    if XQ:
        e.lgkm = [("xf", 0)] * 4
        for n in range(4):
            d = vVRAW + 2 * 16 + n * 4
            e.ins("ds_write_b128 v%d, %s offset:%d" % (xa + n, vr(d, 4), n * 4096 + 2 * 256), "dswrite", V(xa + n) + V(d, 4), (), tag="xw")
        e.wait_lgkm()
        e.salu("s_barrier")
    if G4:
        e.salu("s_cmp_lg_u32 s12, 1")
        e.salu("s_cbranch_scc1 g4skip1")
        for i in range(4):
            kv_burst(i)
        e.label("g4skip1")
    if not KVALL and not STAG and not LATE:
        kv_burst(1)
    if TOUCH:
        e.ins("buffer_load_dword v%d, v%d, %s, s14 offen%s" % (vT + 6, to, srd(SRD_WO), TNT), "vload", V(to), V(vT + 6), tag="touch")
    e.salu("s_branch gemm_loop")
    e.label("it2")
    if XR:
        e.salu("s_mov_b32 s%d, 0x10000000" % (SRD_WS + 2))
        e.salu("s_lshl_b32 s3, s2, 2")
        e.salu("s_add_u32 s3, s3, s%d" % sW)
        e.salu("s_lshl_b32 s3, s3, 14")
        e.salu("s_add_u32 s3, s3, 0x4000000")
        for k in range(16):
            e.raw("buffer_load_dwordx4 a[224:227], v%d, s[%d:%d], s3 offen" % (vSt, SRD_WS, SRD_WS + 3))
            e.salu("s_add_u32 s3, s3, 1024")
    if not FUSE:
        stamp()
    if XQ:
        e.lgkm = [("xf", 0)] * 4
        for n in range(4):
            d = vVRAW + 3 * 16 + n * 4
            e.ins("ds_write_b128 v%d, %s offset:%d" % (xa + n, vr(d, 4), n * 4096 + 3 * 256), "dswrite", V(xa + n) + V(d, 4), (), tag="xw")
        e.wait_lgkm()
        e.salu("s_barrier")
    if G4:
        e.salu("s_cmp_lg_u32 s12, 2")
        e.salu("s_cbranch_scc1 g4skip2")
        for i in range(4):
            kv_burst(i)
        e.label("g4skip2")
    if not KVALL and not STAG and not LATE:
        kv_burst(2)
    e.salu("s_branch gemm_loop")
    e.label("it3")
    if not FUSE:
        stamp()
    if G4:
        e.salu("s_cmp_lg_u32 s12, 3")
        e.salu("s_cbranch_scc1 g4skip3")
        for i in range(4):
            kv_burst(i)
        e.label("g4skip3")
    if not KVALL and not STAG and not LATE:
        kv_burst(3)
    if LATE == 2:
        for i in range(4):
            kv_burst(i)
    e.salu("s_mov_b64 s[%d:%d], s[%d:%d]" % (SRD_WC, SRD_WC + 1, SRD_WO, SRD_WO + 1))
    e.salu("s_mov_b32 s%d, s%d" % (sWCo, sWOo))
    e.salu("s_mov_b32 s%d, 0x8000" % sWCinc)
    e.ins("v_and_b32 v%d, 15, v%d" % (ti, vL), "valu", V(vL), V(ti))
    e.ins("v_lshrrev_b32 v%d, 4, v%d" % (tg, vL), "valu", V(vL), V(tg))
    e.ins("v_lshlrev_b32 v%d, 4, v%d" % (tt, ti), "valu", V(ti), V(tt))
    e.ins("v_lshl_add_u32 v%d, v%d, 13, v%d" % (vWC, tg, tt), "valu", V(tg) + V(tt), V(vWC))
    for j in range(1, 8):
        e.ins("v_add_u32 v%d, 0x%x, v%d" % (vWC + j, j * 1024, vWC), "valu", V(vWC), V(vWC + j))
    e.salu("s_branch gemm_loop")
    e.label("it7")
    e.salu("s_mov_b32 s%d, 0" % (SRD_WC + 2))
    e.salu("s_branch gemm_loop")

    e.label("attention")
    stamp()
    e.last_w = {}
    e.nop(10)
    e.vm = [("w", 1)] * 8 + [("w", 2)] * 8 + [("w", 3)] * 8
    e.lgkm = [("xf", 0)] * 4
    e.wait_lgkm()
    if KLDS:
        e.salu("s_barrier")
        kb0 = vT + 4
        e.ins("v_and_b32 v%d, 15, v%d" % (ti, vL), "valu", V(vL), V(ti))
        e.ins("v_lshrrev_b32 v%d, 4, v%d" % (tg, vL), "valu", V(vL), V(tg))
        e.ins("v_xor_b32 v%d, v%d, v%d" % (t3, ti, tg), "valu", V(ti) + V(tg), V(t3))
        e.ins("v_lshlrev_b32 v%d, 4, v%d" % (t3, t3), "valu", V(t3), V(t3))
        e.ins("v_lshl_add_u32 v%d, v%d, 8, v%d" % (kb0, tg, t3), "valu", V(tg) + V(t3), V(kb0))
        for q in range(1, 4):
            e.ins("v_xor_b32 v%d, %d, v%d" % (kb0 + q, q * 64, kb0), "valu", V(kb0), V(kb0 + q))
        e.salu("s_lshl_b32 s13, s%d, 14" % sW)
        for bb in range(2):
            for n in range(8):
                e.salu("s_add_u32 s14, s13, %d" % (bb * 8192 + n * 1024))
                e.salu("s_add_u32 s3, s%d, %d" % (sKV + bb * 2, n * 1024))
                e.salu("s_mov_b32 m0, s14")
                e.salu("s_nop 0")
                e.ins("buffer_load_dwordx4 v%d, %s, s3 offen%s lds" % (kb0 + n % 4, srd(SRD_K), nt), "vload", V(kb0 + n % 4), (), tag=("kv", bb, 0))
            kv_burst(2 * bb + 1)
    elif LATE == 1:
        if G4:
            e.salu("s_cmp_lg_u32 s12, 0")
            e.salu("s_cbranch_scc1 g4skip0")
        for i in range(4):
            kv_burst(i)
        if G4:
            e.label("g4skip0")
    if STAG:
        e.salu("s_bitcmp1_b32 s2, %d" % STAGBIT)
        e.salu("s_cbranch_scc0 skip_late_kv")
        for i in range(4):
            kv_burst(i)
        e.salu("s_waitcnt vmcnt(0)")
        e.label("skip_late_kv")
        e.vm = []
    e.ins("v_and_b32 v%d, 15, v%d" % (ti, vL), "valu", V(vL), V(ti))
    e.ins("v_lshrrev_b32 v%d, 4, v%d" % (tg, vL), "valu", V(vL), V(tg))
    e.salu("s_lshl_b32 s3, s%d, 8" % sW)
    e.salu("s_add_u32 s3, s3, 0x%x" % LDS_O)
    for r in range(4):
        e.ins("v_lshl_add_u32 v%d, v%d, 2, %d" % (t3, tg, r), "valu", V(tg), V(t3))
        e.ins("v_xor_b32 v%d, v%d, v%d" % (t3, t3, ti), "valu", V(t3) + V(ti), V(t3))
        e.ins("v_lshlrev_b32 v%d, 4, v%d" % (t3, t3), "valu", V(t3), V(t3))
        e.ins("v_lshl_add_u32 v%d, v%d, 10, v%d" % (t3, ti, t3), "valu", V(ti) + V(t3), V(t3))
        e.ins("v_add_u32 v%d, s3, v%d" % (vOw + r, t3), "valu", V(t3), V(vOw + r))
    for slo in range(4):
        e.ins("v_add_u32 v%d, 0x%x, v%d" % (vXr + slo, LDS_O - 1024, vXr + slo), "valu", V(vXr + slo), V(vXr + slo))
    if ILP:
        QF = vFRAG
        def pack8(aregs, dq):
            for k in range(8):
                e.ins("v_accvgpr_read_b32 v%d, a%d" % (vT + k, aregs[k]), "valu", A(aregs[k]), V(vT + k))
            for p in range(4):
                e.ins("v_cvt_pk_bf16_f32 v%d, v%d, v%d" % (dq + p, vT + 2 * p, vT + 2 * p + 1), "valu", V(vT + 2 * p) + V(vT + 2 * p + 1), V(dq + p))
        def softmax_stream(vals, PFq, T):
            L = []
            def I(text, kind, r, w):
                L.append((text, kind, r, w))
            for rnd in range(2):
                for k in range(0, 8, 2):
                    I("v_cvt_pk_bf16_f32 v%d, v%d, v%d" % (T + k // 2, vals[k], vals[k + 1]), "valu", V(vals[k]) + V(vals[k + 1]), V(T + k // 2))
                for k in range(0, 8, 2):
                    I("v_lshlrev_b32 v%d, 16, v%d" % (vals[k], T + k // 2), "valu", V(T + k // 2), V(vals[k]))
                    I("v_and_b32 v%d, s%d, v%d" % (vals[k + 1], sMask, T + k // 2), "valu", V(T + k // 2), V(vals[k + 1]))
                if rnd == 0:
                    for x in vals:
                        I("v_mul_f32 v%d, s%d, v%d" % (x, sScale, x), "valu", V(x), V(x))
            mx, m2 = T, T + 1
            I("v_max3_f32 v%d, v%d, v%d, v%d" % (mx, vals[0], vals[1], vals[2]), "valu", V(vals[0]) + V(vals[1]) + V(vals[2]), V(mx))
            I("v_max3_f32 v%d, v%d, v%d, v%d" % (m2, vals[3], vals[4], vals[5]), "valu", V(vals[3]) + V(vals[4]) + V(vals[5]), V(m2))
            I("v_max3_f32 v%d, v%d, v%d, v%d" % (mx, mx, vals[6], vals[7]), "valu", V(mx) + V(vals[6]) + V(vals[7]), V(mx))
            I("v_max_f32 v%d, v%d, v%d" % (mx, mx, m2), "valu", V(mx) + V(m2), V(mx))
            for sw in ("v_permlane16_swap_b32", "v_permlane32_swap_b32"):
                I("v_mov_b32 v%d, v%d" % (m2, mx), "valu", V(mx), V(m2))
                I("%s v%d, v%d" % (sw, mx, m2), "permlane", V(mx) + V(m2), V(mx) + V(m2))
                I("v_max_f32 v%d, v%d, v%d" % (mx, mx, m2), "valu", V(mx) + V(m2), V(mx))
            for x in vals:
                I("v_sub_f32 v%d, v%d, v%d" % (x, x, mx), "valu", V(x) + V(mx), V(x))
            for x in vals:
                I("v_mul_f32 v%d, s%d, v%d" % (x, sLog2e, x), "valu", V(x), V(x))
            for x in vals:
                I("v_exp_f32 v%d, v%d" % (x, x), "trans", V(x), V(x))
            sm, s2_, s3_, s4_ = T, T + 1, T + 2, T + 3
            I("v_add_f32 v%d, v%d, v%d" % (sm, vals[0], vals[1]), "valu", V(vals[0]) + V(vals[1]), V(sm))
            I("v_add_f32 v%d, v%d, v%d" % (s2_, vals[2], vals[3]), "valu", V(vals[2]) + V(vals[3]), V(s2_))
            I("v_add_f32 v%d, v%d, v%d" % (s3_, vals[4], vals[5]), "valu", V(vals[4]) + V(vals[5]), V(s3_))
            I("v_add_f32 v%d, v%d, v%d" % (s4_, vals[6], vals[7]), "valu", V(vals[6]) + V(vals[7]), V(s4_))
            I("v_add_f32 v%d, v%d, v%d" % (sm, sm, s2_), "valu", V(sm) + V(s2_), V(sm))
            I("v_add_f32 v%d, v%d, v%d" % (s3_, s3_, s4_), "valu", V(s3_) + V(s4_), V(s3_))
            I("v_add_f32 v%d, v%d, v%d" % (sm, sm, s3_), "valu", V(sm) + V(s3_), V(sm))
            for sw in ("v_permlane16_swap_b32", "v_permlane32_swap_b32"):
                I("v_mov_b32 v%d, v%d" % (s2_, sm), "valu", V(sm), V(s2_))
                I("%s v%d, v%d" % (sw, sm, s2_), "permlane", V(sm) + V(s2_), V(sm) + V(s2_))
                I("v_add_f32 v%d, v%d, v%d" % (sm, sm, s2_), "valu", V(sm) + V(s2_), V(sm))
            I("v_rcp_f32 v%d, v%d" % (sm, sm), "trans", V(sm), V(sm))
            for x in vals:
                I("v_mul_f32 v%d, v%d, v%d" % (x, x, sm), "valu", V(x) + V(sm), V(x))
            for p in range(4):
                I("v_cvt_pk_bf16_f32 v%d, v%d, v%d" % (PFq + p, vals[2 * p], vals[2 * p + 1]), "valu", V(vals[2 * p]) + V(vals[2 * p + 1]), V(PFq + p))
            return L
        for bb in range(2):
            vb = vVRAW + bb * 32
            for qt in range(2):
                rb = 2 * bb + qt
                for sp in range(4):
                    pack8([acc(rb, c) + sp for c in range(8)], QF + (qt * 4 + sp) * 4)
            e.wait_vm(("kv", bb, 0))
            OV = vRAW + 64
            if VO and bb == 0:
                e.salu("s_waitcnt vmcnt(0)")
                e.vm = []
            for sp in range(4):
                for kt in range(2):
                    for qt in range(2):
                        kf = aKF + bb * 32 + (kt * 4 + sp) * 4
                        qf = QF + (qt * 4 + sp) * 4
                        if VO:
                            sd = OV + qt * 8 + kt * 4
                            if sp == 0:
                                e.ins("v_mfma_f32_16x16x32_bf16 %s, %s, %s, 0" % (vr(sd, 4), ar(kf, 4), vr(qf, 4)), "mfma",
                                      A(kf, 4) + V(qf, 4), V(sd, 4))
                            else:
                                e.ins("v_mfma_f32_16x16x32_bf16 %s, %s, %s, %s" % (vr(sd, 4), ar(kf, 4), vr(qf, 4), vr(sd, 4)), "mfma",
                                      A(kf, 4) + V(qf, 4) + V(sd, 4), V(sd, 4), creads=V(sd, 4))
                            continue
                        sd = aS + (kt * 2 + qt) * 4
                        if sp == 0:
                            e.ins("v_mfma_f32_16x16x32_bf16 %s, %s, %s, 0" % (ar(sd, 4), ar(kf, 4), vr(qf, 4)), "mfma",
                                  A(kf, 4) + V(qf, 4), A(sd, 4))
                        else:
                            e.ins("v_mfma_f32_16x16x32_bf16 %s, %s, %s, %s" % (ar(sd, 4), ar(kf, 4), vr(qf, 4), ar(sd, 4)), "mfma",
                                  A(kf, 4) + V(qf, 4) + A(sd, 4), A(sd, 4), creads=A(sd, 4))
            e.wait_vm(("kv", bb, 1))
            for c in range(8):
                for p in range(4):
                    s0 = vb + 4 * (2 * p + 1) + (c >> 1)
                    s1 = vb + 4 * (2 * p) + (c >> 1)
                    dd = QF + c * 4 + p
                    sel = sSelHi if (c & 1) else sSelLo
                    e.ins("v_perm_b32 v%d, v%d, v%d, s%d" % (dd, s0, s1, sel), "valu", V(s0) + V(s1), V(dd))
            SV = vb
            PF = vb + 16
            TT = vb + 24
            if VO:
                SS_ = OV
            else:
                SS_ = SV
                for qt in range(2):
                    for kt in range(2):
                        for r in range(4):
                            a_ = aS + (kt * 2 + qt) * 4 + r
                            d_ = SV + qt * 8 + kt * 4 + r
                            e.ins("v_accvgpr_read_b32 v%d, a%d" % (d_, a_), "valu", A(a_), V(d_))
            s0l = softmax_stream([SS_ + k for k in range(8)], PF, TT)
            s1l = softmax_stream([SS_ + 8 + k for k in range(8)], PF + 4, TT + 4)
            for x, y in zip(s0l, s1l):
                e.ins(*x)
                e.ins(*y)
            for qt in range(2):
                for c in range(8):
                    if VO:
                        od = OV + (qt * 8 + c) * 4
                        e.ins("v_mfma_f32_16x16x32_bf16 %s, %s, %s, 0" % (vr(od, 4), vr(QF + c * 4, 4), vr(PF + qt * 4, 4)), "mfma",
                              V(QF + c * 4, 4) + V(PF + qt * 4, 4), V(od, 4))
                        continue
                    ac = acc(2 * bb + qt, c)
                    e.ins("v_mfma_f32_16x16x32_bf16 %s, %s, %s, 0" % (ar(ac, 4), vr(QF + c * 4, 4), vr(PF + qt * 4, 4)), "mfma",
                          V(QF + c * 4, 4) + V(PF + qt * 4, 4), A(ac, 4))
            n = 0
            for qt in range(2):
                for r in range(4):
                    dq = SV + (n % 4) * 4
                    n += 1
                    if VO:
                        for p in range(4):
                            o0 = OV + (qt * 8 + 2 * p) * 4 + r
                            o1 = OV + (qt * 8 + 2 * p + 1) * 4 + r
                            e.ins("v_cvt_pk_bf16_f32 v%d, v%d, v%d" % (dq + p, o0, o1), "valu", V(o0) + V(o1), V(dq + p))
                    else:
                        pack8([acc(2 * bb + qt, c) + r for c in range(8)], dq)
                    e.ins("ds_write_b128 v%d, %s offset:%d" % (vOw + r, vr(dq, 4), (32 * bb + 16 * qt) * 1024), "dswrite",
                          V(vOw + r) + V(dq, 4), (), tag="ow")
    else:
        QF = vFRAG
        for bb in range(2):
            vb = vVRAW + bb * 32
            for qt in range(2):
                rb = 2 * bb + qt
                for sp in range(4):
                    for p in range(4):
                        t0 = vT + (p % 2) * 2
                        t1 = t0 + 1
                        a0 = acc(rb, 2 * p) + sp
                        a1 = acc(rb, 2 * p + 1) + sp
                        e.ins("v_accvgpr_read_b32 v%d, a%d" % (t0, a0), "valu", A(a0), V(t0))
                        e.ins("v_accvgpr_read_b32 v%d, a%d" % (t1, a1), "valu", A(a1), V(t1))
                        dd = QF + (qt * 4 + sp) * 4 + p
                        e.ins("v_cvt_pk_bf16_f32 v%d, v%d, v%d" % (dd, t0, t1), "valu", V(t0) + V(t1), V(dd))
            e.wait_vm(("kv", bb, 0))
            if KLDS:
                e.salu("s_lshl_b32 s3, s%d, 14" % sW)
                ki, kg = vT + 8, vT + 9
                e.ins("v_and_b32 v%d, 15, v%d" % (ki, vL), "valu", V(vL), V(ki))
                e.ins("v_lshrrev_b32 v%d, 4, v%d" % (kg, vL), "valu", V(vL), V(kg))
                for sp in range(4):
                    ka = vT + 4 + (sp % 2)
                    e.ins("v_lshl_add_u32 v%d, v%d, 2, %d" % (ka, kg, sp), "valu", V(kg), V(ka))
                    e.ins("v_xor_b32 v%d, v%d, v%d" % (ka, ka, ki), "valu", V(ka) + V(ki), V(ka))
                    e.ins("v_lshlrev_b32 v%d, 4, v%d" % (ka, ka), "valu", V(ka), V(ka))
                    e.ins("v_lshl_add_u32 v%d, v%d, 8, v%d" % (ka, ki, ka), "valu", V(ki) + V(ka), V(ka))
                    e.ins("v_add_u32 v%d, s3, v%d" % (ka, ka), "valu", V(ka), V(ka))
                    for kt in range(2):
                        d = aKF + bb * 32 + (kt * 4 + sp) * 4
                        e.ins("ds_read_b128 %s, v%d offset:%d" % (ar(d, 4), ka, bb * 8192 + kt * 4096), "dsread", V(ka), A(d, 4), tag="kf")
                e.wait_lgkm()
            for sp in range(4):
                for kt in range(2):
                    for qt in range(2):
                        sd = aS + (kt * 2 + qt) * 4
                        kf = aKF + bb * 32 + (kt * 4 + sp) * 4
                        qf = QF + (qt * 4 + sp) * 4
                        if sp == 0:
                            e.ins("v_mfma_f32_16x16x32_bf16 %s, %s, %s, 0" % (ar(sd, 4), ar(kf, 4), vr(qf, 4)), "mfma",
                                  A(kf, 4) + V(qf, 4), A(sd, 4))
                        else:
                            e.ins("v_mfma_f32_16x16x32_bf16 %s, %s, %s, %s" % (ar(sd, 4), ar(kf, 4), vr(qf, 4), ar(sd, 4)), "mfma",
                                  A(kf, 4) + V(qf, 4) + A(sd, 4), A(sd, 4), creads=A(sd, 4))
            e.wait_vm(("kv", bb, 1))
            for c in range(8):
                for p in range(4):
                    s0 = vb + 4 * (2 * p + 1) + (c >> 1)
                    s1 = vb + 4 * (2 * p) + (c >> 1)
                    dd = QF + c * 4 + p
                    sel = sSelHi if (c & 1) else sSelLo
                    e.ins("v_perm_b32 v%d, v%d, v%d, s%d" % (dd, s0, s1, sel), "valu", V(s0) + V(s1), V(dd))
            SV = vb
            PF = vb + 16
            TT = vb + 24
            for qt in range(2):
                for kt in range(2):
                    for r in range(4):
                        a_ = aS + (kt * 2 + qt) * 4 + r
                        d_ = SV + qt * 8 + kt * 4 + r
                        e.ins("v_accvgpr_read_b32 v%d, a%d" % (d_, a_), "valu", A(a_), V(d_))
            for qt in range(2):
                vals = [SV + qt * 8 + k for k in range(8)]
                for rnd in range(2):
                    for k in range(0, 8, 2):
                        x0, x1 = vals[k], vals[k + 1]
                        tp = TT
                        e.ins("v_cvt_pk_bf16_f32 v%d, v%d, v%d" % (tp, x0, x1), "valu", V(x0) + V(x1), V(tp))
                        e.ins("v_lshlrev_b32 v%d, 16, v%d" % (x0, tp), "valu", V(tp), V(x0))
                        e.ins("v_and_b32 v%d, s%d, v%d" % (x1, sMask, tp), "valu", V(tp), V(x1))
                        if rnd == 0:
                            e.ins("v_mul_f32 v%d, s%d, v%d" % (x0, sScale, x0), "valu", V(x0), V(x0))
                            e.ins("v_mul_f32 v%d, s%d, v%d" % (x1, sScale, x1), "valu", V(x1), V(x1))
                mx, m2 = TT + 1, TT + 2
                e.ins("v_max3_f32 v%d, v%d, v%d, v%d" % (mx, vals[0], vals[1], vals[2]), "valu", V(vals[0]) + V(vals[1]) + V(vals[2]), V(mx))
                e.ins("v_max3_f32 v%d, v%d, v%d, v%d" % (mx, mx, vals[3], vals[4]), "valu", V(mx) + V(vals[3]) + V(vals[4]), V(mx))
                e.ins("v_max3_f32 v%d, v%d, v%d, v%d" % (mx, mx, vals[5], vals[6]), "valu", V(mx) + V(vals[5]) + V(vals[6]), V(mx))
                e.ins("v_max_f32 v%d, v%d, v%d" % (mx, mx, vals[7]), "valu", V(mx) + V(vals[7]), V(mx))
                for sw in ("v_permlane16_swap_b32", "v_permlane32_swap_b32"):
                    e.ins("v_mov_b32 v%d, v%d" % (m2, mx), "valu", V(mx), V(m2))
                    e.ins("%s v%d, v%d" % (sw, mx, m2), "permlane", V(mx) + V(m2), V(mx) + V(m2))
                    e.ins("v_max_f32 v%d, v%d, v%d" % (mx, mx, m2), "valu", V(mx) + V(m2), V(mx))
                for x in vals:
                    e.ins("v_sub_f32 v%d, v%d, v%d" % (x, x, mx), "valu", V(x) + V(mx), V(x))
                for x in vals:
                    e.ins("v_mul_f32 v%d, s%d, v%d" % (x, sLog2e, x), "valu", V(x), V(x))
                for x in vals:
                    e.ins("v_exp_f32 v%d, v%d" % (x, x), "trans", V(x), V(x))
                sm, s2_ = TT + 3, TT + 4
                e.ins("v_add_f32 v%d, v%d, v%d" % (sm, vals[0], vals[1]), "valu", V(vals[0]) + V(vals[1]), V(sm))
                e.ins("v_add_f32 v%d, v%d, v%d" % (s2_, vals[2], vals[3]), "valu", V(vals[2]) + V(vals[3]), V(s2_))
                e.ins("v_add_f32 v%d, v%d, v%d" % (sm, sm, s2_), "valu", V(sm) + V(s2_), V(sm))
                e.ins("v_add_f32 v%d, v%d, v%d" % (s2_, vals[4], vals[5]), "valu", V(vals[4]) + V(vals[5]), V(s2_))
                e.ins("v_add_f32 v%d, v%d, v%d" % (sm, sm, s2_), "valu", V(sm) + V(s2_), V(sm))
                e.ins("v_add_f32 v%d, v%d, v%d" % (s2_, vals[6], vals[7]), "valu", V(vals[6]) + V(vals[7]), V(s2_))
                e.ins("v_add_f32 v%d, v%d, v%d" % (sm, sm, s2_), "valu", V(sm) + V(s2_), V(sm))
                for sw in ("v_permlane16_swap_b32", "v_permlane32_swap_b32"):
                    e.ins("v_mov_b32 v%d, v%d" % (s2_, sm), "valu", V(sm), V(s2_))
                    e.ins("%s v%d, v%d" % (sw, sm, s2_), "permlane", V(sm) + V(s2_), V(sm) + V(s2_))
                    e.ins("v_add_f32 v%d, v%d, v%d" % (sm, sm, s2_), "valu", V(sm) + V(s2_), V(sm))
                e.ins("v_rcp_f32 v%d, v%d" % (sm, sm), "trans", V(sm), V(sm))
                for x in vals:
                    e.ins("v_mul_f32 v%d, v%d, v%d" % (x, x, sm), "valu", V(x) + V(sm), V(x))
                for p in range(4):
                    dd = PF + qt * 4 + p
                    e.ins("v_cvt_pk_bf16_f32 v%d, v%d, v%d" % (dd, vals[2 * p], vals[2 * p + 1]), "valu", V(vals[2 * p]) + V(vals[2 * p + 1]), V(dd))
            for qt in range(2):
                for c in range(8):
                    ac = acc(2 * bb + qt, c)
                    e.ins("v_mfma_f32_16x16x32_bf16 %s, %s, %s, 0" % (ar(ac, 4), vr(QF + c * 4, 4), vr(PF + qt * 4, 4)), "mfma",
                          V(QF + c * 4, 4) + V(PF + qt * 4, 4), A(ac, 4))
            n = 0
            for qt in range(2):
                for r in range(4):
                    dq = SV + (n % 4) * 4
                    n += 1
                    for p in range(4):
                        t0 = vT + (p % 2) * 2
                        t1 = t0 + 1
                        a0 = acc(2 * bb + qt, 2 * p) + r
                        a1 = acc(2 * bb + qt, 2 * p + 1) + r
                        e.ins("v_accvgpr_read_b32 v%d, a%d" % (t0, a0), "valu", A(a0), V(t0))
                        e.ins("v_accvgpr_read_b32 v%d, a%d" % (t1, a1), "valu", A(a1), V(t1))
                        e.ins("v_cvt_pk_bf16_f32 v%d, v%d, v%d" % (dq + p, t0, t1), "valu", V(t0) + V(t1), V(dq + p))
                    e.ins("ds_write_b128 v%d, %s offset:%d" % (vOw + r, vr(dq, 4), (32 * bb + 16 * qt) * 1024), "dswrite",
                          V(vOw + r) + V(dq, 4), (), tag="ow")
    zero_acc()
    if VO:
        e.salu("s_mov_b32 s%d, 0x400000" % (SRD_WC + 2))
        e.salu("s_add_u32 s%d, s%d, 0x10000" % (sWCo, sWOo))
        for t in (2, 3):
            for f in wloads(t):
                f()
    e.wait_lgkm()
    stamp()
    e.salu("s_barrier")
    stamp()
    for rb in range(4):
        xf_read(0, rb)
    for c in range(8):
        for p in range(4):
            perm(0, c, p)
    e.salu("s_branch gemm_loop")

    e.label("epilogue")
    stamp()
    e.last_w = {}
    e.nop(10)
    n = 0
    if BFP == 2:
        B0 = vRAW
        e.salu("s_waitcnt vmcnt(0)")
        for rb in range(4):
            for r in range(4):
                for c in range(8):
                    d = B0 + (rb * 4 + r) * 8 + c
                    a0 = acc(rb, c) + r
                    e.ins("v_accvgpr_read_b32 v%d, a%d" % (d, a0), "valu", A(a0), V(d))
        m0, m1 = vT, vT + 1
        e.ins("v_max3_f32 v%d, |v%d|, |v%d|, |v%d|" % (m0, B0, B0 + 1, B0 + 2), "valu", V(B0, 3), V(m0))
        e.ins("v_max3_f32 v%d, |v%d|, |v%d|, |v%d|" % (m1, B0 + 3, B0 + 4, B0 + 5), "valu", V(B0 + 3, 3), V(m1))
        k = 6
        tog = 0
        while k < 128:
            mm = m0 if tog == 0 else m1
            e.ins("v_max3_f32 v%d, |v%d|, |v%d|, v%d" % (mm, B0 + k, B0 + k + 1, mm), "valu", V(B0 + k, 2) + V(mm), V(mm))
            k += 2
            tog ^= 1
        e.ins("v_max_f32 v%d, v%d, v%d" % (m0, m0, m1), "valu", V(m0) + V(m1), V(m0))
        e.ins("v_frexp_exp_i32_f32 v%d, v%d" % (m1, m0), "valu", V(m0), V(m1))
        e.ins("v_sub_u32 v%d, 15, v%d" % (m1, m1), "valu", V(m1), V(m1))
        e.salu("s_movk_i32 s3, 0xff82")
        e.salu("s_movk_i32 s13, 126")
        e.ins("v_mov_b32 v%d, s13" % (vT + 2), "valu", (), V(vT + 2))
        e.ins("v_med3_i32 v%d, v%d, s3, v%d" % (m1, m1, vT + 2), "valu", V(m1) + V(vT + 2), V(m1))
        sc0, inv = vT + 3, vT + 5
        e.ins("v_ldexp_f32 v%d, 1.0, v%d" % (sc0, m1), "valu", V(m1), V(sc0))
        e.ins("v_mov_b32 v%d, v%d" % (sc0 + 1, sc0), "valu", V(sc0), V(sc0 + 1))
        e.ins("v_sub_u32 v%d, 0, v%d" % (m1, m1), "valu", V(m1), V(m1))
        e.ins("v_ldexp_f32 v%d, 1.0, v%d" % (inv, m1), "valu", V(m1), V(inv))
        e.salu("s_lshr_b32 s3, s%d, 7" % sSt)
        e.salu("s_add_u32 s3, s3, 0x1000000")
        e.ins("v_lshlrev_b32 v%d, 2, v%d" % (vT + 6, vL), "valu", V(vL), V(vT + 6))
        e.ins("buffer_store_dword v%d, v%d, %s, s3 offen%s" % (inv, vT + 6, srd(SRD_WS), STF), "vstore", V(inv) + V(vT + 6), (), tag="st")
        e.salu("s_lshr_b32 s%d, s%d, 1" % (sSt, sSt))
        for rb in range(4):
            for r in range(4):
                if n and n % 4 == 0:
                    e.salu("s_add_u32 s%d, s%d, 0x1000" % (sSt, sSt))
                b = B0 + (rb * 4 + r) * 8
                dq = vFRAG + (n % 8) * 4
                for p in range(4):
                    e.ins("v_pk_mul_f32 %s, %s, %s" % (vr(b + 2 * p, 2), vr(b + 2 * p, 2), vr(sc0, 2)), "valu", V(b + 2 * p, 2) + V(sc0, 2), V(b + 2 * p, 2))
                for p in range(4):
                    e.ins("v_cvt_pk_f16_f32 v%d, v%d, v%d" % (dq + p, b + 2 * p, b + 2 * p + 1), "valu", V(b + 2 * p, 2), V(dq + p))
                e.ins("buffer_store_dwordx4 %s, v%d, %s, s%d offen offset:%d%s" % (vr(dq, 4), vSt, srd(SRD_WS), sSt, (n % 4) * 1024, STF),
                      "vstore", V(dq, 4) + V(vSt), (), tag="st")
                n += 1
    elif BFP:
        e.salu("s_lshr_b32 s%d, s%d, 1" % (sSt, sSt))
        for rb in range(4):
            for r in range(4):
                if n and n % 4 == 0:
                    e.salu("s_add_u32 s%d, s%d, 0x1000" % (sSt, sSt))
                dq = vRAW + (n % 8) * 4
                for p in range(4):
                    t0 = vT + (p % 2) * 2
                    t1 = t0 + 1
                    a0 = acc(rb, 2 * p) + r
                    a1 = acc(rb, 2 * p + 1) + r
                    e.ins("v_accvgpr_read_b32 v%d, a%d" % (t0, a0), "valu", A(a0), V(t0))
                    e.ins("v_accvgpr_read_b32 v%d, a%d" % (t1, a1), "valu", A(a1), V(t1))
                    e.ins("v_cvt_pk_bf16_f32 v%d, v%d, v%d" % (dq + p, t0, t1), "valu", V(t0) + V(t1), V(dq + p))
                e.ins("buffer_store_dwordx4 %s, v%d, %s, s%d offen offset:%d%s" % (vr(dq, 4), vSt, srd(SRD_WS), sSt, (n % 4) * 1024, STF),
                      "vstore", V(dq, 4) + V(vSt), (), tag="st")
                n += 1
    else:
      for rb in range(4):
        for c in range(8):
            if n and n % 4 == 0:
                e.salu("s_add_u32 s%d, s%d, 0x1000" % (sSt, sSt))
            ac = acc(rb, c)
            e.ins("buffer_store_dwordx4 %s, v%d, %s, s%d offen offset:%d%s" % (ar(ac, 4), vSt, srd(SRD_WS), sSt, (n % 4) * 1024, STF),
                  "vstore", A(ac, 4) + V(vSt), (), tag="st")
            n += 1
    if FUSE:
        SRD_D, SRD_O = SRD_X, SRD_K
        e.salu("s_waitcnt vmcnt(0)")
        stamp()
        e.salu("s_barrier")
        e.salu("s_mov_b32 s%d, s38" % SRD_D)
        e.salu("s_mov_b32 s%d, s39" % (SRD_D + 1))
        e.salu("s_mov_b32 s%d, 256" % (SRD_D + 2))
        e.salu("s_mov_b32 s%d, s98" % SRD_O)
        e.salu("s_mov_b32 s%d, s99" % (SRD_O + 1))
        e.salu("s_mov_b32 s%d, 0x200000" % (SRD_O + 2))
        e.salu("s_lshl_b32 s13, s%d, 4" % sBR)
        e.salu("s_add_u32 s13, s13, s%d" % sRB)
        e.salu("s_lshl_b32 s14, 1, s%d" % sHG)
        e.salu("s_cmp_lg_u32 s%d, 0" % sW)
        e.salu("s_cbranch_scc1 f_wait")
        e.salu("s_mov_b64 exec, 1")
        e.raw("v_mov_b32 v3, s13")
        e.raw("v_lshlrev_b32 v3, 2, v3")
        e.raw("v_mov_b32 v2, 1")
        e.raw("buffer_atomic_add v2, v3, s[%d:%d], 0 offen sc0 sc1" % (SRD_D, SRD_D + 3))
        e.salu("s_waitcnt vmcnt(0)")
        e.raw("v_readfirstlane_b32 s15, v2")
        e.salu("s_nop 3")
        e.salu("s_cmp_eq_u32 s15, 7")
        e.salu("s_cbranch_scc1 f_last")
        e.salu("s_mov_b32 s3, 0")
        e.label("f_spin")
        e.salu("s_sleep 4")
        e.raw("v_mov_b32 v2, 0")
        e.raw("buffer_atomic_add v2, v3, s[%d:%d], 0 offen sc0 sc1" % (SRD_D, SRD_D + 3))
        e.salu("s_waitcnt vmcnt(0)")
        e.raw("v_readfirstlane_b32 s15, v2")
        e.salu("s_nop 3")
        e.salu("s_cmp_eq_u32 s15, 8")
        e.salu("s_cbranch_scc1 f_decided")
        e.salu("s_add_u32 s3, s3, 1")
        e.salu("s_cmp_lt_u32 s3, %d" % SPIN)
        e.salu("s_cbranch_scc1 f_spin")
        e.raw("v_mov_b32 v2, s14")
        e.raw("buffer_atomic_or v2, v3, s[%d:%d], 0 offen offset:128 sc0 sc1" % (SRD_D, SRD_D + 3))
        e.salu("s_waitcnt vmcnt(0)")
        e.raw("v_mov_b32 v2, 0")
        e.raw("buffer_atomic_add v2, v3, s[%d:%d], 0 offen sc0 sc1" % (SRD_D, SRD_D + 3))
        e.salu("s_waitcnt vmcnt(0)")
        e.raw("v_readfirstlane_b32 s15, v2")
        e.salu("s_nop 3")
        e.salu("s_cmp_eq_u32 s15, 8")
        e.salu("s_cbranch_scc1 f_decided")
        e.salu("s_mov_b32 s14, 0")
        e.salu("s_branch f_decided")
        e.label("f_last")
        e.raw("v_mov_b32 v2, 0")
        e.raw("buffer_atomic_or v2, v3, s[%d:%d], 0 offen offset:128 sc0 sc1" % (SRD_D, SRD_D + 3))
        e.salu("s_waitcnt vmcnt(0)")
        e.raw("v_readfirstlane_b32 s15, v2")
        e.salu("s_nop 3")
        e.salu("s_or_b32 s14, s14, s15")
        e.label("f_decided")
        e.raw("v_mov_b32 v2, s14")
        e.raw("v_mov_b32 v3, 0")
        e.raw("ds_write_b32 v3, v2")
        e.salu("s_waitcnt lgkmcnt(0)")
        e.salu("s_mov_b64 exec, -1")
        e.label("f_wait")
        e.salu("s_barrier")
        stamp()
        e.raw("v_mov_b32 v3, 0")
        e.raw("ds_read_b32 v2, v3")
        e.salu("s_waitcnt lgkmcnt(0)")
        e.raw("v_readfirstlane_b32 s14, v2")
        e.raw("v_and_b32 v4, 15, v%d" % vL)
        e.raw("v_lshrrev_b32 v5, 4, v%d" % vL)
        e.raw("v_lshlrev_b32 v5, 6, v5")
        e.raw("v_lshl_add_u32 v4, v4, 11, v5")
        e.label("f_loop")
        e.salu("s_cmp_eq_u32 s14, 0")
        e.salu("s_cbranch_scc1 f_end")
        e.salu("s_ff1_i32_b32 s15, s14")
        e.salu("s_bitset0_b32 s14, s15")
        e.salu("s_lshr_b32 s20, s15, 1")
        e.salu("s_and_b32 s21, s15, 1")
        e.salu("s_lshl_b32 s21, s21, 1")
        e.salu("s_lshr_b32 s22, s%d, 1" % sW)
        e.salu("s_add_u32 s21, s21, s22")
        e.salu("s_and_b32 s22, s%d, 1" % sW)
        e.salu("s_lshl_b32 s25, s13, 5")
        e.salu("s_add_u32 s25, s25, s20")
        e.salu("s_lshl_b32 s25, s25, 15")
        e.salu("s_lshl_b32 s26, s21, 13")
        e.salu("s_add_u32 s25, s25, s26")
        e.salu("s_lshl_b32 s26, s22, 12")
        e.salu("s_add_u32 s25, s25, s26")
        e.salu("s_lshl_b32 s27, s%d, 17" % sRB)
        e.salu("s_lshl_b32 s26, s21, 15")
        e.salu("s_add_u32 s27, s27, s26")
        e.salu("s_lshl_b32 s26, s%d, 10" % sBR)
        e.salu("s_add_u32 s27, s27, s26")
        e.salu("s_lshl_b32 s26, s20, 8")
        e.salu("s_add_u32 s27, s27, s26")
        e.salu("s_lshl_b32 s26, s22, 3")
        e.salu("s_add_u32 s27, s27, s26")
        e.vm = []
        e.last_w = {}
        base = 16
        for hg in range(8):
            for cc in range(4):
                d = base + (hg * 4 + cc) * 4
                e.ins("buffer_load_dwordx4 %s, v%d, %s, s25 offen offset:%d sc1" % (vr(d, 4), vSt, srd(SRD_WS), cc * 1024), "vload", V(vSt), V(d, 4), tag=("p", hg))
            if hg < 7:
                e.salu("s_add_u32 s25, s25, 0x20000")
        for hg in range(1, 8):
            e.wait_vm(("p", hg))
            for cc in range(4):
                for r in range(0, 4, 2):
                    a_ = base + cc * 4 + r
                    b_ = base + (hg * 4 + cc) * 4 + r
                    e.ins("v_pk_add_f32 %s, %s, %s" % (vr(a_, 2), vr(a_, 2), vr(b_, 2)), "valu", V(a_, 2) + V(b_, 2), V(a_, 2))
        for r in range(4):
            d = 8 + (r % 2) * 2
            e.ins("v_cvt_pk_bf16_f32 v%d, v%d, v%d" % (d, base + r, base + 4 + r), "valu", V(base + r) + V(base + 4 + r), V(d))
            e.ins("v_cvt_pk_bf16_f32 v%d, v%d, v%d" % (d + 1, base + 8 + r, base + 12 + r), "valu", V(base + 8 + r) + V(base + 12 + r), V(d + 1))
            e.ins("buffer_store_dwordx2 %s, v4, s[%d:%d], s27 offen offset:%d" % (vr(d, 2), SRD_O, SRD_O + 3, r * 16), "vstore", V(d, 2) + V(4), (), tag="o")
        e.salu("s_waitcnt vmcnt(0)")
        e.salu("s_branch f_loop")
        e.label("f_end")
    if STAMP:
        e.salu("s_waitcnt vmcnt(0)")
        stamp()
        e.salu("s_waitcnt lgkmcnt(0)")
        e.salu("s_cmp_lg_u32 s2, %d" % int(OPT.get("dumpwg", 0)))
        e.salu("s_cbranch_scc1 main_done")
        e.salu("s_mov_b32 s%d, s38" % SRD_X)
        e.salu("s_mov_b32 s%d, s39" % (SRD_X + 1))
        e.salu("s_mov_b32 s%d, 1024" % (SRD_X + 2))
        e.salu("s_lshl_b32 s3, s%d, 6" % sW)
        e.salu("s_add_u32 s3, s3, 512")
        e.raw("v_mov_b32 v2, 0")
        for k in range(1, nst[0]):
            e.salu("s_sub_u32 s13, s%d, s80" % (80 + 2 * k))
            e.raw("v_mov_b32 v3, s13")
            e.raw("buffer_store_dword v3, v2, s[%d:%d], s3 offen offset:%d" % (SRD_X, SRD_X + 3, 4 * (k - 1)))
    e.label("main_done")
    e.salu("s_endpgm")
    return e.lines


def gen_reduce_bf():
    e = Emit()
    e.label("reduce_kernel")
    e.salu("s_cmp_ge_u32 s2, 256")
    e.salu("s_cbranch_scc1 reduce_done")
    e.salu("s_load_dwordx2 s[8:9], s[0:1], 80")
    e.salu("s_load_dwordx2 s[12:13], s[0:1], 96")
    e.ins("v_lshrrev_b32 v2, 6, v0", "valu", V(0), V(2))
    e.ins("v_and_b32 v1, 63, v0", "valu", V(0), V(1))
    e.ins("v_readfirstlane_b32 s7, v2", "rfl", V(2), [("s", 7)])
    e.ins("v_lshlrev_b32 v3, 4, v1", "valu", V(1), V(3))
    e.ins("v_and_b32 v4, 15, v1", "valu", V(1), V(4))
    e.ins("v_lshrrev_b32 v5, 4, v1", "valu", V(1), V(5))
    e.ins("v_lshlrev_b32 v5, 6, v5", "valu", V(5), V(5))
    e.ins("v_lshl_add_u32 v4, v4, 11, v5", "valu", V(4) + V(5), V(4))
    e.salu("s_nop 2")
    e.salu("s_lshl_b32 s3, s2, 2")
    e.salu("s_add_u32 s3, s3, s7")
    e.salu("s_and_b32 s20, s3, 1")
    e.salu("s_lshr_b32 s21, s3, 1")
    e.salu("s_and_b32 s21, s21, 3")
    e.salu("s_lshr_b32 s22, s3, 3")
    e.salu("s_and_b32 s22, s22, 3")
    e.salu("s_lshr_b32 s23, s3, 5")
    e.salu("s_and_b32 s23, s23, 15")
    e.salu("s_lshr_b32 s24, s3, 9")
    e.salu("s_lshl_b32 s25, s24, 4")
    e.salu("s_add_u32 s25, s25, s23")
    e.salu("s_lshl_b32 s25, s25, 5")
    e.salu("s_add_u32 s25, s25, s22")
    e.salu("s_lshl_b32 s25, s25, 14")
    e.salu("s_lshl_b32 s26, s21, 12")
    e.salu("s_add_u32 s25, s25, s26")
    e.salu("s_lshl_b32 s26, s20, 11")
    e.salu("s_add_u32 s25, s25, s26")
    e.salu("s_lshl_b32 s27, s23, 17")
    e.salu("s_lshl_b32 s26, s21, 15")
    e.salu("s_add_u32 s27, s27, s26")
    e.salu("s_lshl_b32 s26, s24, 10")
    e.salu("s_add_u32 s27, s27, s26")
    e.salu("s_lshl_b32 s26, s22, 8")
    e.salu("s_add_u32 s27, s27, s26")
    e.salu("s_lshl_b32 s26, s20, 5")
    e.salu("s_add_u32 s27, s27, s26")
    e.salu("s_mov_b32 s28, 0xffff0000")
    e.salu("s_waitcnt lgkmcnt(0)")
    e.salu("s_mov_b32 s10, 0x200000")
    e.salu("s_mov_b32 s11, 0x00020000")
    e.salu("s_mov_b32 s14, 0x2000000")
    e.salu("s_mov_b32 s15, 0x00020000")
    base = 32
    if BFP == 2:
        e.salu("s_lshl_b32 s29, s24, 4")
        e.salu("s_add_u32 s29, s29, s23")
        e.salu("s_lshl_b32 s29, s29, 5")
        e.salu("s_add_u32 s29, s29, s22")
        e.salu("s_lshl_b32 s29, s29, 8")
        e.salu("s_add_u32 s29, s29, 0x1000000")
        e.ins("v_lshlrev_b32 v6, 2, v1", "valu", V(1), V(6))
    for hg in range(8):
        if BFP == 2:
            e.ins("buffer_load_dword v%d, v6, s[12:15], s29 offen" % (96 + hg), "vload", V(6), V(96 + hg), tag=("p", hg))
            e.salu("s_add_u32 s29, s29, 1024")
        for rr in range(2):
            d = base + (hg * 2 + rr) * 4
            e.ins("buffer_load_dwordx4 %s, v3, s[12:15], s25 offen offset:%d" % (vr(d, 4), rr * 1024), "vload", V(3), V(d, 4), tag=("p", hg))
        if hg < 7:
            e.salu("s_add_u32 s25, s25, 0x10000")
    accb = 8
    if BFP == 2:
        for k in range(16):
            e.ins("v_mov_b32 v%d, 0" % (accb + k), "valu", (), V(accb + k))
    for hg in range(8):
        e.wait_vm(("p", hg))
        for rr in range(2):
            for q in range(4):
                s_ = base + (hg * 2 + rr) * 4 + q
                a0 = accb + rr * 8 + 2 * q
                if BFP == 2:
                    e.ins("v_fma_mix_f32 v%d, v%d, v%d, v%d op_sel_hi:[1,0,0]" % (a0, s_, 96 + hg, a0), "valu", V(s_) + V(96 + hg) + V(a0), V(a0))
                    e.ins("v_fma_mix_f32 v%d, v%d, v%d, v%d op_sel:[1,0,0] op_sel_hi:[1,0,0]" % (a0 + 1, s_, 96 + hg, a0 + 1), "valu", V(s_) + V(96 + hg) + V(a0 + 1), V(a0 + 1))
                elif hg == 0:
                    e.ins("v_lshlrev_b32 v%d, 16, v%d" % (a0, s_), "valu", V(s_), V(a0))
                    e.ins("v_and_b32 v%d, s28, v%d" % (a0 + 1, s_), "valu", V(s_), V(a0 + 1))
                else:
                    e.ins("v_lshlrev_b32 v24, 16, v%d" % s_, "valu", V(s_), V(24))
                    e.ins("v_and_b32 v25, s28, v%d" % s_, "valu", V(s_), V(25))
                    e.ins("v_pk_add_f32 %s, %s, v[24:25]" % (vr(a0, 2), vr(a0, 2)), "valu", V(a0, 2) + V(24, 2), V(a0, 2))
    for rr in range(2):
        d = 24 + rr * 4
        for q in range(4):
            a0 = accb + rr * 8 + 2 * q
            e.ins("v_cvt_pk_bf16_f32 v%d, v%d, v%d" % (d + q, a0, a0 + 1), "valu", V(a0, 2), V(d + q))
        e.ins("buffer_store_dwordx4 %s, v4, s[8:11], s27 offen offset:%d" % (vr(d, 4), rr * 16), "vstore", V(d, 4) + V(4), (), tag="o")
    e.label("reduce_done")
    e.salu("s_endpgm")
    return e.lines


HEADER = """; Fused two-branch attention block: Q-proj + attention + out-proj partials, then a reduce kernel.
; @launch kernel=main_kernel grid=(256,1,1) block=(256,1,1) lds=132096
; @launch kernel=reduce_kernel grid=(256,1,1) block=(256,1,1) lds=0
.amdgcn_target "amdgcn-amd-amdhsa--gfx950"
.text
"""


def main():
    hdr = HEADER
    kernels = [("main_kernel", gen_main()), ("reduce_kernel", gen_reduce_bf() if BFP else gen_reduce())]
    if FUSE:
        hdr = hdr.replace("; @launch kernel=reduce_kernel grid=(256,1,1) block=(256,1,1) lds=0\n", "")
        kernels = kernels[:1]
    rl = OPT.get("rl", "").replace("+", " ")
    ro = OPT.get("ro", "").replace("+", " ")
    if rl or ro:
        nk = []
        for name, lines in kernels:
            if name == "reduce_kernel":
                lines = [(l + " " + rl) if ("buffer_load_dwordx4" in l and rl) else ((l + " " + ro) if ("buffer_store" in l and ro) else l) for l in lines]
            nk.append((name, lines))
        kernels = nk
    out = [hdr]
    for name, lines in kernels:
        out.append(".globl %s\n.p2align 8\n.type %s,@function\n" % (name, name))
        out.append("\n".join(lines) + "\n")
    out.append('.section .rodata,"a"\n')
    out.append(kd("main_kernel", 512, 102, 256))
    if not FUSE:
        out.append(kd("reduce_kernel", 144, 32, 144))
    text = "".join(out)
    path = sys.argv[1] if len(sys.argv) > 1 else "cdna_kernels/%s.s" % NAME
    open(path, "w").write(text)
    print("wrote", path, len(text), "bytes")


if __name__ == "__main__":
    main()
```

```python
import struct, sys
from gen import Emit, V, A, vr, ar, f32bits, NAME, gen_reduce, kd

STAMP = len(sys.argv) > 2 and sys.argv[2] == "stamp"
OPT = dict(a.split("=") for a in sys.argv[3:])
TOUCH = int(OPT.get("touch", 1))
KVNT = int(OPT.get("kvnt", 1))
PRE = int(OPT.get("pre", 2))
NOKV = int(OPT.get("nokv", 0))
KVALL = int(OPT.get("kvall", 0))
STAG = int(OPT.get("stag", 0))
LATE = int(OPT.get("late", 0))
G4 = int(OPT.get("g4", 0))
KLDS = int(OPT.get("klds", 0))
FUSE = int(OPT.get("fuse", 0))
NOW = int(OPT.get("now", 0))
XQ = int(OPT.get("xq", 0))
XR = int(OPT.get("xr", 0))
KDMA = int(OPT.get("kdma", 0))
HALF = int(OPT.get("half", 0))
ILP = int(OPT.get("ilp", 0))
MZ = int(OPT.get("mz", 0))
VO = int(OPT.get("vo", 0))
TLB = int(OPT.get("tlb", 0))
BFP = int(OPT.get("bfp", 0))
DIAG = OPT.get("diag", "")
SPIN = int(OPT.get("spin", 4000))
PBAR = int(OPT.get("pbar", 0))
STAGBIT = int(OPT.get("stagbit", 4))
ETOUCH = int(OPT.get("etouch", 0))
WOQ = int(OPT.get("woq", 0))
WNT = " nt" if int(OPT.get("wnt", 0)) else ""
XNT = " nt" if int(OPT.get("xnt", 0)) else ""
STF = OPT.get("stf", "").replace("+", " ")
STF = (" " + STF) if STF else ""
TNT = " nt" if int(OPT.get("tnt", 0)) else ""

D = 4
vL = 1
vWC = 2
vXr = 10
vK = 14
vV = 15
vRAW = 16
vFRAG = 144
vVRAW = 176
vOw = 240
vSt = 244
vT = 245

aACC = 0
aXF = 128
aKF = 160
aS = 224

sBR, sHG, sRB, sW = 4, 5, 6, 7
SRD_X, SRD_K, SRD_V, SRD_WQ, SRD_WO, SRD_WS, SRD_WC = 40, 44, 48, 52, 56, 60, 64
sWCo, sWCinc = 68, 69
sKV = 70
sSelLo, sSelHi = 74, 75
sSt = 76
sScale, sLog2e, sMask = 77, 78, 79
sXo = 8
sH = 9
sIt = 10
sWOo = 11
sR8 = 12
LDS_O = 65536


def srd(n):
    return "s[%d:%d]" % (n, n + 3)


def acc(rb, c):
    return aACC + (rb * 8 + c) * 4


def gen_main():
    e = Emit()
    nst = [0]

    def stamp():
        if not STAMP:
            return
        e.salu("s_memtime s[%d:%d]" % (80 + 2 * nst[0], 81 + 2 * nst[0]))
        nst[0] += 1

    e.label("main_kernel")
    e.salu("s_cmp_ge_u32 s2, 256")
    e.salu("s_cbranch_scc1 main_done")
    stamp()
    e.salu("s_load_dwordx16 s[16:31], s[0:1], 0")
    e.salu("s_load_dwordx4 s[32:35], s[0:1], 64")
    e.salu("s_load_dwordx2 s[36:37], s[0:1], 96")
    if STAMP or FUSE:
        e.salu("s_load_dwordx2 s[38:39], s[0:1], 88")
    if FUSE:
        e.salu("s_load_dwordx2 s[98:99], s[0:1], 80")
    e.ins("v_lshrrev_b32 v2, 6, v0", "valu", V(0), V(2))
    e.ins("v_and_b32 v%d, 63, v0" % vL, "valu", V(0), V(vL))
    e.ins("v_readfirstlane_b32 s%d, v2" % sW, "rfl", V(2), [("s", sW)])
    e.salu("s_and_b32 s3, s2, 7")
    e.salu("s_lshr_b32 s13, s2, 3")
    e.salu("s_lshr_b32 s%d, s3, 2" % sBR)
    e.salu("s_and_b32 s%d, s3, 3" % sHG)
    e.salu("s_lshl_b32 s%d, s%d, 1" % (sHG, sHG))
    e.salu("s_and_b32 s14, s13, 1")
    e.salu("s_or_b32 s%d, s%d, s14" % (sHG, sHG))
    e.salu("s_lshr_b32 s%d, s13, 1" % sRB)
    e.salu("s_lshr_b32 s12, s2, %d" % int(OPT.get("g4bit", 4)))
    e.salu("s_and_b32 s12, s12, 3")
    e.salu("s_mov_b32 s%d, 0x05040100" % sSelLo)
    e.salu("s_mov_b32 s%d, 0x07060302" % sSelHi)
    e.salu("s_mov_b32 s%d, 0x%08x" % (sScale, f32bits(128 ** -0.5)))
    e.salu("s_mov_b32 s%d, 0x%08x" % (sLog2e, f32bits(1.4426950408889634)))
    e.salu("s_mov_b32 s%d, 0xffff0000" % sMask)
    ti, tg, tt, t3 = vT, vT + 1, vT + 2, vT + 3
    e.ins("v_and_b32 v%d, 15, v%d" % (ti, vL), "valu", V(vL), V(ti))
    e.ins("v_lshrrev_b32 v%d, 4, v%d" % (tg, vL), "valu", V(vL), V(tg))
    e.ins("v_lshlrev_b32 v%d, 4, v%d" % (tt, ti), "valu", V(ti), V(tt))
    e.ins("v_lshl_add_u32 v%d, v%d, 16, v%d" % (vWC, tg, tt), "valu", V(tg) + V(tt), V(vWC))
    for j in range(1, 8):
        e.ins("v_add_u32 v%d, 0x%x, v%d" % (vWC + j, j * 8192, vWC), "valu", V(vWC), V(vWC + j))
    e.ins("v_lshlrev_b32 v%d, 8, v%d" % (vK, ti), "valu", V(ti), V(vK))
    e.ins("v_lshl_add_u32 v%d, v%d, 6, v%d" % (vK, tg, vK), "valu", V(tg) + V(vK), V(vK))
    e.ins("v_lshl_add_u32 v%d, v%d, 10, v%d" % (vV, tg, tt), "valu", V(tg) + V(tt), V(vV))
    e.ins("v_lshlrev_b32 v%d, 4, v%d" % (vSt, vL), "valu", V(vL), V(vSt))
    for slo in range(4):
        e.ins("v_add_u32 v%d, %d, v%d" % (t3, 4 * slo, tg), "valu", V(tg), V(t3))
        e.ins("v_xor_b32 v%d, v%d, v%d" % (t3, t3, ti), "valu", V(t3) + V(ti), V(t3))
        e.ins("v_lshlrev_b32 v%d, 4, v%d" % (t3, t3), "valu", V(t3), V(t3))
        e.ins("v_lshl_add_u32 v%d, v%d, 10, v%d" % (vXr + slo, ti, t3), "valu", V(ti) + V(t3), V(vXr + slo))
    tq, to = vT + 4, vT + 5
    e.ins("v_lshrrev_b32 v%d, 3, v%d" % (tq, vL), "valu", V(vL), V(tq))
    e.ins("v_and_b32 v%d, 7, v%d" % (t3, vL), "valu", V(vL), V(t3))
    e.ins("v_lshlrev_b32 v%d, 7, v%d" % (t3, t3), "valu", V(t3), V(t3))
    e.ins("v_lshl_add_u32 v%d, v%d, 13, v%d" % (tq, tq, t3), "valu", V(tq) + V(t3), V(tq))
    e.ins("v_lshlrev_b32 v%d, 7, v%d" % (to, vL), "valu", V(vL), V(to))
    e.salu("s_waitcnt lgkmcnt(0)")
    e.salu("s_cmp_eq_u32 s%d, 0" % sBR)
    e.salu("s_cselect_b64 s[%d:%d], s[16:17], s[26:27]" % (SRD_X, SRD_X + 1))
    e.salu("s_cselect_b64 s[%d:%d], s[18:19], s[28:29]" % (SRD_K, SRD_K + 1))
    e.salu("s_cselect_b64 s[%d:%d], s[20:21], s[30:31]" % (SRD_V, SRD_V + 1))
    e.salu("s_cselect_b64 s[%d:%d], s[22:23], s[32:33]" % (SRD_WQ, SRD_WQ + 1))
    e.salu("s_cselect_b64 s[%d:%d], s[24:25], s[34:35]" % (SRD_WO, SRD_WO + 1))
    e.salu("s_cselect_b64 s[%d:%d], s[22:23], s[32:33]" % (SRD_WC, SRD_WC + 1))
    e.salu("s_mov_b64 s[%d:%d], s[36:37]" % (SRD_WS, SRD_WS + 1))
    for base, size in ((SRD_X, 1 << 20), (SRD_K, 8 << 20), (SRD_V, 8 << 20), (SRD_WQ, 4 << 20), (SRD_WO, 4 << 20), (SRD_WS, 32 << 20), (SRD_WC, 4 << 20)):
        e.salu("s_mov_b32 s%d, 0x%x" % (base + 2, size))
        e.salu("s_mov_b32 s%d, 0x00020000" % (base + 3))
    if NOW:
        e.salu("s_mov_b32 s%d, 0" % (SRD_WC + 2))
    e.salu("s_lshl_b32 s%d, s%d, 2" % (sH, sHG))
    e.salu("s_add_u32 s%d, s%d, s%d" % (sH, sH, sW))
    e.salu("s_lshl_b32 s%d, s%d, 8" % (sWCo, sH))
    e.salu("s_mov_b32 s%d, 0x40000" % sWCinc)
    e.salu("s_lshl_b32 s%d, s%d, 19" % (sWOo, sHG))
    e.salu("s_lshl_b32 s3, s%d, 8" % sW)
    e.salu("s_add_u32 s%d, s%d, s3" % (sWOo, sWOo))
    e.salu("s_lshl_b32 s3, s%d, 6" % sRB)
    e.salu("s_add_u32 s3, s3, s%d" % sH)
    e.salu("s_lshl_b32 s%d, s3, 13" % sKV)
    e.salu("s_add_u32 s%d, s%d, 0x1000" % (sKV + 1, sKV))
    e.salu("s_add_u32 s%d, s%d, 0x40000" % (sKV + 2, sKV))
    e.salu("s_add_u32 s%d, s%d, 0x41000" % (sKV + 3, sKV))
    e.salu("s_lshl_b32 s%d, s%d, 16" % (sXo, sRB))
    e.salu("s_lshl_b32 s3, s%d, 14" % sW)
    e.salu("s_add_u32 s%d, s%d, s3" % (sXo, sXo))
    e.salu("s_lshl_b32 s3, s%d, 4" % sBR)
    e.salu("s_add_u32 s3, s3, s%d" % sRB)
    e.salu("s_lshl_b32 s3, s3, 3")
    e.salu("s_add_u32 s3, s3, s%d" % sHG)
    e.salu("s_lshl_b32 s3, s3, 2")
    e.salu("s_add_u32 s3, s3, s%d" % sW)
    e.salu("s_lshl_b32 s%d, s3, 15" % sSt)
    e.salu("s_lshl_b32 s13, s%d, 2" % sRB)
    e.salu("s_add_u32 s13, s13, s%d" % sW)
    e.salu("s_lshl_b32 s14, s13, 16")
    e.salu("s_lshl_b32 s3, s%d, 10" % sHG)
    e.salu("s_add_u32 s14, s14, s3")
    if WOQ:
        e.salu("s_mov_b64 s[%d:%d], s[%d:%d]" % (SRD_WC, SRD_WC + 1, SRD_WO, SRD_WO + 1))
        e.salu("s_mov_b32 s%d, s%d" % (sWCo, sWOo))
        e.salu("s_mov_b32 s%d, 0x8000" % sWCinc)
        e.ins("v_lshl_add_u32 v%d, v%d, 13, v%d" % (vWC, tg, tt), "valu", V(tg) + V(tt), V(vWC))
        for j in range(1, 8):
            e.ins("v_add_u32 v%d, 0x%x, v%d" % (vWC + j, j * 1024, vWC), "valu", V(vWC), V(vWC + j))
    if ETOUCH:
        e.ins("buffer_load_dword v%d, v%d, %s, s14 offen%s" % (vT + 6, tq, srd(SRD_WQ), TNT), "vload", V(tq), V(vT + 6), tag="touch")
    if TLB:
        tz = vT + 10
        e.ins("v_mov_b32 v%d, 0" % tz, "valu", (), V(tz))
        k = 0
        for srdn, so in ((SRD_K, sKV), (SRD_K, sKV + 2), (SRD_V, sKV), (SRD_V, sKV + 2), (SRD_WO, sWOo), (SRD_WS, sSt)):
            e.ins("buffer_load_dword v%d, v%d, %s, s%d offen" % (vFRAG + k, tz, srd(srdn), so), "vload", V(tz), V(vFRAG + k), tag="tlb")
            k += 1
    xa = vOw
    xv = vT + 9
    def xq_load(q):
        for n in range(4):
            d = vVRAW + q * 16 + n * 4
            e.salu("s_add_u32 s3, s%d, %d" % (sXo, n * 4096))
            e.ins("buffer_load_dwordx4 %s, v%d, %s, s3 offen offset:%d%s" % (vr(d, 4), xv, srd(SRD_X), q * 256, XNT),
                  "vload", V(xv), V(d, 4), tag=("x", q))
    def xq_write(q):
        e.wait_vm(("x", q))
        for n in range(4):
            d = vVRAW + q * 16 + n * 4
            e.ins("ds_write_b128 v%d, %s offset:%d" % (xa + n, vr(d, 4), n * 4096 + q * 256), "dswrite", V(xa + n) + V(d, 4), (), tag="xw")
    if XQ:
        e.ins("v_lshl_add_u32 v%d, v%d, 10, v%d" % (xv, tg, tt), "valu", V(tg) + V(tt), V(xv))
        e.ins("v_xor_b32 v%d, v%d, v%d" % (t3, ti, tg), "valu", V(ti) + V(tg), V(t3))
        e.ins("v_lshlrev_b32 v%d, 4, v%d" % (t3, t3), "valu", V(t3), V(t3))
        e.ins("v_lshl_add_u32 v%d, v%d, 10, v%d" % (t3, tg, t3), "valu", V(tg) + V(t3), V(t3))
        e.salu("s_lshl_b32 s3, s%d, 14" % sW)
        e.ins("v_add_u32 v%d, s3, v%d" % (xa, t3), "valu", V(t3), V(xa))
        for n in range(1, 4):
            e.ins("v_xor_b32 v%d, %d, v%d" % (xa + n, n * 64, xa), "valu", V(xa), V(xa + n))
        xq_load(0)
        xq_load(1)
    else:
      for r in range(16):
        if r and r % 4 == 0:
            e.salu("s_add_u32 s%d, s%d, 0x1000" % (sXo, sXo))
        d = vVRAW + 4 * r
        e.ins("buffer_load_dwordx4 %s, v%d, %s, s%d offen offset:%d%s" % (vr(d, 4), vSt, srd(SRD_X), sXo, (r % 4) * 1024, XNT),
              "vload", V(vSt), V(d, 4), tag="x")

    def wloads(t):
        out = []
        buf = vRAW + (t % D) * 32
        for j in range(8):
            d = buf + 4 * j
            def f(d=d, j=j):
                e.ins("buffer_load_dwordx4 %s, v%d, %s, s%d offen%s" % (vr(d, 4), vWC + j, srd(SRD_WC), sWCo, WNT),
                      "vload", V(vWC + j), V(d, 4), tag=("w", t))
            out.append(f)
        out.append(lambda: e.salu("s_add_u32 s%d, s%d, s%d" % (sWCo, sWCo, sWCinc)))
        return out

    for t in range(PRE):
        for f in wloads(t):
            f()
    if XQ:
        xq_load(2)
        xq_load(3)

    nt = " nt" if KVNT else ""

    def kv_burst(idx):
        if NOKV:
            return
        bb, isv = idx // 2, idx % 2
        if KDMA and not isv:
            kb0 = vT + 4
            kb0 = vT + 6
            ki_, kg_ = vT, vT + 1
            e.ins("v_and_b32 v%d, 15, v%d" % (ki_, vL), "valu", V(vL), V(ki_))
            e.ins("v_lshrrev_b32 v%d, 4, v%d" % (kg_, vL), "valu", V(vL), V(kg_))
            e.ins("v_xor_b32 v%d, v%d, v%d" % (ki_, ki_, kg_), "valu", V(ki_) + V(kg_), V(ki_))
            e.ins("v_lshlrev_b32 v%d, 4, v%d" % (ki_, ki_), "valu", V(ki_), V(ki_))
            e.ins("v_lshl_add_u32 v%d, v%d, 8, v%d" % (kb0, kg_, ki_), "valu", V(kg_) + V(ki_), V(kb0))
            for q in range(1, 4):
                e.ins("v_xor_b32 v%d, %d, v%d" % (kb0 + q, q * 64, kb0), "valu", V(kb0), V(kb0 + q))
            e.salu("s_lshl_b32 s15, s%d, 14" % sW)
            e.salu("s_add_u32 s15, s15, 0x%x" % (LDS_O + bb * 8192))
            for n in range(8):
                e.salu("s_add_u32 s3, s%d, %d" % (sKV + bb * 2, n * 1024))
                e.salu("s_mov_b32 m0, s15")
                e.salu("s_add_u32 s15, s15, 1024")
                e.ins("buffer_load_dwordx4 v%d, %s, s3 offen%s lds" % (kb0 + n % 4, srd(SRD_K), nt), "vload", V(kb0 + n % 4), (), tag=("kv", bb, 0))
            return
        for n in range(8):
            if not isv:
                kt, sp = n // 4, n % 4
                d = aKF + bb * 32 + (kt * 4 + sp) * 4
                e.ins("buffer_load_dwordx4 %s, v%d, %s, s%d offen offset:%d%s" % (ar(d, 4), vK, srd(SRD_K), sKV + bb * 2 + kt, sp * 16, nt),
                      "vload", V(vK), A(d, 4), tag=("kv", bb, 0))
            else:
                d = vVRAW + bb * 32 + n * 4
                e.ins("buffer_load_dwordx4 %s, v%d, %s, s%d offen offset:%d%s" % (vr(d, 4), vV, srd(SRD_V), sKV + bb * 2 + n // 4, (n % 4) * 256, nt),
                      "vload", V(vV), V(d, 4), tag=("kv", bb, 1))

    def zero_acc():
        if MZ:
            z = vT + 4
            z = vFRAG
            for k in range(4):
                e.ins("v_mov_b32 v%d, 0" % (z + k), "valu", (), V(z + k))
            for k in range(32):
                e.ins("v_mfma_f32_16x16x32_bf16 %s, %s, %s, 0" % (ar(aACC + 4 * k, 4), vr(z, 4), vr(z, 4)), "mfma", V(z, 4), A(aACC + 4 * k, 4))
        else:
            for k in range(128):
                e.ins("v_accvgpr_write_b32 a%d, 0" % (aACC + k), "valu", (), A(aACC + k))
    zero_acc()
    if XQ:
        xq_write(0)
        xq_write(1)
        stamp()
    else:
        tb = vT + 8
        e.ins("v_mov_b32 v%d, s%d" % (tb, sW), "valu", [("s", sW)], V(tb))
        e.ins("v_lshlrev_b32 v%d, 14, v%d" % (tb, tb), "valu", V(tb), V(tb))
        e.wait_vm("x")
        stamp()
        for r in range(16):
            ta = vT + 9 + (r % 2)
            e.ins("v_xor_b32 v%d, %d, v%d" % (ta, r, vL), "valu", V(vL), V(ta))
            e.ins("v_lshl_add_u32 v%d, v%d, 4, v%d" % (ta, ta, tb), "valu", V(ta) + V(tb), V(ta))
            d = vVRAW + 4 * r
            e.ins("ds_write_b128 v%d, %s offset:%d" % (ta, vr(d, 4), r * 1024), "dswrite", V(ta) + V(d, 4), (), tag="xw")
    if PBAR:
        e.wait_lgkm()
        e.salu("s_barrier")
    for t in range(PRE, D):
        for f in wloads(t):
            f()
    if TOUCH and not ETOUCH:
        e.ins("buffer_load_dword v%d, v%d, %s, s14 offen%s" % (vT + 6, tq, srd(SRD_WQ), TNT), "vload", V(tq), V(vT + 6), tag="touch")
    e.salu("s_lshl_b32 s14, s%d, 19" % sHG)
    e.salu("s_lshl_b32 s3, s13, 13")
    e.salu("s_add_u32 s14, s14, s3")
    if not PBAR:
        e.wait_lgkm()
        e.salu("s_barrier")
    if STAG:
        e.salu("s_bitcmp1_b32 s2, %d" % STAGBIT)
        e.salu("s_cbranch_scc1 skip_early_kv")
        for i in range(4):
            kv_burst(i)
        e.label("skip_early_kv")
    elif not LATE:
        kv_burst(0)
        if KVALL:
            kv_burst(1)
            kv_burst(2)
            kv_burst(3)
    stamp()

    def xf_read(u, rb):
        d = aXF + (u % 2) * 16 + rb * 4
        off = rb * 16384 + (256 if u == 4 else 0)
        e.ins("ds_read_b128 %s, v%d offset:%d" % (ar(d, 4), vXr + (u % 4), off), "dsread", V(vXr + (u % 4)), A(d, 4), tag=("xf", u % 4))

    def perm(t, c, p):
        buf = vRAW + (t % D) * 32
        s0 = buf + 4 * (2 * p + 1) + (c >> 1)
        s1 = buf + 4 * (2 * p) + (c >> 1)
        dd = vFRAG + c * 4 + p
        sel = sSelHi if (c & 1) else sSelLo
        e.ins("v_perm_b32 v%d, v%d, v%d, s%d" % (dd, s0, s1, sel), "valu", V(s0) + V(s1), V(dd))

    def phase_entry():
        for rb in range(4):
            xf_read(0, rb)
        e.wait_vm(("w", 0))
        for c in range(8):
            for p in range(4):
                perm(0, c, p)

    def loop_body():
        for u in range(4):
            e.comment("step %d" % u)
            e.wait_lgkm(("xf", u))
            if VO and u == 2:
                e.salu("s_cmp_eq_u32 s%d, 3" % sIt)
                e.salu("s_cselect_b32 s%d, 0, s%d" % (SRD_WC + 2, SRD_WC + 2))
            wl = wloads(u + D)
            m = 0
            for c in range(8):
                for rb in range(4):
                    ac = acc(rb, c)
                    xf = aXF + (u % 2) * 16 + rb * 4
                    e.ins("v_mfma_f32_16x16x32_bf16 %s, %s, %s, %s" % (ar(ac, 4), vr(vFRAG + c * 4, 4), ar(xf, 4), ar(ac, 4)), "mfma",
                          V(vFRAG + c * 4, 4) + A(xf, 4) + A(ac, 4), A(ac, 4), creads=A(ac, 4))
                    if c == 0 and "L" not in DIAG:
                        wl[2 * rb]()
                        wl[2 * rb + 1]()
                        if rb == 3:
                            wl[8]()
                            e.wait_vm(("w", u + 1))
                    if c >= 1 and "P" not in DIAG:
                        perm(u + 1, c - 1, rb)
                    if c == 2 and "X" not in DIAG:
                        xf_read(u + 1, rb)
                    m += 1
            for p in range(4):
                if "P" not in DIAG:
                    perm(u + 1, 7, p)
        for slo in range(4):
            e.ins("v_add_u32 v%d, 0x100, v%d" % (vXr + slo, vXr + slo), "valu", V(vXr + slo), V(vXr + slo))

    e.salu("s_mov_b32 s%d, 0" % sIt)
    phase_entry()
    e.label("gemm_loop")
    e.vm = [("w", 1)] * 8 + [("w", 2)] * 8 + [("w", 3)] * 8
    e.lgkm = [("xf", 0)] * 4
    e.last_w = {}
    e.nop(2)
    loop_body()
    e.salu("s_add_u32 s%d, s%d, 1" % (sIt, sIt))
    e.salu("s_cmp_eq_u32 s%d, 4" % sIt)
    e.salu("s_cbranch_scc1 attention")
    e.salu("s_cmp_eq_u32 s%d, 8" % sIt)
    e.salu("s_cbranch_scc1 epilogue")
    e.salu("s_cmp_eq_u32 s%d, 7" % sIt)
    e.salu("s_cbranch_scc1 it7")
    e.salu("s_cmp_gt_u32 s%d, 4" % sIt)
    e.salu("s_cbranch_scc1 gemm_loop")
    e.salu("s_cmp_eq_u32 s%d, 2" % sIt)
    e.salu("s_cbranch_scc1 it2")
    e.salu("s_cmp_eq_u32 s%d, 3" % sIt)
    e.salu("s_cbranch_scc1 it3")
    e.label("it1")
    if not FUSE:
        stamp()
    if XQ:
        e.lgkm = [("xf", 0)] * 4
        for n in range(4):
            d = vVRAW + 2 * 16 + n * 4
            e.ins("ds_write_b128 v%d, %s offset:%d" % (xa + n, vr(d, 4), n * 4096 + 2 * 256), "dswrite", V(xa + n) + V(d, 4), (), tag="xw")
        e.wait_lgkm()
        e.salu("s_barrier")
    if G4:
        e.salu("s_cmp_lg_u32 s12, 1")
        e.salu("s_cbranch_scc1 g4skip1")
        for i in range(4):
            kv_burst(i)
        e.label("g4skip1")
    if not KVALL and not STAG and not LATE and HALF != 2:
        kv_burst(1)
    if TOUCH:
        e.ins("buffer_load_dword v%d, v%d, %s, s14 offen%s" % (vT + 6, to, srd(SRD_WO), TNT), "vload", V(to), V(vT + 6), tag="touch")
    e.salu("s_branch gemm_loop")
    e.label("it2")
    if XR:
        e.salu("s_mov_b32 s%d, 0x10000000" % (SRD_WS + 2))
        e.salu("s_lshl_b32 s3, s2, 2")
        e.salu("s_add_u32 s3, s3, s%d" % sW)
        e.salu("s_lshl_b32 s3, s3, 14")
        e.salu("s_add_u32 s3, s3, 0x4000000")
        for k in range(16):
            e.raw("buffer_load_dwordx4 a[224:227], v%d, s[%d:%d], s3 offen" % (vSt, SRD_WS, SRD_WS + 3))
            e.salu("s_add_u32 s3, s3, 1024")
    if not FUSE:
        stamp()
    if XQ:
        e.lgkm = [("xf", 0)] * 4
        for n in range(4):
            d = vVRAW + 3 * 16 + n * 4
            e.ins("ds_write_b128 v%d, %s offset:%d" % (xa + n, vr(d, 4), n * 4096 + 3 * 256), "dswrite", V(xa + n) + V(d, 4), (), tag="xw")
        e.wait_lgkm()
        e.salu("s_barrier")
    if G4:
        e.salu("s_cmp_lg_u32 s12, 2")
        e.salu("s_cbranch_scc1 g4skip2")
        for i in range(4):
            kv_burst(i)
        e.label("g4skip2")
    if not KVALL and not STAG and not LATE and not HALF:
        kv_burst(2)
    e.salu("s_branch gemm_loop")
    e.label("it3")
    if not FUSE:
        stamp()
    if G4:
        e.salu("s_cmp_lg_u32 s12, 3")
        e.salu("s_cbranch_scc1 g4skip3")
        for i in range(4):
            kv_burst(i)
        e.label("g4skip3")
    if not KVALL and not STAG and not LATE and not HALF:
        kv_burst(3)
    if LATE == 2:
        for i in range(4):
            kv_burst(i)
    e.salu("s_mov_b64 s[%d:%d], s[%d:%d]" % (SRD_WC, SRD_WC + 1, SRD_WO, SRD_WO + 1))
    e.salu("s_mov_b32 s%d, s%d" % (sWCo, sWOo))
    e.salu("s_mov_b32 s%d, 0x8000" % sWCinc)
    e.ins("v_and_b32 v%d, 15, v%d" % (ti, vL), "valu", V(vL), V(ti))
    e.ins("v_lshrrev_b32 v%d, 4, v%d" % (tg, vL), "valu", V(vL), V(tg))
    e.ins("v_lshlrev_b32 v%d, 4, v%d" % (tt, ti), "valu", V(ti), V(tt))
    e.ins("v_lshl_add_u32 v%d, v%d, 13, v%d" % (vWC, tg, tt), "valu", V(tg) + V(tt), V(vWC))
    for j in range(1, 8):
        e.ins("v_add_u32 v%d, 0x%x, v%d" % (vWC + j, j * 1024, vWC), "valu", V(vWC), V(vWC + j))
    e.salu("s_branch gemm_loop")
    e.label("it7")
    e.salu("s_mov_b32 s%d, 0" % (SRD_WC + 2))
    e.salu("s_branch gemm_loop")

    e.label("attention")
    stamp()
    e.last_w = {}
    e.nop(10)
    e.vm = [("w", 1)] * 8 + [("w", 2)] * 8 + [("w", 3)] * 8
    e.lgkm = [("xf", 0)] * 4
    e.wait_lgkm()
    if HALF:
        e.salu("s_waitcnt vmcnt(0)")
        e.vm = []
        if HALF == 2:
            kv_burst(1)
        kv_burst(2)
        kv_burst(3)
    if KDMA:
        e.salu("s_lshl_b32 s3, s%d, 14" % sW)
        e.salu("s_add_u32 s3, s3, 0x%x" % LDS_O)
        ki, kg = vT + 8, vT + 9
        e.ins("v_and_b32 v%d, 15, v%d" % (ki, vL), "valu", V(vL), V(ki))
        e.ins("v_lshrrev_b32 v%d, 4, v%d" % (kg, vL), "valu", V(vL), V(kg))
        for sp in range(4):
            ka = vT + 4 + (sp % 2)
            e.ins("v_lshl_add_u32 v%d, v%d, 2, %d" % (ka, kg, sp), "valu", V(kg), V(ka))
            e.ins("v_xor_b32 v%d, v%d, v%d" % (ka, ka, ki), "valu", V(ka) + V(ki), V(ka))
            e.ins("v_lshlrev_b32 v%d, 4, v%d" % (ka, ka), "valu", V(ka), V(ka))
            e.ins("v_lshl_add_u32 v%d, v%d, 8, v%d" % (ka, ki, ka), "valu", V(ki) + V(ka), V(ka))
            e.ins("v_add_u32 v%d, s3, v%d" % (ka, ka), "valu", V(ka), V(ka))
            for bb in range(2):
                for kt in range(2):
                    d = aKF + bb * 32 + (kt * 4 + sp) * 4
                    e.ins("ds_read_b128 %s, v%d offset:%d" % (ar(d, 4), ka, bb * 8192 + kt * 4096), "dsread", V(ka), A(d, 4), tag="kf")
        e.wait_lgkm()
        e.salu("s_barrier")
    if KLDS:
        e.salu("s_barrier")
        kb0 = vT + 4
        e.ins("v_and_b32 v%d, 15, v%d" % (ti, vL), "valu", V(vL), V(ti))
        e.ins("v_lshrrev_b32 v%d, 4, v%d" % (tg, vL), "valu", V(vL), V(tg))
        e.ins("v_xor_b32 v%d, v%d, v%d" % (t3, ti, tg), "valu", V(ti) + V(tg), V(t3))
        e.ins("v_lshlrev_b32 v%d, 4, v%d" % (t3, t3), "valu", V(t3), V(t3))
        e.ins("v_lshl_add_u32 v%d, v%d, 8, v%d" % (kb0, tg, t3), "valu", V(tg) + V(t3), V(kb0))
        for q in range(1, 4):
            e.ins("v_xor_b32 v%d, %d, v%d" % (kb0 + q, q * 64, kb0), "valu", V(kb0), V(kb0 + q))
        e.salu("s_lshl_b32 s13, s%d, 14" % sW)
        for bb in range(2):
            for n in range(8):
                e.salu("s_add_u32 s14, s13, %d" % (bb * 8192 + n * 1024))
                e.salu("s_add_u32 s3, s%d, %d" % (sKV + bb * 2, n * 1024))
                e.salu("s_mov_b32 m0, s14")
                e.salu("s_nop 0")
                e.ins("buffer_load_dwordx4 v%d, %s, s3 offen%s lds" % (kb0 + n % 4, srd(SRD_K), nt), "vload", V(kb0 + n % 4), (), tag=("kv", bb, 0))
            kv_burst(2 * bb + 1)
    elif LATE == 1:
        if G4:
            e.salu("s_cmp_lg_u32 s12, 0")
            e.salu("s_cbranch_scc1 g4skip0")
        for i in range(4):
            kv_burst(i)
        if G4:
            e.label("g4skip0")
    if STAG:
        e.salu("s_bitcmp1_b32 s2, %d" % STAGBIT)
        e.salu("s_cbranch_scc0 skip_late_kv")
        for i in range(4):
            kv_burst(i)
        e.salu("s_waitcnt vmcnt(0)")
        e.label("skip_late_kv")
        e.vm = []
    e.ins("v_and_b32 v%d, 15, v%d" % (ti, vL), "valu", V(vL), V(ti))
    e.ins("v_lshrrev_b32 v%d, 4, v%d" % (tg, vL), "valu", V(vL), V(tg))
    e.salu("s_lshl_b32 s3, s%d, 8" % sW)
    e.salu("s_add_u32 s3, s3, 0x%x" % LDS_O)
    for r in range(4):
        e.ins("v_lshl_add_u32 v%d, v%d, 2, %d" % (t3, tg, r), "valu", V(tg), V(t3))
        e.ins("v_xor_b32 v%d, v%d, v%d" % (t3, t3, ti), "valu", V(t3) + V(ti), V(t3))
        e.ins("v_lshlrev_b32 v%d, 4, v%d" % (t3, t3), "valu", V(t3), V(t3))
        e.ins("v_lshl_add_u32 v%d, v%d, 10, v%d" % (t3, ti, t3), "valu", V(ti) + V(t3), V(t3))
        e.ins("v_add_u32 v%d, s3, v%d" % (vOw + r, t3), "valu", V(t3), V(vOw + r))
    for slo in range(4):
        e.ins("v_add_u32 v%d, 0x%x, v%d" % (vXr + slo, LDS_O - 1024, vXr + slo), "valu", V(vXr + slo), V(vXr + slo))
    if ILP:
        QF = vFRAG
        def pack8(aregs, dq):
            for k in range(8):
                e.ins("v_accvgpr_read_b32 v%d, a%d" % (vT + k, aregs[k]), "valu", A(aregs[k]), V(vT + k))
            for p in range(4):
                e.ins("v_cvt_pk_bf16_f32 v%d, v%d, v%d" % (dq + p, vT + 2 * p, vT + 2 * p + 1), "valu", V(vT + 2 * p) + V(vT + 2 * p + 1), V(dq + p))
        def softmax_stream(vals, PFq, T):
            L = []
            def I(text, kind, r, w):
                L.append((text, kind, r, w))
            for rnd in range(2):
                for k in range(0, 8, 2):
                    I("v_cvt_pk_bf16_f32 v%d, v%d, v%d" % (T + k // 2, vals[k], vals[k + 1]), "valu", V(vals[k]) + V(vals[k + 1]), V(T + k // 2))
                for k in range(0, 8, 2):
                    I("v_lshlrev_b32 v%d, 16, v%d" % (vals[k], T + k // 2), "valu", V(T + k // 2), V(vals[k]))
                    I("v_and_b32 v%d, s%d, v%d" % (vals[k + 1], sMask, T + k // 2), "valu", V(T + k // 2), V(vals[k + 1]))
                if rnd == 0:
                    for x in vals:
                        I("v_mul_f32 v%d, s%d, v%d" % (x, sScale, x), "valu", V(x), V(x))
            mx, m2 = T, T + 1
            I("v_max3_f32 v%d, v%d, v%d, v%d" % (mx, vals[0], vals[1], vals[2]), "valu", V(vals[0]) + V(vals[1]) + V(vals[2]), V(mx))
            I("v_max3_f32 v%d, v%d, v%d, v%d" % (m2, vals[3], vals[4], vals[5]), "valu", V(vals[3]) + V(vals[4]) + V(vals[5]), V(m2))
            I("v_max3_f32 v%d, v%d, v%d, v%d" % (mx, mx, vals[6], vals[7]), "valu", V(mx) + V(vals[6]) + V(vals[7]), V(mx))
            I("v_max_f32 v%d, v%d, v%d" % (mx, mx, m2), "valu", V(mx) + V(m2), V(mx))
            for sw in ("v_permlane16_swap_b32", "v_permlane32_swap_b32"):
                I("v_mov_b32 v%d, v%d" % (m2, mx), "valu", V(mx), V(m2))
                I("%s v%d, v%d" % (sw, mx, m2), "permlane", V(mx) + V(m2), V(mx) + V(m2))
                I("v_max_f32 v%d, v%d, v%d" % (mx, mx, m2), "valu", V(mx) + V(m2), V(mx))
            for x in vals:
                I("v_sub_f32 v%d, v%d, v%d" % (x, x, mx), "valu", V(x) + V(mx), V(x))
            for x in vals:
                I("v_mul_f32 v%d, s%d, v%d" % (x, sLog2e, x), "valu", V(x), V(x))
            for x in vals:
                I("v_exp_f32 v%d, v%d" % (x, x), "trans", V(x), V(x))
            sm, s2_, s3_, s4_ = T, T + 1, T + 2, T + 3
            I("v_add_f32 v%d, v%d, v%d" % (sm, vals[0], vals[1]), "valu", V(vals[0]) + V(vals[1]), V(sm))
            I("v_add_f32 v%d, v%d, v%d" % (s2_, vals[2], vals[3]), "valu", V(vals[2]) + V(vals[3]), V(s2_))
            I("v_add_f32 v%d, v%d, v%d" % (s3_, vals[4], vals[5]), "valu", V(vals[4]) + V(vals[5]), V(s3_))
            I("v_add_f32 v%d, v%d, v%d" % (s4_, vals[6], vals[7]), "valu", V(vals[6]) + V(vals[7]), V(s4_))
            I("v_add_f32 v%d, v%d, v%d" % (sm, sm, s2_), "valu", V(sm) + V(s2_), V(sm))
            I("v_add_f32 v%d, v%d, v%d" % (s3_, s3_, s4_), "valu", V(s3_) + V(s4_), V(s3_))
            I("v_add_f32 v%d, v%d, v%d" % (sm, sm, s3_), "valu", V(sm) + V(s3_), V(sm))
            for sw in ("v_permlane16_swap_b32", "v_permlane32_swap_b32"):
                I("v_mov_b32 v%d, v%d" % (s2_, sm), "valu", V(sm), V(s2_))
                I("%s v%d, v%d" % (sw, sm, s2_), "permlane", V(sm) + V(s2_), V(sm) + V(s2_))
                I("v_add_f32 v%d, v%d, v%d" % (sm, sm, s2_), "valu", V(sm) + V(s2_), V(sm))
            I("v_rcp_f32 v%d, v%d" % (sm, sm), "trans", V(sm), V(sm))
            for x in vals:
                I("v_mul_f32 v%d, v%d, v%d" % (x, x, sm), "valu", V(x) + V(sm), V(x))
            for p in range(4):
                I("v_cvt_pk_bf16_f32 v%d, v%d, v%d" % (PFq + p, vals[2 * p], vals[2 * p + 1]), "valu", V(vals[2 * p]) + V(vals[2 * p + 1]), V(PFq + p))
            return L
        for bb in range(2):
            vb = vVRAW + bb * 32
            for qt in range(2):
                rb = 2 * bb + qt
                for sp in range(4):
                    pack8([acc(rb, c) + sp for c in range(8)], QF + (qt * 4 + sp) * 4)
            e.wait_vm(("kv", bb, 0))
            OV = vRAW + 64
            if VO and bb == 0 and not HALF:
                e.salu("s_waitcnt vmcnt(0)")
                e.vm = []
            for sp in range(4):
                for kt in range(2):
                    for qt in range(2):
                        kf = aKF + bb * 32 + (kt * 4 + sp) * 4
                        qf = QF + (qt * 4 + sp) * 4
                        if VO:
                            sd = OV + qt * 8 + kt * 4
                            if sp == 0:
                                e.ins("v_mfma_f32_16x16x32_bf16 %s, %s, %s, 0" % (vr(sd, 4), ar(kf, 4), vr(qf, 4)), "mfma",
                                      A(kf, 4) + V(qf, 4), V(sd, 4))
                            else:
                                e.ins("v_mfma_f32_16x16x32_bf16 %s, %s, %s, %s" % (vr(sd, 4), ar(kf, 4), vr(qf, 4), vr(sd, 4)), "mfma",
                                      A(kf, 4) + V(qf, 4) + V(sd, 4), V(sd, 4), creads=V(sd, 4))
                            continue
                        sd = aS + (kt * 2 + qt) * 4
                        if sp == 0:
                            e.ins("v_mfma_f32_16x16x32_bf16 %s, %s, %s, 0" % (ar(sd, 4), ar(kf, 4), vr(qf, 4)), "mfma",
                                  A(kf, 4) + V(qf, 4), A(sd, 4))
                        else:
                            e.ins("v_mfma_f32_16x16x32_bf16 %s, %s, %s, %s" % (ar(sd, 4), ar(kf, 4), vr(qf, 4), ar(sd, 4)), "mfma",
                                  A(kf, 4) + V(qf, 4) + A(sd, 4), A(sd, 4), creads=A(sd, 4))
            e.wait_vm(("kv", bb, 1))
            for c in range(8):
                for p in range(4):
                    s0 = vb + 4 * (2 * p + 1) + (c >> 1)
                    s1 = vb + 4 * (2 * p) + (c >> 1)
                    dd = QF + c * 4 + p
                    sel = sSelHi if (c & 1) else sSelLo
                    e.ins("v_perm_b32 v%d, v%d, v%d, s%d" % (dd, s0, s1, sel), "valu", V(s0) + V(s1), V(dd))
            SV = vb
            PF = vb + 16
            TT = vb + 24
            if VO:
                SS_ = OV
            else:
                SS_ = SV
                for qt in range(2):
                    for kt in range(2):
                        for r in range(4):
                            a_ = aS + (kt * 2 + qt) * 4 + r
                            d_ = SV + qt * 8 + kt * 4 + r
                            e.ins("v_accvgpr_read_b32 v%d, a%d" % (d_, a_), "valu", A(a_), V(d_))
            s0l = softmax_stream([SS_ + k for k in range(8)], PF, TT)
            s1l = softmax_stream([SS_ + 8 + k for k in range(8)], PF + 4, TT + 4)
            for x, y in zip(s0l, s1l):
                e.ins(*x)
                e.ins(*y)
            for qt in range(2):
                for c in range(8):
                    if VO:
                        od = OV + (qt * 8 + c) * 4
                        e.ins("v_mfma_f32_16x16x32_bf16 %s, %s, %s, 0" % (vr(od, 4), vr(QF + c * 4, 4), vr(PF + qt * 4, 4)), "mfma",
                              V(QF + c * 4, 4) + V(PF + qt * 4, 4), V(od, 4))
                        continue
                    ac = acc(2 * bb + qt, c)
                    e.ins("v_mfma_f32_16x16x32_bf16 %s, %s, %s, 0" % (ar(ac, 4), vr(QF + c * 4, 4), vr(PF + qt * 4, 4)), "mfma",
                          V(QF + c * 4, 4) + V(PF + qt * 4, 4), A(ac, 4))
            n = 0
            for qt in range(2):
                for r in range(4):
                    dq = SV + (n % 4) * 4
                    n += 1
                    if VO:
                        for p in range(4):
                            o0 = OV + (qt * 8 + 2 * p) * 4 + r
                            o1 = OV + (qt * 8 + 2 * p + 1) * 4 + r
                            e.ins("v_cvt_pk_bf16_f32 v%d, v%d, v%d" % (dq + p, o0, o1), "valu", V(o0) + V(o1), V(dq + p))
                    else:
                        pack8([acc(2 * bb + qt, c) + r for c in range(8)], dq)
                    e.ins("ds_write_b128 v%d, %s offset:%d" % (vOw + r, vr(dq, 4), (32 * bb + 16 * qt) * 1024), "dswrite",
                          V(vOw + r) + V(dq, 4), (), tag="ow")
    else:
        QF = vFRAG
        for bb in range(2):
            vb = vVRAW + bb * 32
            for qt in range(2):
                rb = 2 * bb + qt
                for sp in range(4):
                    for p in range(4):
                        t0 = vT + (p % 2) * 2
                        t1 = t0 + 1
                        a0 = acc(rb, 2 * p) + sp
                        a1 = acc(rb, 2 * p + 1) + sp
                        e.ins("v_accvgpr_read_b32 v%d, a%d" % (t0, a0), "valu", A(a0), V(t0))
                        e.ins("v_accvgpr_read_b32 v%d, a%d" % (t1, a1), "valu", A(a1), V(t1))
                        dd = QF + (qt * 4 + sp) * 4 + p
                        e.ins("v_cvt_pk_bf16_f32 v%d, v%d, v%d" % (dd, t0, t1), "valu", V(t0) + V(t1), V(dd))
            e.wait_vm(("kv", bb, 0))
            if KLDS:
                e.salu("s_lshl_b32 s3, s%d, 14" % sW)
                ki, kg = vT + 8, vT + 9
                e.ins("v_and_b32 v%d, 15, v%d" % (ki, vL), "valu", V(vL), V(ki))
                e.ins("v_lshrrev_b32 v%d, 4, v%d" % (kg, vL), "valu", V(vL), V(kg))
                for sp in range(4):
                    ka = vT + 4 + (sp % 2)
                    e.ins("v_lshl_add_u32 v%d, v%d, 2, %d" % (ka, kg, sp), "valu", V(kg), V(ka))
                    e.ins("v_xor_b32 v%d, v%d, v%d" % (ka, ka, ki), "valu", V(ka) + V(ki), V(ka))
                    e.ins("v_lshlrev_b32 v%d, 4, v%d" % (ka, ka), "valu", V(ka), V(ka))
                    e.ins("v_lshl_add_u32 v%d, v%d, 8, v%d" % (ka, ki, ka), "valu", V(ki) + V(ka), V(ka))
                    e.ins("v_add_u32 v%d, s3, v%d" % (ka, ka), "valu", V(ka), V(ka))
                    for kt in range(2):
                        d = aKF + bb * 32 + (kt * 4 + sp) * 4
                        e.ins("ds_read_b128 %s, v%d offset:%d" % (ar(d, 4), ka, bb * 8192 + kt * 4096), "dsread", V(ka), A(d, 4), tag="kf")
                e.wait_lgkm()
            for sp in range(4):
                for kt in range(2):
                    for qt in range(2):
                        sd = aS + (kt * 2 + qt) * 4
                        kf = aKF + bb * 32 + (kt * 4 + sp) * 4
                        qf = QF + (qt * 4 + sp) * 4
                        if sp == 0:
                            e.ins("v_mfma_f32_16x16x32_bf16 %s, %s, %s, 0" % (ar(sd, 4), ar(kf, 4), vr(qf, 4)), "mfma",
                                  A(kf, 4) + V(qf, 4), A(sd, 4))
                        else:
                            e.ins("v_mfma_f32_16x16x32_bf16 %s, %s, %s, %s" % (ar(sd, 4), ar(kf, 4), vr(qf, 4), ar(sd, 4)), "mfma",
                                  A(kf, 4) + V(qf, 4) + A(sd, 4), A(sd, 4), creads=A(sd, 4))
            e.wait_vm(("kv", bb, 1))
            for c in range(8):
                for p in range(4):
                    s0 = vb + 4 * (2 * p + 1) + (c >> 1)
                    s1 = vb + 4 * (2 * p) + (c >> 1)
                    dd = QF + c * 4 + p
                    sel = sSelHi if (c & 1) else sSelLo
                    e.ins("v_perm_b32 v%d, v%d, v%d, s%d" % (dd, s0, s1, sel), "valu", V(s0) + V(s1), V(dd))
            SV = vb
            PF = vb + 16
            TT = vb + 24
            for qt in range(2):
                for kt in range(2):
                    for r in range(4):
                        a_ = aS + (kt * 2 + qt) * 4 + r
                        d_ = SV + qt * 8 + kt * 4 + r
                        e.ins("v_accvgpr_read_b32 v%d, a%d" % (d_, a_), "valu", A(a_), V(d_))
            for qt in range(2):
                vals = [SV + qt * 8 + k for k in range(8)]
                for rnd in range(2):
                    for k in range(0, 8, 2):
                        x0, x1 = vals[k], vals[k + 1]
                        tp = TT
                        e.ins("v_cvt_pk_bf16_f32 v%d, v%d, v%d" % (tp, x0, x1), "valu", V(x0) + V(x1), V(tp))
                        e.ins("v_lshlrev_b32 v%d, 16, v%d" % (x0, tp), "valu", V(tp), V(x0))
                        e.ins("v_and_b32 v%d, s%d, v%d" % (x1, sMask, tp), "valu", V(tp), V(x1))
                        if rnd == 0:
                            e.ins("v_mul_f32 v%d, s%d, v%d" % (x0, sScale, x0), "valu", V(x0), V(x0))
                            e.ins("v_mul_f32 v%d, s%d, v%d" % (x1, sScale, x1), "valu", V(x1), V(x1))
                mx, m2 = TT + 1, TT + 2
                e.ins("v_max3_f32 v%d, v%d, v%d, v%d" % (mx, vals[0], vals[1], vals[2]), "valu", V(vals[0]) + V(vals[1]) + V(vals[2]), V(mx))
                e.ins("v_max3_f32 v%d, v%d, v%d, v%d" % (mx, mx, vals[3], vals[4]), "valu", V(mx) + V(vals[3]) + V(vals[4]), V(mx))
                e.ins("v_max3_f32 v%d, v%d, v%d, v%d" % (mx, mx, vals[5], vals[6]), "valu", V(mx) + V(vals[5]) + V(vals[6]), V(mx))
                e.ins("v_max_f32 v%d, v%d, v%d" % (mx, mx, vals[7]), "valu", V(mx) + V(vals[7]), V(mx))
                for sw in ("v_permlane16_swap_b32", "v_permlane32_swap_b32"):
                    e.ins("v_mov_b32 v%d, v%d" % (m2, mx), "valu", V(mx), V(m2))
                    e.ins("%s v%d, v%d" % (sw, mx, m2), "permlane", V(mx) + V(m2), V(mx) + V(m2))
                    e.ins("v_max_f32 v%d, v%d, v%d" % (mx, mx, m2), "valu", V(mx) + V(m2), V(mx))
                for x in vals:
                    e.ins("v_sub_f32 v%d, v%d, v%d" % (x, x, mx), "valu", V(x) + V(mx), V(x))
                for x in vals:
                    e.ins("v_mul_f32 v%d, s%d, v%d" % (x, sLog2e, x), "valu", V(x), V(x))
                for x in vals:
                    e.ins("v_exp_f32 v%d, v%d" % (x, x), "trans", V(x), V(x))
                sm, s2_ = TT + 3, TT + 4
                e.ins("v_add_f32 v%d, v%d, v%d" % (sm, vals[0], vals[1]), "valu", V(vals[0]) + V(vals[1]), V(sm))
                e.ins("v_add_f32 v%d, v%d, v%d" % (s2_, vals[2], vals[3]), "valu", V(vals[2]) + V(vals[3]), V(s2_))
                e.ins("v_add_f32 v%d, v%d, v%d" % (sm, sm, s2_), "valu", V(sm) + V(s2_), V(sm))
                e.ins("v_add_f32 v%d, v%d, v%d" % (s2_, vals[4], vals[5]), "valu", V(vals[4]) + V(vals[5]), V(s2_))
                e.ins("v_add_f32 v%d, v%d, v%d" % (sm, sm, s2_), "valu", V(sm) + V(s2_), V(sm))
                e.ins("v_add_f32 v%d, v%d, v%d" % (s2_, vals[6], vals[7]), "valu", V(vals[6]) + V(vals[7]), V(s2_))
                e.ins("v_add_f32 v%d, v%d, v%d" % (sm, sm, s2_), "valu", V(sm) + V(s2_), V(sm))
                for sw in ("v_permlane16_swap_b32", "v_permlane32_swap_b32"):
                    e.ins("v_mov_b32 v%d, v%d" % (s2_, sm), "valu", V(sm), V(s2_))
                    e.ins("%s v%d, v%d" % (sw, sm, s2_), "permlane", V(sm) + V(s2_), V(sm) + V(s2_))
                    e.ins("v_add_f32 v%d, v%d, v%d" % (sm, sm, s2_), "valu", V(sm) + V(s2_), V(sm))
                e.ins("v_rcp_f32 v%d, v%d" % (sm, sm), "trans", V(sm), V(sm))
                for x in vals:
                    e.ins("v_mul_f32 v%d, v%d, v%d" % (x, x, sm), "valu", V(x) + V(sm), V(x))
                for p in range(4):
                    dd = PF + qt * 4 + p
                    e.ins("v_cvt_pk_bf16_f32 v%d, v%d, v%d" % (dd, vals[2 * p], vals[2 * p + 1]), "valu", V(vals[2 * p]) + V(vals[2 * p + 1]), V(dd))
            for qt in range(2):
                for c in range(8):
                    ac = acc(2 * bb + qt, c)
                    e.ins("v_mfma_f32_16x16x32_bf16 %s, %s, %s, 0" % (ar(ac, 4), vr(QF + c * 4, 4), vr(PF + qt * 4, 4)), "mfma",
                          V(QF + c * 4, 4) + V(PF + qt * 4, 4), A(ac, 4))
            n = 0
            for qt in range(2):
                for r in range(4):
                    dq = SV + (n % 4) * 4
                    n += 1
                    for p in range(4):
                        t0 = vT + (p % 2) * 2
                        t1 = t0 + 1
                        a0 = acc(2 * bb + qt, 2 * p) + r
                        a1 = acc(2 * bb + qt, 2 * p + 1) + r
                        e.ins("v_accvgpr_read_b32 v%d, a%d" % (t0, a0), "valu", A(a0), V(t0))
                        e.ins("v_accvgpr_read_b32 v%d, a%d" % (t1, a1), "valu", A(a1), V(t1))
                        e.ins("v_cvt_pk_bf16_f32 v%d, v%d, v%d" % (dq + p, t0, t1), "valu", V(t0) + V(t1), V(dq + p))
                    e.ins("ds_write_b128 v%d, %s offset:%d" % (vOw + r, vr(dq, 4), (32 * bb + 16 * qt) * 1024), "dswrite",
                          V(vOw + r) + V(dq, 4), (), tag="ow")
    zero_acc()
    if VO:
        e.salu("s_mov_b32 s%d, 0x400000" % (SRD_WC + 2))
        e.salu("s_add_u32 s%d, s%d, 0x10000" % (sWCo, sWOo))
        for t in (2, 3):
            for f in wloads(t):
                f()
    e.wait_lgkm()
    stamp()
    e.salu("s_barrier")
    stamp()
    for rb in range(4):
        xf_read(0, rb)
    for c in range(8):
        for p in range(4):
            perm(0, c, p)
    e.salu("s_branch gemm_loop")

    e.label("epilogue")
    stamp()
    e.last_w = {}
    e.nop(10)
    n = 0
    if BFP == 2:
        B0 = vRAW
        e.salu("s_waitcnt vmcnt(0)")
        for rb in range(4):
            for r in range(4):
                for c in range(8):
                    d = B0 + (rb * 4 + r) * 8 + c
                    a0 = acc(rb, c) + r
                    e.ins("v_accvgpr_read_b32 v%d, a%d" % (d, a0), "valu", A(a0), V(d))
        m0, m1 = vT, vT + 1
        e.ins("v_max3_f32 v%d, |v%d|, |v%d|, |v%d|" % (m0, B0, B0 + 1, B0 + 2), "valu", V(B0, 3), V(m0))
        e.ins("v_max3_f32 v%d, |v%d|, |v%d|, |v%d|" % (m1, B0 + 3, B0 + 4, B0 + 5), "valu", V(B0 + 3, 3), V(m1))
        k = 6
        tog = 0
        while k < 128:
            mm = m0 if tog == 0 else m1
            e.ins("v_max3_f32 v%d, |v%d|, |v%d|, v%d" % (mm, B0 + k, B0 + k + 1, mm), "valu", V(B0 + k, 2) + V(mm), V(mm))
            k += 2
            tog ^= 1
        e.ins("v_max_f32 v%d, v%d, v%d" % (m0, m0, m1), "valu", V(m0) + V(m1), V(m0))
        e.ins("v_frexp_exp_i32_f32 v%d, v%d" % (m1, m0), "valu", V(m0), V(m1))
        e.ins("v_sub_u32 v%d, 15, v%d" % (m1, m1), "valu", V(m1), V(m1))
        e.salu("s_movk_i32 s3, 0xff82")
        e.salu("s_movk_i32 s13, 126")
        e.ins("v_mov_b32 v%d, s13" % (vT + 2), "valu", (), V(vT + 2))
        e.ins("v_med3_i32 v%d, v%d, s3, v%d" % (m1, m1, vT + 2), "valu", V(m1) + V(vT + 2), V(m1))
        sc0, inv = vT + 3, vT + 5
        e.ins("v_ldexp_f32 v%d, 1.0, v%d" % (sc0, m1), "valu", V(m1), V(sc0))
        e.ins("v_mov_b32 v%d, v%d" % (sc0 + 1, sc0), "valu", V(sc0), V(sc0 + 1))
        e.ins("v_sub_u32 v%d, 0, v%d" % (m1, m1), "valu", V(m1), V(m1))
        e.ins("v_ldexp_f32 v%d, 1.0, v%d" % (inv, m1), "valu", V(m1), V(inv))
        e.salu("s_lshr_b32 s3, s%d, 7" % sSt)
        e.salu("s_add_u32 s3, s3, 0x1000000")
        e.ins("v_lshlrev_b32 v%d, 2, v%d" % (vT + 6, vL), "valu", V(vL), V(vT + 6))
        e.ins("buffer_store_dword v%d, v%d, %s, s3 offen%s" % (inv, vT + 6, srd(SRD_WS), STF), "vstore", V(inv) + V(vT + 6), (), tag="st")
        e.salu("s_lshr_b32 s%d, s%d, 1" % (sSt, sSt))
        for rb in range(4):
            for r in range(4):
                if n and n % 4 == 0:
                    e.salu("s_add_u32 s%d, s%d, 0x1000" % (sSt, sSt))
                b = B0 + (rb * 4 + r) * 8
                dq = vFRAG + (n % 8) * 4
                for p in range(4):
                    e.ins("v_pk_mul_f32 %s, %s, %s" % (vr(b + 2 * p, 2), vr(b + 2 * p, 2), vr(sc0, 2)), "valu", V(b + 2 * p, 2) + V(sc0, 2), V(b + 2 * p, 2))
                for p in range(4):
                    e.ins("v_cvt_pk_f16_f32 v%d, v%d, v%d" % (dq + p, b + 2 * p, b + 2 * p + 1), "valu", V(b + 2 * p, 2), V(dq + p))
                e.ins("buffer_store_dwordx4 %s, v%d, %s, s%d offen offset:%d%s" % (vr(dq, 4), vSt, srd(SRD_WS), sSt, (n % 4) * 1024, STF),
                      "vstore", V(dq, 4) + V(vSt), (), tag="st")
                n += 1
    elif BFP:
        e.salu("s_lshr_b32 s%d, s%d, 1" % (sSt, sSt))
        for rb in range(4):
            for r in range(4):
                if n and n % 4 == 0:
                    e.salu("s_add_u32 s%d, s%d, 0x1000" % (sSt, sSt))
                dq = vRAW + (n % 8) * 4
                for p in range(4):
                    t0 = vT + (p % 2) * 2
                    t1 = t0 + 1
                    a0 = acc(rb, 2 * p) + r
                    a1 = acc(rb, 2 * p + 1) + r
                    e.ins("v_accvgpr_read_b32 v%d, a%d" % (t0, a0), "valu", A(a0), V(t0))
                    e.ins("v_accvgpr_read_b32 v%d, a%d" % (t1, a1), "valu", A(a1), V(t1))
                    e.ins("v_cvt_pk_bf16_f32 v%d, v%d, v%d" % (dq + p, t0, t1), "valu", V(t0) + V(t1), V(dq + p))
                e.ins("buffer_store_dwordx4 %s, v%d, %s, s%d offen offset:%d%s" % (vr(dq, 4), vSt, srd(SRD_WS), sSt, (n % 4) * 1024, STF),
                      "vstore", V(dq, 4) + V(vSt), (), tag="st")
                n += 1
    else:
      for rb in range(4):
        for c in range(8):
            if n and n % 4 == 0:
                e.salu("s_add_u32 s%d, s%d, 0x1000" % (sSt, sSt))
            ac = acc(rb, c)
            e.ins("buffer_store_dwordx4 %s, v%d, %s, s%d offen offset:%d%s" % (ar(ac, 4), vSt, srd(SRD_WS), sSt, (n % 4) * 1024, STF),
                  "vstore", A(ac, 4) + V(vSt), (), tag="st")
            n += 1
    if FUSE:
        SRD_D, SRD_O = SRD_X, SRD_K
        e.salu("s_waitcnt vmcnt(0)")
        stamp()
        e.salu("s_barrier")
        e.salu("s_mov_b32 s%d, s38" % SRD_D)
        e.salu("s_mov_b32 s%d, s39" % (SRD_D + 1))
        e.salu("s_mov_b32 s%d, 256" % (SRD_D + 2))
        e.salu("s_mov_b32 s%d, s98" % SRD_O)
        e.salu("s_mov_b32 s%d, s99" % (SRD_O + 1))
        e.salu("s_mov_b32 s%d, 0x200000" % (SRD_O + 2))
        e.salu("s_lshl_b32 s13, s%d, 4" % sBR)
        e.salu("s_add_u32 s13, s13, s%d" % sRB)
        e.salu("s_lshl_b32 s14, 1, s%d" % sHG)
        e.salu("s_cmp_lg_u32 s%d, 0" % sW)
        e.salu("s_cbranch_scc1 f_wait")
        e.salu("s_mov_b64 exec, 1")
        e.raw("v_mov_b32 v3, s13")
        e.raw("v_lshlrev_b32 v3, 2, v3")
        e.raw("v_mov_b32 v2, 1")
        e.raw("buffer_atomic_add v2, v3, s[%d:%d], 0 offen sc0 sc1" % (SRD_D, SRD_D + 3))
        e.salu("s_waitcnt vmcnt(0)")
        e.raw("v_readfirstlane_b32 s15, v2")
        e.salu("s_nop 3")
        e.salu("s_cmp_eq_u32 s15, 7")
        e.salu("s_cbranch_scc1 f_last")
        e.salu("s_mov_b32 s3, 0")
        e.label("f_spin")
        e.salu("s_sleep 4")
        e.raw("v_mov_b32 v2, 0")
        e.raw("buffer_atomic_add v2, v3, s[%d:%d], 0 offen sc0 sc1" % (SRD_D, SRD_D + 3))
        e.salu("s_waitcnt vmcnt(0)")
        e.raw("v_readfirstlane_b32 s15, v2")
        e.salu("s_nop 3")
        e.salu("s_cmp_eq_u32 s15, 8")
        e.salu("s_cbranch_scc1 f_decided")
        e.salu("s_add_u32 s3, s3, 1")
        e.salu("s_cmp_lt_u32 s3, %d" % SPIN)
        e.salu("s_cbranch_scc1 f_spin")
        e.raw("v_mov_b32 v2, s14")
        e.raw("buffer_atomic_or v2, v3, s[%d:%d], 0 offen offset:128 sc0 sc1" % (SRD_D, SRD_D + 3))
        e.salu("s_waitcnt vmcnt(0)")
        e.raw("v_mov_b32 v2, 0")
        e.raw("buffer_atomic_add v2, v3, s[%d:%d], 0 offen sc0 sc1" % (SRD_D, SRD_D + 3))
        e.salu("s_waitcnt vmcnt(0)")
        e.raw("v_readfirstlane_b32 s15, v2")
        e.salu("s_nop 3")
        e.salu("s_cmp_eq_u32 s15, 8")
        e.salu("s_cbranch_scc1 f_decided")
        e.salu("s_mov_b32 s14, 0")
        e.salu("s_branch f_decided")
        e.label("f_last")
        e.raw("v_mov_b32 v2, 0")
        e.raw("buffer_atomic_or v2, v3, s[%d:%d], 0 offen offset:128 sc0 sc1" % (SRD_D, SRD_D + 3))
        e.salu("s_waitcnt vmcnt(0)")
        e.raw("v_readfirstlane_b32 s15, v2")
        e.salu("s_nop 3")
        e.salu("s_or_b32 s14, s14, s15")
        e.label("f_decided")
        e.raw("v_mov_b32 v2, s14")
        e.raw("v_mov_b32 v3, 0")
        e.raw("ds_write_b32 v3, v2")
        e.salu("s_waitcnt lgkmcnt(0)")
        e.salu("s_mov_b64 exec, -1")
        e.label("f_wait")
        e.salu("s_barrier")
        stamp()
        e.raw("v_mov_b32 v3, 0")
        e.raw("ds_read_b32 v2, v3")
        e.salu("s_waitcnt lgkmcnt(0)")
        e.raw("v_readfirstlane_b32 s14, v2")
        e.raw("v_and_b32 v4, 15, v%d" % vL)
        e.raw("v_lshrrev_b32 v5, 4, v%d" % vL)
        e.raw("v_lshlrev_b32 v5, 6, v5")
        e.raw("v_lshl_add_u32 v4, v4, 11, v5")
        e.label("f_loop")
        e.salu("s_cmp_eq_u32 s14, 0")
        e.salu("s_cbranch_scc1 f_end")
        e.salu("s_ff1_i32_b32 s15, s14")
        e.salu("s_bitset0_b32 s14, s15")
        e.salu("s_lshr_b32 s20, s15, 1")
        e.salu("s_and_b32 s21, s15, 1")
        e.salu("s_lshl_b32 s21, s21, 1")
        e.salu("s_lshr_b32 s22, s%d, 1" % sW)
        e.salu("s_add_u32 s21, s21, s22")
        e.salu("s_and_b32 s22, s%d, 1" % sW)
        e.salu("s_lshl_b32 s25, s13, 5")
        e.salu("s_add_u32 s25, s25, s20")
        e.salu("s_lshl_b32 s25, s25, 15")
        e.salu("s_lshl_b32 s26, s21, 13")
        e.salu("s_add_u32 s25, s25, s26")
        e.salu("s_lshl_b32 s26, s22, 12")
        e.salu("s_add_u32 s25, s25, s26")
        e.salu("s_lshl_b32 s27, s%d, 17" % sRB)
        e.salu("s_lshl_b32 s26, s21, 15")
        e.salu("s_add_u32 s27, s27, s26")
        e.salu("s_lshl_b32 s26, s%d, 10" % sBR)
        e.salu("s_add_u32 s27, s27, s26")
        e.salu("s_lshl_b32 s26, s20, 8")
        e.salu("s_add_u32 s27, s27, s26")
        e.salu("s_lshl_b32 s26, s22, 3")
        e.salu("s_add_u32 s27, s27, s26")
        e.vm = []
        e.last_w = {}
        base = 16
        for hg in range(8):
            for cc in range(4):
                d = base + (hg * 4 + cc) * 4
                e.ins("buffer_load_dwordx4 %s, v%d, %s, s25 offen offset:%d sc1" % (vr(d, 4), vSt, srd(SRD_WS), cc * 1024), "vload", V(vSt), V(d, 4), tag=("p", hg))
            if hg < 7:
                e.salu("s_add_u32 s25, s25, 0x20000")
        for hg in range(1, 8):
            e.wait_vm(("p", hg))
            for cc in range(4):
                for r in range(0, 4, 2):
                    a_ = base + cc * 4 + r
                    b_ = base + (hg * 4 + cc) * 4 + r
                    e.ins("v_pk_add_f32 %s, %s, %s" % (vr(a_, 2), vr(a_, 2), vr(b_, 2)), "valu", V(a_, 2) + V(b_, 2), V(a_, 2))
        for r in range(4):
            d = 8 + (r % 2) * 2
            e.ins("v_cvt_pk_bf16_f32 v%d, v%d, v%d" % (d, base + r, base + 4 + r), "valu", V(base + r) + V(base + 4 + r), V(d))
            e.ins("v_cvt_pk_bf16_f32 v%d, v%d, v%d" % (d + 1, base + 8 + r, base + 12 + r), "valu", V(base + 8 + r) + V(base + 12 + r), V(d + 1))
            e.ins("buffer_store_dwordx2 %s, v4, s[%d:%d], s27 offen offset:%d" % (vr(d, 2), SRD_O, SRD_O + 3, r * 16), "vstore", V(d, 2) + V(4), (), tag="o")
        e.salu("s_waitcnt vmcnt(0)")
        e.salu("s_branch f_loop")
        e.label("f_end")
    if STAMP:
        e.salu("s_waitcnt vmcnt(0)")
        stamp()
        e.salu("s_waitcnt lgkmcnt(0)")
        e.salu("s_cmp_lg_u32 s2, %d" % int(OPT.get("dumpwg", 0)))
        e.salu("s_cbranch_scc1 main_done")
        e.salu("s_mov_b32 s%d, s38" % SRD_X)
        e.salu("s_mov_b32 s%d, s39" % (SRD_X + 1))
        e.salu("s_mov_b32 s%d, 1024" % (SRD_X + 2))
        e.salu("s_lshl_b32 s3, s%d, 6" % sW)
        e.salu("s_add_u32 s3, s3, 512")
        e.raw("v_mov_b32 v2, 0")
        for k in range(1, nst[0]):
            e.salu("s_sub_u32 s13, s%d, s80" % (80 + 2 * k))
            e.raw("v_mov_b32 v3, s13")
            e.raw("buffer_store_dword v3, v2, s[%d:%d], s3 offen offset:%d" % (SRD_X, SRD_X + 3, 4 * (k - 1)))
    e.label("main_done")
    e.salu("s_endpgm")
    return e.lines


def gen_reduce_bf():
    e = Emit()
    e.label("reduce_kernel")
    e.salu("s_cmp_ge_u32 s2, 256")
    e.salu("s_cbranch_scc1 reduce_done")
    e.salu("s_load_dwordx2 s[8:9], s[0:1], 80")
    e.salu("s_load_dwordx2 s[12:13], s[0:1], 96")
    e.ins("v_lshrrev_b32 v2, 6, v0", "valu", V(0), V(2))
    e.ins("v_and_b32 v1, 63, v0", "valu", V(0), V(1))
    e.ins("v_readfirstlane_b32 s7, v2", "rfl", V(2), [("s", 7)])
    e.ins("v_lshlrev_b32 v3, 4, v1", "valu", V(1), V(3))
    e.ins("v_and_b32 v4, 15, v1", "valu", V(1), V(4))
    e.ins("v_lshrrev_b32 v5, 4, v1", "valu", V(1), V(5))
    e.ins("v_lshlrev_b32 v5, 6, v5", "valu", V(5), V(5))
    e.ins("v_lshl_add_u32 v4, v4, 11, v5", "valu", V(4) + V(5), V(4))
    e.salu("s_nop 2")
    e.salu("s_lshl_b32 s3, s2, 2")
    e.salu("s_add_u32 s3, s3, s7")
    e.salu("s_and_b32 s20, s3, 1")
    e.salu("s_lshr_b32 s21, s3, 1")
    e.salu("s_and_b32 s21, s21, 3")
    e.salu("s_lshr_b32 s22, s3, 3")
    e.salu("s_and_b32 s22, s22, 3")
    e.salu("s_lshr_b32 s23, s3, 5")
    e.salu("s_and_b32 s23, s23, 15")
    e.salu("s_lshr_b32 s24, s3, 9")
    e.salu("s_lshl_b32 s25, s24, 4")
    e.salu("s_add_u32 s25, s25, s23")
    e.salu("s_lshl_b32 s25, s25, 5")
    e.salu("s_add_u32 s25, s25, s22")
    e.salu("s_lshl_b32 s25, s25, 14")
    e.salu("s_lshl_b32 s26, s21, 12")
    e.salu("s_add_u32 s25, s25, s26")
    e.salu("s_lshl_b32 s26, s20, 11")
    e.salu("s_add_u32 s25, s25, s26")
    e.salu("s_lshl_b32 s27, s23, 17")
    e.salu("s_lshl_b32 s26, s21, 15")
    e.salu("s_add_u32 s27, s27, s26")
    e.salu("s_lshl_b32 s26, s24, 10")
    e.salu("s_add_u32 s27, s27, s26")
    e.salu("s_lshl_b32 s26, s22, 8")
    e.salu("s_add_u32 s27, s27, s26")
    e.salu("s_lshl_b32 s26, s20, 5")
    e.salu("s_add_u32 s27, s27, s26")
    e.salu("s_mov_b32 s28, 0xffff0000")
    e.salu("s_waitcnt lgkmcnt(0)")
    e.salu("s_mov_b32 s10, 0x200000")
    e.salu("s_mov_b32 s11, 0x00020000")
    e.salu("s_mov_b32 s14, 0x2000000")
    e.salu("s_mov_b32 s15, 0x00020000")
    base = 32
    if BFP == 2:
        e.salu("s_lshl_b32 s29, s24, 4")
        e.salu("s_add_u32 s29, s29, s23")
        e.salu("s_lshl_b32 s29, s29, 5")
        e.salu("s_add_u32 s29, s29, s22")
        e.salu("s_lshl_b32 s29, s29, 8")
        e.salu("s_add_u32 s29, s29, 0x1000000")
        e.ins("v_lshlrev_b32 v6, 2, v1", "valu", V(1), V(6))
    for hg in range(8):
        if BFP == 2:
            e.ins("buffer_load_dword v%d, v6, s[12:15], s29 offen" % (96 + hg), "vload", V(6), V(96 + hg), tag=("p", hg))
            e.salu("s_add_u32 s29, s29, 1024")
        for rr in range(2):
            d = base + (hg * 2 + rr) * 4
            e.ins("buffer_load_dwordx4 %s, v3, s[12:15], s25 offen offset:%d" % (vr(d, 4), rr * 1024), "vload", V(3), V(d, 4), tag=("p", hg))
        if hg < 7:
            e.salu("s_add_u32 s25, s25, 0x10000")
    accb = 8
    if BFP == 2:
        for k in range(16):
            e.ins("v_mov_b32 v%d, 0" % (accb + k), "valu", (), V(accb + k))
    for hg in range(8):
        e.wait_vm(("p", hg))
        for rr in range(2):
            for q in range(4):
                s_ = base + (hg * 2 + rr) * 4 + q
                a0 = accb + rr * 8 + 2 * q
                if BFP == 2:
                    e.ins("v_fma_mix_f32 v%d, v%d, v%d, v%d op_sel_hi:[1,0,0]" % (a0, s_, 96 + hg, a0), "valu", V(s_) + V(96 + hg) + V(a0), V(a0))
                    e.ins("v_fma_mix_f32 v%d, v%d, v%d, v%d op_sel:[1,0,0] op_sel_hi:[1,0,0]" % (a0 + 1, s_, 96 + hg, a0 + 1), "valu", V(s_) + V(96 + hg) + V(a0 + 1), V(a0 + 1))
                elif hg == 0:
                    e.ins("v_lshlrev_b32 v%d, 16, v%d" % (a0, s_), "valu", V(s_), V(a0))
                    e.ins("v_and_b32 v%d, s28, v%d" % (a0 + 1, s_), "valu", V(s_), V(a0 + 1))
                else:
                    e.ins("v_lshlrev_b32 v24, 16, v%d" % s_, "valu", V(s_), V(24))
                    e.ins("v_and_b32 v25, s28, v%d" % s_, "valu", V(s_), V(25))
                    e.ins("v_pk_add_f32 %s, %s, v[24:25]" % (vr(a0, 2), vr(a0, 2)), "valu", V(a0, 2) + V(24, 2), V(a0, 2))
    for rr in range(2):
        d = 24 + rr * 4
        for q in range(4):
            a0 = accb + rr * 8 + 2 * q
            e.ins("v_cvt_pk_bf16_f32 v%d, v%d, v%d" % (d + q, a0, a0 + 1), "valu", V(a0, 2), V(d + q))
        e.ins("buffer_store_dwordx4 %s, v4, s[8:11], s27 offen offset:%d" % (vr(d, 4), rr * 16), "vstore", V(d, 4) + V(4), (), tag="o")
    e.label("reduce_done")
    e.salu("s_endpgm")
    return e.lines


HEADER = """; Fused two-branch attention block: Q-proj + attention + out-proj partials, then a reduce kernel.
; @launch kernel=main_kernel grid=(256,1,1) block=(256,1,1) lds=132096
; @launch kernel=reduce_kernel grid=(256,1,1) block=(256,1,1) lds=0
.amdgcn_target "amdgcn-amd-amdhsa--gfx950"
.text
"""


def main():
    hdr = HEADER
    kernels = [("main_kernel", gen_main()), ("reduce_kernel", gen_reduce_bf() if BFP else gen_reduce())]
    if FUSE:
        hdr = hdr.replace("; @launch kernel=reduce_kernel grid=(256,1,1) block=(256,1,1) lds=0\n", "")
        kernels = kernels[:1]
    rl = OPT.get("rl", "").replace("+", " ")
    ro = OPT.get("ro", "").replace("+", " ")
    if rl or ro:
        nk = []
        for name, lines in kernels:
            if name == "reduce_kernel":
                lines = [(l + " " + rl) if ("buffer_load_dwordx4" in l and rl) else ((l + " " + ro) if ("buffer_store" in l and ro) else l) for l in lines]
            nk.append((name, lines))
        kernels = nk
    out = [hdr]
    for name, lines in kernels:
        out.append(".globl %s\n.p2align 8\n.type %s,@function\n" % (name, name))
        out.append("\n".join(lines) + "\n")
    out.append('.section .rodata,"a"\n')
    out.append(kd("main_kernel", 512, 102, 256))
    if not FUSE:
        out.append(kd("reduce_kernel", 144, 32, 144))
    text = "".join(out)
    path = sys.argv[1] if len(sys.argv) > 1 else "cdna_kernels/%s.s" % NAME
    open(path, "w").write(text)
    print("wrote", path, len(text), "bytes")


if __name__ == "__main__":
    main()
```

```python
import struct, sys
from gen import Emit, V, A, vr, ar, f32bits, NAME, gen_reduce, kd

STAMP = len(sys.argv) > 2 and sys.argv[2] == "stamp"
OPT = dict(a.split("=") for a in sys.argv[3:])
TOUCH = int(OPT.get("touch", 1))
KVNT = int(OPT.get("kvnt", 1))
PRE = int(OPT.get("pre", 2))
NOKV = int(OPT.get("nokv", 0))
KVALL = int(OPT.get("kvall", 0))
STAG = int(OPT.get("stag", 0))
LATE = int(OPT.get("late", 0))
G4 = int(OPT.get("g4", 0))
KLDS = int(OPT.get("klds", 0))
FUSE = int(OPT.get("fuse", 0))
NOW = int(OPT.get("now", 0))
XQ = int(OPT.get("xq", 0))
XR = int(OPT.get("xr", 0))
KDMA = int(OPT.get("kdma", 0))
HALF = int(OPT.get("half", 0))
KP = [int(c) for c in OPT.get("kp", "01")]
ILP = int(OPT.get("ilp", 0))
MZ = int(OPT.get("mz", 0))
VO = int(OPT.get("vo", 0))
TLB = int(OPT.get("tlb", 0))
BFP = int(OPT.get("bfp", 0))
DIAG = OPT.get("diag", "")
SPIN = int(OPT.get("spin", 4000))
PBAR = int(OPT.get("pbar", 0))
STAGBIT = int(OPT.get("stagbit", 4))
ETOUCH = int(OPT.get("etouch", 0))
WOQ = int(OPT.get("woq", 0))
WNT = " nt" if int(OPT.get("wnt", 0)) else ""
XNT = " nt" if int(OPT.get("xnt", 0)) else ""
STF = OPT.get("stf", "").replace("+", " ")
STF = (" " + STF) if STF else ""
TNT = " nt" if int(OPT.get("tnt", 0)) else ""

D = 4
vL = 1
vWC = 2
vXr = 10
vK = 14
vV = 15
vRAW = 16
vFRAG = 144
vVRAW = 176
vOw = 240
vSt = 244
vT = 245

aACC = 0
aXF = 128
aKF = 160
aS = 224

sBR, sHG, sRB, sW = 4, 5, 6, 7
SRD_X, SRD_K, SRD_V, SRD_WQ, SRD_WO, SRD_WS, SRD_WC = 40, 44, 48, 52, 56, 60, 64
sWCo, sWCinc = 68, 69
sKV = 70
sSelLo, sSelHi = 74, 75
sSt = 76
sScale, sLog2e, sMask = 77, 78, 79
sXo = 8
sH = 9
sIt = 10
sWOo = 11
sR8 = 12
LDS_O = 65536


def srd(n):
    return "s[%d:%d]" % (n, n + 3)


def acc(rb, c):
    return aACC + (rb * 8 + c) * 4


def gen_main():
    e = Emit()
    nst = [0]

    def stamp():
        if not STAMP:
            return
        e.salu("s_memtime s[%d:%d]" % (80 + 2 * nst[0], 81 + 2 * nst[0]))
        nst[0] += 1

    e.label("main_kernel")
    e.salu("s_cmp_ge_u32 s2, 256")
    e.salu("s_cbranch_scc1 main_done")
    stamp()
    e.salu("s_load_dwordx16 s[16:31], s[0:1], 0")
    e.salu("s_load_dwordx4 s[32:35], s[0:1], 64")
    e.salu("s_load_dwordx2 s[36:37], s[0:1], 96")
    if STAMP or FUSE:
        e.salu("s_load_dwordx2 s[38:39], s[0:1], 88")
    if FUSE:
        e.salu("s_load_dwordx2 s[98:99], s[0:1], 80")
    e.ins("v_lshrrev_b32 v2, 6, v0", "valu", V(0), V(2))
    e.ins("v_and_b32 v%d, 63, v0" % vL, "valu", V(0), V(vL))
    e.ins("v_readfirstlane_b32 s%d, v2" % sW, "rfl", V(2), [("s", sW)])
    e.salu("s_and_b32 s3, s2, 7")
    e.salu("s_lshr_b32 s13, s2, 3")
    e.salu("s_lshr_b32 s%d, s3, 2" % sBR)
    e.salu("s_and_b32 s%d, s3, 3" % sHG)
    e.salu("s_lshl_b32 s%d, s%d, 1" % (sHG, sHG))
    e.salu("s_and_b32 s14, s13, 1")
    e.salu("s_or_b32 s%d, s%d, s14" % (sHG, sHG))
    e.salu("s_lshr_b32 s%d, s13, 1" % sRB)
    e.salu("s_lshr_b32 s12, s2, %d" % int(OPT.get("g4bit", 4)))
    e.salu("s_and_b32 s12, s12, 3")
    e.salu("s_mov_b32 s%d, 0x05040100" % sSelLo)
    e.salu("s_mov_b32 s%d, 0x07060302" % sSelHi)
    e.salu("s_mov_b32 s%d, 0x%08x" % (sScale, f32bits(128 ** -0.5)))
    e.salu("s_mov_b32 s%d, 0x%08x" % (sLog2e, f32bits(1.4426950408889634)))
    e.salu("s_mov_b32 s%d, 0xffff0000" % sMask)
    ti, tg, tt, t3 = vT, vT + 1, vT + 2, vT + 3
    e.ins("v_and_b32 v%d, 15, v%d" % (ti, vL), "valu", V(vL), V(ti))
    e.ins("v_lshrrev_b32 v%d, 4, v%d" % (tg, vL), "valu", V(vL), V(tg))
    e.ins("v_lshlrev_b32 v%d, 4, v%d" % (tt, ti), "valu", V(ti), V(tt))
    e.ins("v_lshl_add_u32 v%d, v%d, 16, v%d" % (vWC, tg, tt), "valu", V(tg) + V(tt), V(vWC))
    for j in range(1, 8):
        e.ins("v_add_u32 v%d, 0x%x, v%d" % (vWC + j, j * 8192, vWC), "valu", V(vWC), V(vWC + j))
    e.ins("v_lshlrev_b32 v%d, 8, v%d" % (vK, ti), "valu", V(ti), V(vK))
    e.ins("v_lshl_add_u32 v%d, v%d, 6, v%d" % (vK, tg, vK), "valu", V(tg) + V(vK), V(vK))
    e.ins("v_lshl_add_u32 v%d, v%d, 10, v%d" % (vV, tg, tt), "valu", V(tg) + V(tt), V(vV))
    e.ins("v_lshlrev_b32 v%d, 4, v%d" % (vSt, vL), "valu", V(vL), V(vSt))
    for slo in range(4):
        e.ins("v_add_u32 v%d, %d, v%d" % (t3, 4 * slo, tg), "valu", V(tg), V(t3))
        e.ins("v_xor_b32 v%d, v%d, v%d" % (t3, t3, ti), "valu", V(t3) + V(ti), V(t3))
        e.ins("v_lshlrev_b32 v%d, 4, v%d" % (t3, t3), "valu", V(t3), V(t3))
        e.ins("v_lshl_add_u32 v%d, v%d, 10, v%d" % (vXr + slo, ti, t3), "valu", V(ti) + V(t3), V(vXr + slo))
    tq, to = vT + 4, vT + 5
    e.ins("v_lshrrev_b32 v%d, 3, v%d" % (tq, vL), "valu", V(vL), V(tq))
    e.ins("v_and_b32 v%d, 7, v%d" % (t3, vL), "valu", V(vL), V(t3))
    e.ins("v_lshlrev_b32 v%d, 7, v%d" % (t3, t3), "valu", V(t3), V(t3))
    e.ins("v_lshl_add_u32 v%d, v%d, 13, v%d" % (tq, tq, t3), "valu", V(tq) + V(t3), V(tq))
    e.ins("v_lshlrev_b32 v%d, 7, v%d" % (to, vL), "valu", V(vL), V(to))
    e.salu("s_waitcnt lgkmcnt(0)")
    e.salu("s_cmp_eq_u32 s%d, 0" % sBR)
    e.salu("s_cselect_b64 s[%d:%d], s[16:17], s[26:27]" % (SRD_X, SRD_X + 1))
    e.salu("s_cselect_b64 s[%d:%d], s[18:19], s[28:29]" % (SRD_K, SRD_K + 1))
    e.salu("s_cselect_b64 s[%d:%d], s[20:21], s[30:31]" % (SRD_V, SRD_V + 1))
    e.salu("s_cselect_b64 s[%d:%d], s[22:23], s[32:33]" % (SRD_WQ, SRD_WQ + 1))
    e.salu("s_cselect_b64 s[%d:%d], s[24:25], s[34:35]" % (SRD_WO, SRD_WO + 1))
    e.salu("s_cselect_b64 s[%d:%d], s[22:23], s[32:33]" % (SRD_WC, SRD_WC + 1))
    e.salu("s_mov_b64 s[%d:%d], s[36:37]" % (SRD_WS, SRD_WS + 1))
    for base, size in ((SRD_X, 1 << 20), (SRD_K, 8 << 20), (SRD_V, 8 << 20), (SRD_WQ, 4 << 20), (SRD_WO, 4 << 20), (SRD_WS, 32 << 20), (SRD_WC, 4 << 20)):
        e.salu("s_mov_b32 s%d, 0x%x" % (base + 2, size))
        e.salu("s_mov_b32 s%d, 0x00020000" % (base + 3))
    if NOW:
        e.salu("s_mov_b32 s%d, 0" % (SRD_WC + 2))
    e.salu("s_lshl_b32 s%d, s%d, 2" % (sH, sHG))
    e.salu("s_add_u32 s%d, s%d, s%d" % (sH, sH, sW))
    e.salu("s_lshl_b32 s%d, s%d, 8" % (sWCo, sH))
    e.salu("s_mov_b32 s%d, 0x40000" % sWCinc)
    e.salu("s_lshl_b32 s%d, s%d, 19" % (sWOo, sHG))
    e.salu("s_lshl_b32 s3, s%d, 8" % sW)
    e.salu("s_add_u32 s%d, s%d, s3" % (sWOo, sWOo))
    e.salu("s_lshl_b32 s3, s%d, 6" % sRB)
    e.salu("s_add_u32 s3, s3, s%d" % sH)
    e.salu("s_lshl_b32 s%d, s3, 13" % sKV)
    e.salu("s_add_u32 s%d, s%d, 0x1000" % (sKV + 1, sKV))
    e.salu("s_add_u32 s%d, s%d, 0x40000" % (sKV + 2, sKV))
    e.salu("s_add_u32 s%d, s%d, 0x41000" % (sKV + 3, sKV))
    e.salu("s_lshl_b32 s%d, s%d, 16" % (sXo, sRB))
    e.salu("s_lshl_b32 s3, s%d, 14" % sW)
    e.salu("s_add_u32 s%d, s%d, s3" % (sXo, sXo))
    e.salu("s_lshl_b32 s3, s%d, 4" % sBR)
    e.salu("s_add_u32 s3, s3, s%d" % sRB)
    e.salu("s_lshl_b32 s3, s3, 3")
    e.salu("s_add_u32 s3, s3, s%d" % sHG)
    e.salu("s_lshl_b32 s3, s3, 2")
    e.salu("s_add_u32 s3, s3, s%d" % sW)
    e.salu("s_lshl_b32 s%d, s3, 15" % sSt)
    e.salu("s_lshl_b32 s13, s%d, 2" % sRB)
    e.salu("s_add_u32 s13, s13, s%d" % sW)
    e.salu("s_lshl_b32 s14, s13, 16")
    e.salu("s_lshl_b32 s3, s%d, 10" % sHG)
    e.salu("s_add_u32 s14, s14, s3")
    if WOQ:
        e.salu("s_mov_b64 s[%d:%d], s[%d:%d]" % (SRD_WC, SRD_WC + 1, SRD_WO, SRD_WO + 1))
        e.salu("s_mov_b32 s%d, s%d" % (sWCo, sWOo))
        e.salu("s_mov_b32 s%d, 0x8000" % sWCinc)
        e.ins("v_lshl_add_u32 v%d, v%d, 13, v%d" % (vWC, tg, tt), "valu", V(tg) + V(tt), V(vWC))
        for j in range(1, 8):
            e.ins("v_add_u32 v%d, 0x%x, v%d" % (vWC + j, j * 1024, vWC), "valu", V(vWC), V(vWC + j))
    if ETOUCH:
        e.ins("buffer_load_dword v%d, v%d, %s, s14 offen%s" % (vT + 6, tq, srd(SRD_WQ), TNT), "vload", V(tq), V(vT + 6), tag="touch")
    if TLB:
        tz = vT + 10
        e.ins("v_mov_b32 v%d, 0" % tz, "valu", (), V(tz))
        k = 0
        for srdn, so in ((SRD_K, sKV), (SRD_K, sKV + 2), (SRD_V, sKV), (SRD_V, sKV + 2), (SRD_WO, sWOo), (SRD_WS, sSt)):
            e.ins("buffer_load_dword v%d, v%d, %s, s%d offen" % (vFRAG + k, tz, srd(srdn), so), "vload", V(tz), V(vFRAG + k), tag="tlb")
            k += 1
    xa = vOw
    xv = vT + 9
    def xq_load(q):
        for n in range(4):
            d = vVRAW + q * 16 + n * 4
            e.salu("s_add_u32 s3, s%d, %d" % (sXo, n * 4096))
            e.ins("buffer_load_dwordx4 %s, v%d, %s, s3 offen offset:%d%s" % (vr(d, 4), xv, srd(SRD_X), q * 256, XNT),
                  "vload", V(xv), V(d, 4), tag=("x", q))
    def xq_write(q):
        e.wait_vm(("x", q))
        for n in range(4):
            d = vVRAW + q * 16 + n * 4
            e.ins("ds_write_b128 v%d, %s offset:%d" % (xa + n, vr(d, 4), n * 4096 + q * 256), "dswrite", V(xa + n) + V(d, 4), (), tag="xw")
    if XQ:
        e.ins("v_lshl_add_u32 v%d, v%d, 10, v%d" % (xv, tg, tt), "valu", V(tg) + V(tt), V(xv))
        e.ins("v_xor_b32 v%d, v%d, v%d" % (t3, ti, tg), "valu", V(ti) + V(tg), V(t3))
        e.ins("v_lshlrev_b32 v%d, 4, v%d" % (t3, t3), "valu", V(t3), V(t3))
        e.ins("v_lshl_add_u32 v%d, v%d, 10, v%d" % (t3, tg, t3), "valu", V(tg) + V(t3), V(t3))
        e.salu("s_lshl_b32 s3, s%d, 14" % sW)
        e.ins("v_add_u32 v%d, s3, v%d" % (xa, t3), "valu", V(t3), V(xa))
        for n in range(1, 4):
            e.ins("v_xor_b32 v%d, %d, v%d" % (xa + n, n * 64, xa), "valu", V(xa), V(xa + n))
        xq_load(0)
        xq_load(1)
    else:
      for r in range(16):
        if r and r % 4 == 0:
            e.salu("s_add_u32 s%d, s%d, 0x1000" % (sXo, sXo))
        d = vVRAW + 4 * r
        e.ins("buffer_load_dwordx4 %s, v%d, %s, s%d offen offset:%d%s" % (vr(d, 4), vSt, srd(SRD_X), sXo, (r % 4) * 1024, XNT),
              "vload", V(vSt), V(d, 4), tag="x")

    def wloads(t):
        out = []
        buf = vRAW + (t % D) * 32
        for j in range(8):
            d = buf + 4 * j
            def f(d=d, j=j):
                e.ins("buffer_load_dwordx4 %s, v%d, %s, s%d offen%s" % (vr(d, 4), vWC + j, srd(SRD_WC), sWCo, WNT),
                      "vload", V(vWC + j), V(d, 4), tag=("w", t))
            out.append(f)
        out.append(lambda: e.salu("s_add_u32 s%d, s%d, s%d" % (sWCo, sWCo, sWCinc)))
        return out

    for t in range(PRE):
        for f in wloads(t):
            f()
    if XQ:
        xq_load(2)
        xq_load(3)

    nt = " nt" if KVNT else ""

    def kv_burst(idx):
        if NOKV:
            return
        bb, isv = idx // 2, idx % 2
        if KDMA and not isv:
            kb0 = vT + 4
            kb0 = vT + 6
            ki_, kg_ = vT, vT + 1
            e.ins("v_and_b32 v%d, 15, v%d" % (ki_, vL), "valu", V(vL), V(ki_))
            e.ins("v_lshrrev_b32 v%d, 4, v%d" % (kg_, vL), "valu", V(vL), V(kg_))
            e.ins("v_xor_b32 v%d, v%d, v%d" % (ki_, ki_, kg_), "valu", V(ki_) + V(kg_), V(ki_))
            e.ins("v_lshlrev_b32 v%d, 4, v%d" % (ki_, ki_), "valu", V(ki_), V(ki_))
            e.ins("v_lshl_add_u32 v%d, v%d, 8, v%d" % (kb0, kg_, ki_), "valu", V(kg_) + V(ki_), V(kb0))
            for q in range(1, 4):
                e.ins("v_xor_b32 v%d, %d, v%d" % (kb0 + q, q * 64, kb0), "valu", V(kb0), V(kb0 + q))
            e.salu("s_lshl_b32 s15, s%d, 14" % sW)
            e.salu("s_add_u32 s15, s15, 0x%x" % (LDS_O + bb * 8192))
            for n in range(8):
                e.salu("s_add_u32 s3, s%d, %d" % (sKV + bb * 2, n * 1024))
                e.salu("s_mov_b32 m0, s15")
                e.salu("s_add_u32 s15, s15, 1024")
                e.ins("buffer_load_dwordx4 v%d, %s, s3 offen%s lds" % (kb0 + n % 4, srd(SRD_K), nt), "vload", V(kb0 + n % 4), (), tag=("kv", bb, 0))
            return
        for n in range(8):
            if not isv:
                kt, sp = n // 4, n % 4
                d = aKF + bb * 32 + (kt * 4 + sp) * 4
                e.ins("buffer_load_dwordx4 %s, v%d, %s, s%d offen offset:%d%s" % (ar(d, 4), vK, srd(SRD_K), sKV + bb * 2 + kt, sp * 16, nt),
                      "vload", V(vK), A(d, 4), tag=("kv", bb, 0))
            else:
                d = vVRAW + bb * 32 + n * 4
                e.ins("buffer_load_dwordx4 %s, v%d, %s, s%d offen offset:%d%s" % (vr(d, 4), vV, srd(SRD_V), sKV + bb * 2 + n // 4, (n % 4) * 256, nt),
                      "vload", V(vV), V(d, 4), tag=("kv", bb, 1))

    def zero_acc():
        if MZ:
            z = vT + 4
            z = vFRAG
            for k in range(4):
                e.ins("v_mov_b32 v%d, 0" % (z + k), "valu", (), V(z + k))
            for k in range(32):
                e.ins("v_mfma_f32_16x16x32_bf16 %s, %s, %s, 0" % (ar(aACC + 4 * k, 4), vr(z, 4), vr(z, 4)), "mfma", V(z, 4), A(aACC + 4 * k, 4))
        else:
            for k in range(128):
                e.ins("v_accvgpr_write_b32 a%d, 0" % (aACC + k), "valu", (), A(aACC + k))
    zero_acc()
    if XQ:
        xq_write(0)
        xq_write(1)
        stamp()
    else:
        tb = vT + 8
        e.ins("v_mov_b32 v%d, s%d" % (tb, sW), "valu", [("s", sW)], V(tb))
        e.ins("v_lshlrev_b32 v%d, 14, v%d" % (tb, tb), "valu", V(tb), V(tb))
        e.wait_vm("x")
        stamp()
        for r in range(16):
            ta = vT + 9 + (r % 2)
            e.ins("v_xor_b32 v%d, %d, v%d" % (ta, r, vL), "valu", V(vL), V(ta))
            e.ins("v_lshl_add_u32 v%d, v%d, 4, v%d" % (ta, ta, tb), "valu", V(ta) + V(tb), V(ta))
            d = vVRAW + 4 * r
            e.ins("ds_write_b128 v%d, %s offset:%d" % (ta, vr(d, 4), r * 1024), "dswrite", V(ta) + V(d, 4), (), tag="xw")
    if PBAR:
        e.wait_lgkm()
        e.salu("s_barrier")
    for t in range(PRE, D):
        for f in wloads(t):
            f()
    if TOUCH and not ETOUCH:
        e.ins("buffer_load_dword v%d, v%d, %s, s14 offen%s" % (vT + 6, tq, srd(SRD_WQ), TNT), "vload", V(tq), V(vT + 6), tag="touch")
    e.salu("s_lshl_b32 s14, s%d, 19" % sHG)
    e.salu("s_lshl_b32 s3, s13, 13")
    e.salu("s_add_u32 s14, s14, s3")
    if not PBAR:
        e.wait_lgkm()
        e.salu("s_barrier")
    if STAG:
        e.salu("s_bitcmp1_b32 s2, %d" % STAGBIT)
        e.salu("s_cbranch_scc1 skip_early_kv")
        for i in range(4):
            kv_burst(i)
        e.label("skip_early_kv")
    elif not LATE:
        if not (HALF and KP[0] != 0):
            kv_burst(0)
        if KVALL:
            kv_burst(1)
            kv_burst(2)
            kv_burst(3)
    stamp()

    def xf_read(u, rb):
        d = aXF + (u % 2) * 16 + rb * 4
        off = rb * 16384 + (256 if u == 4 else 0)
        e.ins("ds_read_b128 %s, v%d offset:%d" % (ar(d, 4), vXr + (u % 4), off), "dsread", V(vXr + (u % 4)), A(d, 4), tag=("xf", u % 4))

    def perm(t, c, p):
        buf = vRAW + (t % D) * 32
        s0 = buf + 4 * (2 * p + 1) + (c >> 1)
        s1 = buf + 4 * (2 * p) + (c >> 1)
        dd = vFRAG + c * 4 + p
        sel = sSelHi if (c & 1) else sSelLo
        e.ins("v_perm_b32 v%d, v%d, v%d, s%d" % (dd, s0, s1, sel), "valu", V(s0) + V(s1), V(dd))

    def phase_entry():
        for rb in range(4):
            xf_read(0, rb)
        e.wait_vm(("w", 0))
        for c in range(8):
            for p in range(4):
                perm(0, c, p)

    def loop_body():
        for u in range(4):
            e.comment("step %d" % u)
            e.wait_lgkm(("xf", u))
            if VO and u == 2:
                e.salu("s_cmp_eq_u32 s%d, 3" % sIt)
                e.salu("s_cselect_b32 s%d, 0, s%d" % (SRD_WC + 2, SRD_WC + 2))
            wl = wloads(u + D)
            m = 0
            for c in range(8):
                for rb in range(4):
                    ac = acc(rb, c)
                    xf = aXF + (u % 2) * 16 + rb * 4
                    e.ins("v_mfma_f32_16x16x32_bf16 %s, %s, %s, %s" % (ar(ac, 4), vr(vFRAG + c * 4, 4), ar(xf, 4), ar(ac, 4)), "mfma",
                          V(vFRAG + c * 4, 4) + A(xf, 4) + A(ac, 4), A(ac, 4), creads=A(ac, 4))
                    if c == 0 and "L" not in DIAG:
                        wl[2 * rb]()
                        wl[2 * rb + 1]()
                        if rb == 3:
                            wl[8]()
                            e.wait_vm(("w", u + 1))
                    if c >= 1 and "P" not in DIAG:
                        perm(u + 1, c - 1, rb)
                    if c == 2 and "X" not in DIAG:
                        xf_read(u + 1, rb)
                    m += 1
            for p in range(4):
                if "P" not in DIAG:
                    perm(u + 1, 7, p)
        for slo in range(4):
            e.ins("v_add_u32 v%d, 0x100, v%d" % (vXr + slo, vXr + slo), "valu", V(vXr + slo), V(vXr + slo))

    e.salu("s_mov_b32 s%d, 0" % sIt)
    phase_entry()
    e.label("gemm_loop")
    e.vm = [("w", 1)] * 8 + [("w", 2)] * 8 + [("w", 3)] * 8
    e.lgkm = [("xf", 0)] * 4
    e.last_w = {}
    e.nop(2)
    loop_body()
    e.salu("s_add_u32 s%d, s%d, 1" % (sIt, sIt))
    e.salu("s_cmp_eq_u32 s%d, 4" % sIt)
    e.salu("s_cbranch_scc1 attention")
    e.salu("s_cmp_eq_u32 s%d, 8" % sIt)
    e.salu("s_cbranch_scc1 epilogue")
    e.salu("s_cmp_eq_u32 s%d, 7" % sIt)
    e.salu("s_cbranch_scc1 it7")
    e.salu("s_cmp_gt_u32 s%d, 4" % sIt)
    e.salu("s_cbranch_scc1 gemm_loop")
    e.salu("s_cmp_eq_u32 s%d, 2" % sIt)
    e.salu("s_cbranch_scc1 it2")
    e.salu("s_cmp_eq_u32 s%d, 3" % sIt)
    e.salu("s_cbranch_scc1 it3")
    e.label("it1")
    if not FUSE:
        stamp()
    if XQ:
        e.lgkm = [("xf", 0)] * 4
        for n in range(4):
            d = vVRAW + 2 * 16 + n * 4
            e.ins("ds_write_b128 v%d, %s offset:%d" % (xa + n, vr(d, 4), n * 4096 + 2 * 256), "dswrite", V(xa + n) + V(d, 4), (), tag="xw")
        e.wait_lgkm()
        e.salu("s_barrier")
    if G4:
        e.salu("s_cmp_lg_u32 s12, 1")
        e.salu("s_cbranch_scc1 g4skip1")
        for i in range(4):
            kv_burst(i)
        e.label("g4skip1")
    if HALF == 1:
        if KP[0] == 1:
            kv_burst(0)
        if KP[1] == 1:
            kv_burst(1)
    elif not KVALL and not STAG and not LATE and HALF != 2:
        kv_burst(1)
    if TOUCH:
        e.ins("buffer_load_dword v%d, v%d, %s, s14 offen%s" % (vT + 6, to, srd(SRD_WO), TNT), "vload", V(to), V(vT + 6), tag="touch")
    e.salu("s_branch gemm_loop")
    e.label("it2")
    if XR:
        e.salu("s_mov_b32 s%d, 0x10000000" % (SRD_WS + 2))
        e.salu("s_lshl_b32 s3, s2, 2")
        e.salu("s_add_u32 s3, s3, s%d" % sW)
        e.salu("s_lshl_b32 s3, s3, 14")
        e.salu("s_add_u32 s3, s3, 0x4000000")
        for k in range(16):
            e.raw("buffer_load_dwordx4 a[224:227], v%d, s[%d:%d], s3 offen" % (vSt, SRD_WS, SRD_WS + 3))
            e.salu("s_add_u32 s3, s3, 1024")
    if not FUSE:
        stamp()
    if XQ:
        e.lgkm = [("xf", 0)] * 4
        for n in range(4):
            d = vVRAW + 3 * 16 + n * 4
            e.ins("ds_write_b128 v%d, %s offset:%d" % (xa + n, vr(d, 4), n * 4096 + 3 * 256), "dswrite", V(xa + n) + V(d, 4), (), tag="xw")
        e.wait_lgkm()
        e.salu("s_barrier")
    if G4:
        e.salu("s_cmp_lg_u32 s12, 2")
        e.salu("s_cbranch_scc1 g4skip2")
        for i in range(4):
            kv_burst(i)
        e.label("g4skip2")
    if HALF == 1:
        if KP[0] == 2:
            kv_burst(0)
        if KP[1] == 2:
            kv_burst(1)
    if not KVALL and not STAG and not LATE and not HALF:
        kv_burst(2)
    e.salu("s_branch gemm_loop")
    e.label("it3")
    if not FUSE:
        stamp()
    if G4:
        e.salu("s_cmp_lg_u32 s12, 3")
        e.salu("s_cbranch_scc1 g4skip3")
        for i in range(4):
            kv_burst(i)
        e.label("g4skip3")
    if HALF == 1:
        if KP[0] == 3:
            kv_burst(0)
        if KP[1] == 3:
            kv_burst(1)
    if not KVALL and not STAG and not LATE and not HALF:
        kv_burst(3)
    if LATE == 2:
        for i in range(4):
            kv_burst(i)
    e.salu("s_mov_b64 s[%d:%d], s[%d:%d]" % (SRD_WC, SRD_WC + 1, SRD_WO, SRD_WO + 1))
    e.salu("s_mov_b32 s%d, s%d" % (sWCo, sWOo))
    e.salu("s_mov_b32 s%d, 0x8000" % sWCinc)
    e.ins("v_and_b32 v%d, 15, v%d" % (ti, vL), "valu", V(vL), V(ti))
    e.ins("v_lshrrev_b32 v%d, 4, v%d" % (tg, vL), "valu", V(vL), V(tg))
    e.ins("v_lshlrev_b32 v%d, 4, v%d" % (tt, ti), "valu", V(ti), V(tt))
    e.ins("v_lshl_add_u32 v%d, v%d, 13, v%d" % (vWC, tg, tt), "valu", V(tg) + V(tt), V(vWC))
    for j in range(1, 8):
        e.ins("v_add_u32 v%d, 0x%x, v%d" % (vWC + j, j * 1024, vWC), "valu", V(vWC), V(vWC + j))
    e.salu("s_branch gemm_loop")
    e.label("it7")
    e.salu("s_mov_b32 s%d, 0" % (SRD_WC + 2))
    e.salu("s_branch gemm_loop")

    e.label("attention")
    stamp()
    e.last_w = {}
    e.nop(10)
    e.vm = [("w", 1)] * 8 + [("w", 2)] * 8 + [("w", 3)] * 8
    e.lgkm = [("xf", 0)] * 4
    e.wait_lgkm()
    if HALF:
        e.salu("s_waitcnt vmcnt(0)")
        e.vm = []
        if HALF == 2:
            kv_burst(1)
        kv_burst(2)
        kv_burst(3)
    if KDMA:
        e.salu("s_lshl_b32 s3, s%d, 14" % sW)
        e.salu("s_add_u32 s3, s3, 0x%x" % LDS_O)
        ki, kg = vT + 8, vT + 9
        e.ins("v_and_b32 v%d, 15, v%d" % (ki, vL), "valu", V(vL), V(ki))
        e.ins("v_lshrrev_b32 v%d, 4, v%d" % (kg, vL), "valu", V(vL), V(kg))
        for sp in range(4):
            ka = vT + 4 + (sp % 2)
            e.ins("v_lshl_add_u32 v%d, v%d, 2, %d" % (ka, kg, sp), "valu", V(kg), V(ka))
            e.ins("v_xor_b32 v%d, v%d, v%d" % (ka, ka, ki), "valu", V(ka) + V(ki), V(ka))
            e.ins("v_lshlrev_b32 v%d, 4, v%d" % (ka, ka), "valu", V(ka), V(ka))
            e.ins("v_lshl_add_u32 v%d, v%d, 8, v%d" % (ka, ki, ka), "valu", V(ki) + V(ka), V(ka))
            e.ins("v_add_u32 v%d, s3, v%d" % (ka, ka), "valu", V(ka), V(ka))
            for bb in range(2):
                for kt in range(2):
                    d = aKF + bb * 32 + (kt * 4 + sp) * 4
                    e.ins("ds_read_b128 %s, v%d offset:%d" % (ar(d, 4), ka, bb * 8192 + kt * 4096), "dsread", V(ka), A(d, 4), tag="kf")
        e.wait_lgkm()
        e.salu("s_barrier")
    if KLDS:
        e.salu("s_barrier")
        kb0 = vT + 4
        e.ins("v_and_b32 v%d, 15, v%d" % (ti, vL), "valu", V(vL), V(ti))
        e.ins("v_lshrrev_b32 v%d, 4, v%d" % (tg, vL), "valu", V(vL), V(tg))
        e.ins("v_xor_b32 v%d, v%d, v%d" % (t3, ti, tg), "valu", V(ti) + V(tg), V(t3))
        e.ins("v_lshlrev_b32 v%d, 4, v%d" % (t3, t3), "valu", V(t3), V(t3))
        e.ins("v_lshl_add_u32 v%d, v%d, 8, v%d" % (kb0, tg, t3), "valu", V(tg) + V(t3), V(kb0))
        for q in range(1, 4):
            e.ins("v_xor_b32 v%d, %d, v%d" % (kb0 + q, q * 64, kb0), "valu", V(kb0), V(kb0 + q))
        e.salu("s_lshl_b32 s13, s%d, 14" % sW)
        for bb in range(2):
            for n in range(8):
                e.salu("s_add_u32 s14, s13, %d" % (bb * 8192 + n * 1024))
                e.salu("s_add_u32 s3, s%d, %d" % (sKV + bb * 2, n * 1024))
                e.salu("s_mov_b32 m0, s14")
                e.salu("s_nop 0")
                e.ins("buffer_load_dwordx4 v%d, %s, s3 offen%s lds" % (kb0 + n % 4, srd(SRD_K), nt), "vload", V(kb0 + n % 4), (), tag=("kv", bb, 0))
            kv_burst(2 * bb + 1)
    elif LATE == 1:
        if G4:
            e.salu("s_cmp_lg_u32 s12, 0")
            e.salu("s_cbranch_scc1 g4skip0")
        for i in range(4):
            kv_burst(i)
        if G4:
            e.label("g4skip0")
    if STAG:
        e.salu("s_bitcmp1_b32 s2, %d" % STAGBIT)
        e.salu("s_cbranch_scc0 skip_late_kv")
        for i in range(4):
            kv_burst(i)
        e.salu("s_waitcnt vmcnt(0)")
        e.label("skip_late_kv")
        e.vm = []
    e.ins("v_and_b32 v%d, 15, v%d" % (ti, vL), "valu", V(vL), V(ti))
    e.ins("v_lshrrev_b32 v%d, 4, v%d" % (tg, vL), "valu", V(vL), V(tg))
    e.salu("s_lshl_b32 s3, s%d, 8" % sW)
    e.salu("s_add_u32 s3, s3, 0x%x" % LDS_O)
    for r in range(4):
        e.ins("v_lshl_add_u32 v%d, v%d, 2, %d" % (t3, tg, r), "valu", V(tg), V(t3))
        e.ins("v_xor_b32 v%d, v%d, v%d" % (t3, t3, ti), "valu", V(t3) + V(ti), V(t3))
        e.ins("v_lshlrev_b32 v%d, 4, v%d" % (t3, t3), "valu", V(t3), V(t3))
        e.ins("v_lshl_add_u32 v%d, v%d, 10, v%d" % (t3, ti, t3), "valu", V(ti) + V(t3), V(t3))
        e.ins("v_add_u32 v%d, s3, v%d" % (vOw + r, t3), "valu", V(t3), V(vOw + r))
    for slo in range(4):
        e.ins("v_add_u32 v%d, 0x%x, v%d" % (vXr + slo, LDS_O - 1024, vXr + slo), "valu", V(vXr + slo), V(vXr + slo))
    if ILP:
        QF = vFRAG
        def pack8(aregs, dq):
            for k in range(8):
                e.ins("v_accvgpr_read_b32 v%d, a%d" % (vT + k, aregs[k]), "valu", A(aregs[k]), V(vT + k))
            for p in range(4):
                e.ins("v_cvt_pk_bf16_f32 v%d, v%d, v%d" % (dq + p, vT + 2 * p, vT + 2 * p + 1), "valu", V(vT + 2 * p) + V(vT + 2 * p + 1), V(dq + p))
        def softmax_stream(vals, PFq, T):
            L = []
            def I(text, kind, r, w):
                L.append((text, kind, r, w))
            for rnd in range(2):
                for k in range(0, 8, 2):
                    I("v_cvt_pk_bf16_f32 v%d, v%d, v%d" % (T + k // 2, vals[k], vals[k + 1]), "valu", V(vals[k]) + V(vals[k + 1]), V(T + k // 2))
                for k in range(0, 8, 2):
                    I("v_lshlrev_b32 v%d, 16, v%d" % (vals[k], T + k // 2), "valu", V(T + k // 2), V(vals[k]))
                    I("v_and_b32 v%d, s%d, v%d" % (vals[k + 1], sMask, T + k // 2), "valu", V(T + k // 2), V(vals[k + 1]))
                if rnd == 0:
                    for x in vals:
                        I("v_mul_f32 v%d, s%d, v%d" % (x, sScale, x), "valu", V(x), V(x))
            mx, m2 = T, T + 1
            I("v_max3_f32 v%d, v%d, v%d, v%d" % (mx, vals[0], vals[1], vals[2]), "valu", V(vals[0]) + V(vals[1]) + V(vals[2]), V(mx))
            I("v_max3_f32 v%d, v%d, v%d, v%d" % (m2, vals[3], vals[4], vals[5]), "valu", V(vals[3]) + V(vals[4]) + V(vals[5]), V(m2))
            I("v_max3_f32 v%d, v%d, v%d, v%d" % (mx, mx, vals[6], vals[7]), "valu", V(mx) + V(vals[6]) + V(vals[7]), V(mx))
            I("v_max_f32 v%d, v%d, v%d" % (mx, mx, m2), "valu", V(mx) + V(m2), V(mx))
            for sw in ("v_permlane16_swap_b32", "v_permlane32_swap_b32"):
                I("v_mov_b32 v%d, v%d" % (m2, mx), "valu", V(mx), V(m2))
                I("%s v%d, v%d" % (sw, mx, m2), "permlane", V(mx) + V(m2), V(mx) + V(m2))
                I("v_max_f32 v%d, v%d, v%d" % (mx, mx, m2), "valu", V(mx) + V(m2), V(mx))
            for x in vals:
                I("v_sub_f32 v%d, v%d, v%d" % (x, x, mx), "valu", V(x) + V(mx), V(x))
            for x in vals:
                I("v_mul_f32 v%d, s%d, v%d" % (x, sLog2e, x), "valu", V(x), V(x))
            for x in vals:
                I("v_exp_f32 v%d, v%d" % (x, x), "trans", V(x), V(x))
            sm, s2_, s3_, s4_ = T, T + 1, T + 2, T + 3
            I("v_add_f32 v%d, v%d, v%d" % (sm, vals[0], vals[1]), "valu", V(vals[0]) + V(vals[1]), V(sm))
            I("v_add_f32 v%d, v%d, v%d" % (s2_, vals[2], vals[3]), "valu", V(vals[2]) + V(vals[3]), V(s2_))
            I("v_add_f32 v%d, v%d, v%d" % (s3_, vals[4], vals[5]), "valu", V(vals[4]) + V(vals[5]), V(s3_))
            I("v_add_f32 v%d, v%d, v%d" % (s4_, vals[6], vals[7]), "valu", V(vals[6]) + V(vals[7]), V(s4_))
            I("v_add_f32 v%d, v%d, v%d" % (sm, sm, s2_), "valu", V(sm) + V(s2_), V(sm))
            I("v_add_f32 v%d, v%d, v%d" % (s3_, s3_, s4_), "valu", V(s3_) + V(s4_), V(s3_))
            I("v_add_f32 v%d, v%d, v%d" % (sm, sm, s3_), "valu", V(sm) + V(s3_), V(sm))
            for sw in ("v_permlane16_swap_b32", "v_permlane32_swap_b32"):
                I("v_mov_b32 v%d, v%d" % (s2_, sm), "valu", V(sm), V(s2_))
                I("%s v%d, v%d" % (sw, sm, s2_), "permlane", V(sm) + V(s2_), V(sm) + V(s2_))
                I("v_add_f32 v%d, v%d, v%d" % (sm, sm, s2_), "valu", V(sm) + V(s2_), V(sm))
            I("v_rcp_f32 v%d, v%d" % (sm, sm), "trans", V(sm), V(sm))
            for x in vals:
                I("v_mul_f32 v%d, v%d, v%d" % (x, x, sm), "valu", V(x) + V(sm), V(x))
            for p in range(4):
                I("v_cvt_pk_bf16_f32 v%d, v%d, v%d" % (PFq + p, vals[2 * p], vals[2 * p + 1]), "valu", V(vals[2 * p]) + V(vals[2 * p + 1]), V(PFq + p))
            return L
        for bb in range(2):
            vb = vVRAW + bb * 32
            for qt in range(2):
                rb = 2 * bb + qt
                for sp in range(4):
                    pack8([acc(rb, c) + sp for c in range(8)], QF + (qt * 4 + sp) * 4)
            e.wait_vm(("kv", bb, 0))
            OV = vRAW + 64
            if VO and bb == 0 and not HALF:
                e.salu("s_waitcnt vmcnt(0)")
                e.vm = []
            for sp in range(4):
                for kt in range(2):
                    for qt in range(2):
                        kf = aKF + bb * 32 + (kt * 4 + sp) * 4
                        qf = QF + (qt * 4 + sp) * 4
                        if VO:
                            sd = OV + qt * 8 + kt * 4
                            if sp == 0:
                                e.ins("v_mfma_f32_16x16x32_bf16 %s, %s, %s, 0" % (vr(sd, 4), ar(kf, 4), vr(qf, 4)), "mfma",
                                      A(kf, 4) + V(qf, 4), V(sd, 4))
                            else:
                                e.ins("v_mfma_f32_16x16x32_bf16 %s, %s, %s, %s" % (vr(sd, 4), ar(kf, 4), vr(qf, 4), vr(sd, 4)), "mfma",
                                      A(kf, 4) + V(qf, 4) + V(sd, 4), V(sd, 4), creads=V(sd, 4))
                            continue
                        sd = aS + (kt * 2 + qt) * 4
                        if sp == 0:
                            e.ins("v_mfma_f32_16x16x32_bf16 %s, %s, %s, 0" % (ar(sd, 4), ar(kf, 4), vr(qf, 4)), "mfma",
                                  A(kf, 4) + V(qf, 4), A(sd, 4))
                        else:
                            e.ins("v_mfma_f32_16x16x32_bf16 %s, %s, %s, %s" % (ar(sd, 4), ar(kf, 4), vr(qf, 4), ar(sd, 4)), "mfma",
                                  A(kf, 4) + V(qf, 4) + A(sd, 4), A(sd, 4), creads=A(sd, 4))
            e.wait_vm(("kv", bb, 1))
            for c in range(8):
                for p in range(4):
                    s0 = vb + 4 * (2 * p + 1) + (c >> 1)
                    s1 = vb + 4 * (2 * p) + (c >> 1)
                    dd = QF + c * 4 + p
                    sel = sSelHi if (c & 1) else sSelLo
                    e.ins("v_perm_b32 v%d, v%d, v%d, s%d" % (dd, s0, s1, sel), "valu", V(s0) + V(s1), V(dd))
            SV = vb
            PF = vb + 16
            TT = vb + 24
            if VO:
                SS_ = OV
            else:
                SS_ = SV
                for qt in range(2):
                    for kt in range(2):
                        for r in range(4):
                            a_ = aS + (kt * 2 + qt) * 4 + r
                            d_ = SV + qt * 8 + kt * 4 + r
                            e.ins("v_accvgpr_read_b32 v%d, a%d" % (d_, a_), "valu", A(a_), V(d_))
            s0l = softmax_stream([SS_ + k for k in range(8)], PF, TT)
            s1l = softmax_stream([SS_ + 8 + k for k in range(8)], PF + 4, TT + 4)
            for x, y in zip(s0l, s1l):
                e.ins(*x)
                e.ins(*y)
            for qt in range(2):
                for c in range(8):
                    if VO:
                        od = OV + (qt * 8 + c) * 4
                        e.ins("v_mfma_f32_16x16x32_bf16 %s, %s, %s, 0" % (vr(od, 4), vr(QF + c * 4, 4), vr(PF + qt * 4, 4)), "mfma",
                              V(QF + c * 4, 4) + V(PF + qt * 4, 4), V(od, 4))
                        continue
                    ac = acc(2 * bb + qt, c)
                    e.ins("v_mfma_f32_16x16x32_bf16 %s, %s, %s, 0" % (ar(ac, 4), vr(QF + c * 4, 4), vr(PF + qt * 4, 4)), "mfma",
                          V(QF + c * 4, 4) + V(PF + qt * 4, 4), A(ac, 4))
            n = 0
            for qt in range(2):
                for r in range(4):
                    dq = SV + (n % 4) * 4
                    n += 1
                    if VO:
                        for p in range(4):
                            o0 = OV + (qt * 8 + 2 * p) * 4 + r
                            o1 = OV + (qt * 8 + 2 * p + 1) * 4 + r
                            e.ins("v_cvt_pk_bf16_f32 v%d, v%d, v%d" % (dq + p, o0, o1), "valu", V(o0) + V(o1), V(dq + p))
                    else:
                        pack8([acc(2 * bb + qt, c) + r for c in range(8)], dq)
                    e.ins("ds_write_b128 v%d, %s offset:%d" % (vOw + r, vr(dq, 4), (32 * bb + 16 * qt) * 1024), "dswrite",
                          V(vOw + r) + V(dq, 4), (), tag="ow")
    else:
        QF = vFRAG
        for bb in range(2):
            vb = vVRAW + bb * 32
            for qt in range(2):
                rb = 2 * bb + qt
                for sp in range(4):
                    for p in range(4):
                        t0 = vT + (p % 2) * 2
                        t1 = t0 + 1
                        a0 = acc(rb, 2 * p) + sp
                        a1 = acc(rb, 2 * p + 1) + sp
                        e.ins("v_accvgpr_read_b32 v%d, a%d" % (t0, a0), "valu", A(a0), V(t0))
                        e.ins("v_accvgpr_read_b32 v%d, a%d" % (t1, a1), "valu", A(a1), V(t1))
                        dd = QF + (qt * 4 + sp) * 4 + p
                        e.ins("v_cvt_pk_bf16_f32 v%d, v%d, v%d" % (dd, t0, t1), "valu", V(t0) + V(t1), V(dd))
            e.wait_vm(("kv", bb, 0))
            if KLDS:
                e.salu("s_lshl_b32 s3, s%d, 14" % sW)
                ki, kg = vT + 8, vT + 9
                e.ins("v_and_b32 v%d, 15, v%d" % (ki, vL), "valu", V(vL), V(ki))
                e.ins("v_lshrrev_b32 v%d, 4, v%d" % (kg, vL), "valu", V(vL), V(kg))
                for sp in range(4):
                    ka = vT + 4 + (sp % 2)
                    e.ins("v_lshl_add_u32 v%d, v%d, 2, %d" % (ka, kg, sp), "valu", V(kg), V(ka))
                    e.ins("v_xor_b32 v%d, v%d, v%d" % (ka, ka, ki), "valu", V(ka) + V(ki), V(ka))
                    e.ins("v_lshlrev_b32 v%d, 4, v%d" % (ka, ka), "valu", V(ka), V(ka))
                    e.ins("v_lshl_add_u32 v%d, v%d, 8, v%d" % (ka, ki, ka), "valu", V(ki) + V(ka), V(ka))
                    e.ins("v_add_u32 v%d, s3, v%d" % (ka, ka), "valu", V(ka), V(ka))
                    for kt in range(2):
                        d = aKF + bb * 32 + (kt * 4 + sp) * 4
                        e.ins("ds_read_b128 %s, v%d offset:%d" % (ar(d, 4), ka, bb * 8192 + kt * 4096), "dsread", V(ka), A(d, 4), tag="kf")
                e.wait_lgkm()
            for sp in range(4):
                for kt in range(2):
                    for qt in range(2):
                        sd = aS + (kt * 2 + qt) * 4
                        kf = aKF + bb * 32 + (kt * 4 + sp) * 4
                        qf = QF + (qt * 4 + sp) * 4
                        if sp == 0:
                            e.ins("v_mfma_f32_16x16x32_bf16 %s, %s, %s, 0" % (ar(sd, 4), ar(kf, 4), vr(qf, 4)), "mfma",
                                  A(kf, 4) + V(qf, 4), A(sd, 4))
                        else:
                            e.ins("v_mfma_f32_16x16x32_bf16 %s, %s, %s, %s" % (ar(sd, 4), ar(kf, 4), vr(qf, 4), ar(sd, 4)), "mfma",
                                  A(kf, 4) + V(qf, 4) + A(sd, 4), A(sd, 4), creads=A(sd, 4))
            e.wait_vm(("kv", bb, 1))
            for c in range(8):
                for p in range(4):
                    s0 = vb + 4 * (2 * p + 1) + (c >> 1)
                    s1 = vb + 4 * (2 * p) + (c >> 1)
                    dd = QF + c * 4 + p
                    sel = sSelHi if (c & 1) else sSelLo
                    e.ins("v_perm_b32 v%d, v%d, v%d, s%d" % (dd, s0, s1, sel), "valu", V(s0) + V(s1), V(dd))
            SV = vb
            PF = vb + 16
            TT = vb + 24
            for qt in range(2):
                for kt in range(2):
                    for r in range(4):
                        a_ = aS + (kt * 2 + qt) * 4 + r
                        d_ = SV + qt * 8 + kt * 4 + r
                        e.ins("v_accvgpr_read_b32 v%d, a%d" % (d_, a_), "valu", A(a_), V(d_))
            for qt in range(2):
                vals = [SV + qt * 8 + k for k in range(8)]
                for rnd in range(2):
                    for k in range(0, 8, 2):
                        x0, x1 = vals[k], vals[k + 1]
                        tp = TT
                        e.ins("v_cvt_pk_bf16_f32 v%d, v%d, v%d" % (tp, x0, x1), "valu", V(x0) + V(x1), V(tp))
                        e.ins("v_lshlrev_b32 v%d, 16, v%d" % (x0, tp), "valu", V(tp), V(x0))
                        e.ins("v_and_b32 v%d, s%d, v%d" % (x1, sMask, tp), "valu", V(tp), V(x1))
                        if rnd == 0:
                            e.ins("v_mul_f32 v%d, s%d, v%d" % (x0, sScale, x0), "valu", V(x0), V(x0))
                            e.ins("v_mul_f32 v%d, s%d, v%d" % (x1, sScale, x1), "valu", V(x1), V(x1))
                mx, m2 = TT + 1, TT + 2
                e.ins("v_max3_f32 v%d, v%d, v%d, v%d" % (mx, vals[0], vals[1], vals[2]), "valu", V(vals[0]) + V(vals[1]) + V(vals[2]), V(mx))
                e.ins("v_max3_f32 v%d, v%d, v%d, v%d" % (mx, mx, vals[3], vals[4]), "valu", V(mx) + V(vals[3]) + V(vals[4]), V(mx))
                e.ins("v_max3_f32 v%d, v%d, v%d, v%d" % (mx, mx, vals[5], vals[6]), "valu", V(mx) + V(vals[5]) + V(vals[6]), V(mx))
                e.ins("v_max_f32 v%d, v%d, v%d" % (mx, mx, vals[7]), "valu", V(mx) + V(vals[7]), V(mx))
                for sw in ("v_permlane16_swap_b32", "v_permlane32_swap_b32"):
                    e.ins("v_mov_b32 v%d, v%d" % (m2, mx), "valu", V(mx), V(m2))
                    e.ins("%s v%d, v%d" % (sw, mx, m2), "permlane", V(mx) + V(m2), V(mx) + V(m2))
                    e.ins("v_max_f32 v%d, v%d, v%d" % (mx, mx, m2), "valu", V(mx) + V(m2), V(mx))
                for x in vals:
                    e.ins("v_sub_f32 v%d, v%d, v%d" % (x, x, mx), "valu", V(x) + V(mx), V(x))
                for x in vals:
                    e.ins("v_mul_f32 v%d, s%d, v%d" % (x, sLog2e, x), "valu", V(x), V(x))
                for x in vals:
                    e.ins("v_exp_f32 v%d, v%d" % (x, x), "trans", V(x), V(x))
                sm, s2_ = TT + 3, TT + 4
                e.ins("v_add_f32 v%d, v%d, v%d" % (sm, vals[0], vals[1]), "valu", V(vals[0]) + V(vals[1]), V(sm))
                e.ins("v_add_f32 v%d, v%d, v%d" % (s2_, vals[2], vals[3]), "valu", V(vals[2]) + V(vals[3]), V(s2_))
                e.ins("v_add_f32 v%d, v%d, v%d" % (sm, sm, s2_), "valu", V(sm) + V(s2_), V(sm))
                e.ins("v_add_f32 v%d, v%d, v%d" % (s2_, vals[4], vals[5]), "valu", V(vals[4]) + V(vals[5]), V(s2_))
                e.ins("v_add_f32 v%d, v%d, v%d" % (sm, sm, s2_), "valu", V(sm) + V(s2_), V(sm))
                e.ins("v_add_f32 v%d, v%d, v%d" % (s2_, vals[6], vals[7]), "valu", V(vals[6]) + V(vals[7]), V(s2_))
                e.ins("v_add_f32 v%d, v%d, v%d" % (sm, sm, s2_), "valu", V(sm) + V(s2_), V(sm))
                for sw in ("v_permlane16_swap_b32", "v_permlane32_swap_b32"):
                    e.ins("v_mov_b32 v%d, v%d" % (s2_, sm), "valu", V(sm), V(s2_))
                    e.ins("%s v%d, v%d" % (sw, sm, s2_), "permlane", V(sm) + V(s2_), V(sm) + V(s2_))
                    e.ins("v_add_f32 v%d, v%d, v%d" % (sm, sm, s2_), "valu", V(sm) + V(s2_), V(sm))
                e.ins("v_rcp_f32 v%d, v%d" % (sm, sm), "trans", V(sm), V(sm))
                for x in vals:
                    e.ins("v_mul_f32 v%d, v%d, v%d" % (x, x, sm), "valu", V(x) + V(sm), V(x))
                for p in range(4):
                    dd = PF + qt * 4 + p
                    e.ins("v_cvt_pk_bf16_f32 v%d, v%d, v%d" % (dd, vals[2 * p], vals[2 * p + 1]), "valu", V(vals[2 * p]) + V(vals[2 * p + 1]), V(dd))
            for qt in range(2):
                for c in range(8):
                    ac = acc(2 * bb + qt, c)
                    e.ins("v_mfma_f32_16x16x32_bf16 %s, %s, %s, 0" % (ar(ac, 4), vr(QF + c * 4, 4), vr(PF + qt * 4, 4)), "mfma",
                          V(QF + c * 4, 4) + V(PF + qt * 4, 4), A(ac, 4))
            n = 0
            for qt in range(2):
                for r in range(4):
                    dq = SV + (n % 4) * 4
                    n += 1
                    for p in range(4):
                        t0 = vT + (p % 2) * 2
                        t1 = t0 + 1
                        a0 = acc(2 * bb + qt, 2 * p) + r
                        a1 = acc(2 * bb + qt, 2 * p + 1) + r
                        e.ins("v_accvgpr_read_b32 v%d, a%d" % (t0, a0), "valu", A(a0), V(t0))
                        e.ins("v_accvgpr_read_b32 v%d, a%d" % (t1, a1), "valu", A(a1), V(t1))
                        e.ins("v_cvt_pk_bf16_f32 v%d, v%d, v%d" % (dq + p, t0, t1), "valu", V(t0) + V(t1), V(dq + p))
                    e.ins("ds_write_b128 v%d, %s offset:%d" % (vOw + r, vr(dq, 4), (32 * bb + 16 * qt) * 1024), "dswrite",
                          V(vOw + r) + V(dq, 4), (), tag="ow")
    zero_acc()
    if VO:
        e.salu("s_mov_b32 s%d, 0x400000" % (SRD_WC + 2))
        e.salu("s_add_u32 s%d, s%d, 0x10000" % (sWCo, sWOo))
        for t in (2, 3):
            for f in wloads(t):
                f()
    e.wait_lgkm()
    stamp()
    e.salu("s_barrier")
    stamp()
    for rb in range(4):
        xf_read(0, rb)
    for c in range(8):
        for p in range(4):
            perm(0, c, p)
    e.salu("s_branch gemm_loop")

    e.label("epilogue")
    stamp()
    e.last_w = {}
    e.nop(10)
    n = 0
    if BFP == 2:
        B0 = vRAW
        e.salu("s_waitcnt vmcnt(0)")
        for rb in range(4):
            for r in range(4):
                for c in range(8):
                    d = B0 + (rb * 4 + r) * 8 + c
                    a0 = acc(rb, c) + r
                    e.ins("v_accvgpr_read_b32 v%d, a%d" % (d, a0), "valu", A(a0), V(d))
        m0, m1 = vT, vT + 1
        e.ins("v_max3_f32 v%d, |v%d|, |v%d|, |v%d|" % (m0, B0, B0 + 1, B0 + 2), "valu", V(B0, 3), V(m0))
        e.ins("v_max3_f32 v%d, |v%d|, |v%d|, |v%d|" % (m1, B0 + 3, B0 + 4, B0 + 5), "valu", V(B0 + 3, 3), V(m1))
        k = 6
        tog = 0
        while k < 128:
            mm = m0 if tog == 0 else m1
            e.ins("v_max3_f32 v%d, |v%d|, |v%d|, v%d" % (mm, B0 + k, B0 + k + 1, mm), "valu", V(B0 + k, 2) + V(mm), V(mm))
            k += 2
            tog ^= 1
        e.ins("v_max_f32 v%d, v%d, v%d" % (m0, m0, m1), "valu", V(m0) + V(m1), V(m0))
        e.ins("v_frexp_exp_i32_f32 v%d, v%d" % (m1, m0), "valu", V(m0), V(m1))
        e.ins("v_sub_u32 v%d, 15, v%d" % (m1, m1), "valu", V(m1), V(m1))
        e.salu("s_movk_i32 s3, 0xff82")
        e.salu("s_movk_i32 s13, 126")
        e.ins("v_mov_b32 v%d, s13" % (vT + 2), "valu", (), V(vT + 2))
        e.ins("v_med3_i32 v%d, v%d, s3, v%d" % (m1, m1, vT + 2), "valu", V(m1) + V(vT + 2), V(m1))
        sc0, inv = vT + 3, vT + 5
        e.ins("v_ldexp_f32 v%d, 1.0, v%d" % (sc0, m1), "valu", V(m1), V(sc0))
        e.ins("v_mov_b32 v%d, v%d" % (sc0 + 1, sc0), "valu", V(sc0), V(sc0 + 1))
        e.ins("v_sub_u32 v%d, 0, v%d" % (m1, m1), "valu", V(m1), V(m1))
        e.ins("v_ldexp_f32 v%d, 1.0, v%d" % (inv, m1), "valu", V(m1), V(inv))
        e.salu("s_lshr_b32 s3, s%d, 7" % sSt)
        e.salu("s_add_u32 s3, s3, 0x1000000")
        e.ins("v_lshlrev_b32 v%d, 2, v%d" % (vT + 6, vL), "valu", V(vL), V(vT + 6))
        e.ins("buffer_store_dword v%d, v%d, %s, s3 offen%s" % (inv, vT + 6, srd(SRD_WS), STF), "vstore", V(inv) + V(vT + 6), (), tag="st")
        e.salu("s_lshr_b32 s%d, s%d, 1" % (sSt, sSt))
        for rb in range(4):
            for r in range(4):
                if n and n % 4 == 0:
                    e.salu("s_add_u32 s%d, s%d, 0x1000" % (sSt, sSt))
                b = B0 + (rb * 4 + r) * 8
                dq = vFRAG + (n % 8) * 4
                for p in range(4):
                    e.ins("v_pk_mul_f32 %s, %s, %s" % (vr(b + 2 * p, 2), vr(b + 2 * p, 2), vr(sc0, 2)), "valu", V(b + 2 * p, 2) + V(sc0, 2), V(b + 2 * p, 2))
                for p in range(4):
                    e.ins("v_cvt_pk_f16_f32 v%d, v%d, v%d" % (dq + p, b + 2 * p, b + 2 * p + 1), "valu", V(b + 2 * p, 2), V(dq + p))
                e.ins("buffer_store_dwordx4 %s, v%d, %s, s%d offen offset:%d%s" % (vr(dq, 4), vSt, srd(SRD_WS), sSt, (n % 4) * 1024, STF),
                      "vstore", V(dq, 4) + V(vSt), (), tag="st")
                n += 1
    elif BFP:
        e.salu("s_lshr_b32 s%d, s%d, 1" % (sSt, sSt))
        for rb in range(4):
            for r in range(4):
                if n and n % 4 == 0:
                    e.salu("s_add_u32 s%d, s%d, 0x1000" % (sSt, sSt))
                dq = vRAW + (n % 8) * 4
                for p in range(4):
                    t0 = vT + (p % 2) * 2
                    t1 = t0 + 1
                    a0 = acc(rb, 2 * p) + r
                    a1 = acc(rb, 2 * p + 1) + r
                    e.ins("v_accvgpr_read_b32 v%d, a%d" % (t0, a0), "valu", A(a0), V(t0))
                    e.ins("v_accvgpr_read_b32 v%d, a%d" % (t1, a1), "valu", A(a1), V(t1))
                    e.ins("v_cvt_pk_bf16_f32 v%d, v%d, v%d" % (dq + p, t0, t1), "valu", V(t0) + V(t1), V(dq + p))
                e.ins("buffer_store_dwordx4 %s, v%d, %s, s%d offen offset:%d%s" % (vr(dq, 4), vSt, srd(SRD_WS), sSt, (n % 4) * 1024, STF),
                      "vstore", V(dq, 4) + V(vSt), (), tag="st")
                n += 1
    else:
      for rb in range(4):
        for c in range(8):
            if n and n % 4 == 0:
                e.salu("s_add_u32 s%d, s%d, 0x1000" % (sSt, sSt))
            ac = acc(rb, c)
            e.ins("buffer_store_dwordx4 %s, v%d, %s, s%d offen offset:%d%s" % (ar(ac, 4), vSt, srd(SRD_WS), sSt, (n % 4) * 1024, STF),
                  "vstore", A(ac, 4) + V(vSt), (), tag="st")
            n += 1
    if FUSE:
        SRD_D, SRD_O = SRD_X, SRD_K
        e.salu("s_waitcnt vmcnt(0)")
        stamp()
        e.salu("s_barrier")
        e.salu("s_mov_b32 s%d, s38" % SRD_D)
        e.salu("s_mov_b32 s%d, s39" % (SRD_D + 1))
        e.salu("s_mov_b32 s%d, 256" % (SRD_D + 2))
        e.salu("s_mov_b32 s%d, s98" % SRD_O)
        e.salu("s_mov_b32 s%d, s99" % (SRD_O + 1))
        e.salu("s_mov_b32 s%d, 0x200000" % (SRD_O + 2))
        e.salu("s_lshl_b32 s13, s%d, 4" % sBR)
        e.salu("s_add_u32 s13, s13, s%d" % sRB)
        e.salu("s_lshl_b32 s14, 1, s%d" % sHG)
        e.salu("s_cmp_lg_u32 s%d, 0" % sW)
        e.salu("s_cbranch_scc1 f_wait")
        e.salu("s_mov_b64 exec, 1")
        e.raw("v_mov_b32 v3, s13")
        e.raw("v_lshlrev_b32 v3, 2, v3")
        e.raw("v_mov_b32 v2, 1")
        e.raw("buffer_atomic_add v2, v3, s[%d:%d], 0 offen sc0 sc1" % (SRD_D, SRD_D + 3))
        e.salu("s_waitcnt vmcnt(0)")
        e.raw("v_readfirstlane_b32 s15, v2")
        e.salu("s_nop 3")
        e.salu("s_cmp_eq_u32 s15, 7")
        e.salu("s_cbranch_scc1 f_last")
        e.salu("s_mov_b32 s3, 0")
        e.label("f_spin")
        e.salu("s_sleep 4")
        e.raw("v_mov_b32 v2, 0")
        e.raw("buffer_atomic_add v2, v3, s[%d:%d], 0 offen sc0 sc1" % (SRD_D, SRD_D + 3))
        e.salu("s_waitcnt vmcnt(0)")
        e.raw("v_readfirstlane_b32 s15, v2")
        e.salu("s_nop 3")
        e.salu("s_cmp_eq_u32 s15, 8")
        e.salu("s_cbranch_scc1 f_decided")
        e.salu("s_add_u32 s3, s3, 1")
        e.salu("s_cmp_lt_u32 s3, %d" % SPIN)
        e.salu("s_cbranch_scc1 f_spin")
        e.raw("v_mov_b32 v2, s14")
        e.raw("buffer_atomic_or v2, v3, s[%d:%d], 0 offen offset:128 sc0 sc1" % (SRD_D, SRD_D + 3))
        e.salu("s_waitcnt vmcnt(0)")
        e.raw("v_mov_b32 v2, 0")
        e.raw("buffer_atomic_add v2, v3, s[%d:%d], 0 offen sc0 sc1" % (SRD_D, SRD_D + 3))
        e.salu("s_waitcnt vmcnt(0)")
        e.raw("v_readfirstlane_b32 s15, v2")
        e.salu("s_nop 3")
        e.salu("s_cmp_eq_u32 s15, 8")
        e.salu("s_cbranch_scc1 f_decided")
        e.salu("s_mov_b32 s14, 0")
        e.salu("s_branch f_decided")
        e.label("f_last")
        e.raw("v_mov_b32 v2, 0")
        e.raw("buffer_atomic_or v2, v3, s[%d:%d], 0 offen offset:128 sc0 sc1" % (SRD_D, SRD_D + 3))
        e.salu("s_waitcnt vmcnt(0)")
        e.raw("v_readfirstlane_b32 s15, v2")
        e.salu("s_nop 3")
        e.salu("s_or_b32 s14, s14, s15")
        e.label("f_decided")
        e.raw("v_mov_b32 v2, s14")
        e.raw("v_mov_b32 v3, 0")
        e.raw("ds_write_b32 v3, v2")
        e.salu("s_waitcnt lgkmcnt(0)")
        e.salu("s_mov_b64 exec, -1")
        e.label("f_wait")
        e.salu("s_barrier")
        stamp()
        e.raw("v_mov_b32 v3, 0")
        e.raw("ds_read_b32 v2, v3")
        e.salu("s_waitcnt lgkmcnt(0)")
        e.raw("v_readfirstlane_b32 s14, v2")
        e.raw("v_and_b32 v4, 15, v%d" % vL)
        e.raw("v_lshrrev_b32 v5, 4, v%d" % vL)
        e.raw("v_lshlrev_b32 v5, 6, v5")
        e.raw("v_lshl_add_u32 v4, v4, 11, v5")
        e.label("f_loop")
        e.salu("s_cmp_eq_u32 s14, 0")
        e.salu("s_cbranch_scc1 f_end")
        e.salu("s_ff1_i32_b32 s15, s14")
        e.salu("s_bitset0_b32 s14, s15")
        e.salu("s_lshr_b32 s20, s15, 1")
        e.salu("s_and_b32 s21, s15, 1")
        e.salu("s_lshl_b32 s21, s21, 1")
        e.salu("s_lshr_b32 s22, s%d, 1" % sW)
        e.salu("s_add_u32 s21, s21, s22")
        e.salu("s_and_b32 s22, s%d, 1" % sW)
        e.salu("s_lshl_b32 s25, s13, 5")
        e.salu("s_add_u32 s25, s25, s20")
        e.salu("s_lshl_b32 s25, s25, 15")
        e.salu("s_lshl_b32 s26, s21, 13")
        e.salu("s_add_u32 s25, s25, s26")
        e.salu("s_lshl_b32 s26, s22, 12")
        e.salu("s_add_u32 s25, s25, s26")
        e.salu("s_lshl_b32 s27, s%d, 17" % sRB)
        e.salu("s_lshl_b32 s26, s21, 15")
        e.salu("s_add_u32 s27, s27, s26")
        e.salu("s_lshl_b32 s26, s%d, 10" % sBR)
        e.salu("s_add_u32 s27, s27, s26")
        e.salu("s_lshl_b32 s26, s20, 8")
        e.salu("s_add_u32 s27, s27, s26")
        e.salu("s_lshl_b32 s26, s22, 3")
        e.salu("s_add_u32 s27, s27, s26")
        e.vm = []
        e.last_w = {}
        base = 16
        for hg in range(8):
            for cc in range(4):
                d = base + (hg * 4 + cc) * 4
                e.ins("buffer_load_dwordx4 %s, v%d, %s, s25 offen offset:%d sc1" % (vr(d, 4), vSt, srd(SRD_WS), cc * 1024), "vload", V(vSt), V(d, 4), tag=("p", hg))
            if hg < 7:
                e.salu("s_add_u32 s25, s25, 0x20000")
        for hg in range(1, 8):
            e.wait_vm(("p", hg))
            for cc in range(4):
                for r in range(0, 4, 2):
                    a_ = base + cc * 4 + r
                    b_ = base + (hg * 4 + cc) * 4 + r
                    e.ins("v_pk_add_f32 %s, %s, %s" % (vr(a_, 2), vr(a_, 2), vr(b_, 2)), "valu", V(a_, 2) + V(b_, 2), V(a_, 2))
        for r in range(4):
            d = 8 + (r % 2) * 2
            e.ins("v_cvt_pk_bf16_f32 v%d, v%d, v%d" % (d, base + r, base + 4 + r), "valu", V(base + r) + V(base + 4 + r), V(d))
            e.ins("v_cvt_pk_bf16_f32 v%d, v%d, v%d" % (d + 1, base + 8 + r, base + 12 + r), "valu", V(base + 8 + r) + V(base + 12 + r), V(d + 1))
            e.ins("buffer_store_dwordx2 %s, v4, s[%d:%d], s27 offen offset:%d" % (vr(d, 2), SRD_O, SRD_O + 3, r * 16), "vstore", V(d, 2) + V(4), (), tag="o")
        e.salu("s_waitcnt vmcnt(0)")
        e.salu("s_branch f_loop")
        e.label("f_end")
    if STAMP:
        e.salu("s_waitcnt vmcnt(0)")
        stamp()
        e.salu("s_waitcnt lgkmcnt(0)")
        e.salu("s_cmp_lg_u32 s2, %d" % int(OPT.get("dumpwg", 0)))
        e.salu("s_cbranch_scc1 main_done")
        e.salu("s_mov_b32 s%d, s38" % SRD_X)
        e.salu("s_mov_b32 s%d, s39" % (SRD_X + 1))
        e.salu("s_mov_b32 s%d, 1024" % (SRD_X + 2))
        e.salu("s_lshl_b32 s3, s%d, 6" % sW)
        e.salu("s_add_u32 s3, s3, 512")
        e.raw("v_mov_b32 v2, 0")
        for k in range(1, nst[0]):
            e.salu("s_sub_u32 s13, s%d, s80" % (80 + 2 * k))
            e.raw("v_mov_b32 v3, s13")
            e.raw("buffer_store_dword v3, v2, s[%d:%d], s3 offen offset:%d" % (SRD_X, SRD_X + 3, 4 * (k - 1)))
    e.label("main_done")
    e.salu("s_endpgm")
    return e.lines


def gen_reduce_bf():
    e = Emit()
    e.label("reduce_kernel")
    e.salu("s_cmp_ge_u32 s2, 256")
    e.salu("s_cbranch_scc1 reduce_done")
    e.salu("s_load_dwordx2 s[8:9], s[0:1], 80")
    e.salu("s_load_dwordx2 s[12:13], s[0:1], 96")
    e.ins("v_lshrrev_b32 v2, 6, v0", "valu", V(0), V(2))
    e.ins("v_and_b32 v1, 63, v0", "valu", V(0), V(1))
    e.ins("v_readfirstlane_b32 s7, v2", "rfl", V(2), [("s", 7)])
    e.ins("v_lshlrev_b32 v3, 4, v1", "valu", V(1), V(3))
    e.ins("v_and_b32 v4, 15, v1", "valu", V(1), V(4))
    e.ins("v_lshrrev_b32 v5, 4, v1", "valu", V(1), V(5))
    e.ins("v_lshlrev_b32 v5, 6, v5", "valu", V(5), V(5))
    e.ins("v_lshl_add_u32 v4, v4, 11, v5", "valu", V(4) + V(5), V(4))
    e.salu("s_nop 2")
    e.salu("s_lshl_b32 s3, s2, 2")
    e.salu("s_add_u32 s3, s3, s7")
    e.salu("s_and_b32 s20, s3, 1")
    e.salu("s_lshr_b32 s21, s3, 1")
    e.salu("s_and_b32 s21, s21, 3")
    e.salu("s_lshr_b32 s22, s3, 3")
    e.salu("s_and_b32 s22, s22, 3")
    e.salu("s_lshr_b32 s23, s3, 5")
    e.salu("s_and_b32 s23, s23, 15")
    e.salu("s_lshr_b32 s24, s3, 9")
    e.salu("s_lshl_b32 s25, s24, 4")
    e.salu("s_add_u32 s25, s25, s23")
    e.salu("s_lshl_b32 s25, s25, 5")
    e.salu("s_add_u32 s25, s25, s22")
    e.salu("s_lshl_b32 s25, s25, 14")
    e.salu("s_lshl_b32 s26, s21, 12")
    e.salu("s_add_u32 s25, s25, s26")
    e.salu("s_lshl_b32 s26, s20, 11")
    e.salu("s_add_u32 s25, s25, s26")
    e.salu("s_lshl_b32 s27, s23, 17")
    e.salu("s_lshl_b32 s26, s21, 15")
    e.salu("s_add_u32 s27, s27, s26")
    e.salu("s_lshl_b32 s26, s24, 10")
    e.salu("s_add_u32 s27, s27, s26")
    e.salu("s_lshl_b32 s26, s22, 8")
    e.salu("s_add_u32 s27, s27, s26")
    e.salu("s_lshl_b32 s26, s20, 5")
    e.salu("s_add_u32 s27, s27, s26")
    e.salu("s_mov_b32 s28, 0xffff0000")
    e.salu("s_waitcnt lgkmcnt(0)")
    e.salu("s_mov_b32 s10, 0x200000")
    e.salu("s_mov_b32 s11, 0x00020000")
    e.salu("s_mov_b32 s14, 0x2000000")
    e.salu("s_mov_b32 s15, 0x00020000")
    base = 32
    if BFP == 2:
        e.salu("s_lshl_b32 s29, s24, 4")
        e.salu("s_add_u32 s29, s29, s23")
        e.salu("s_lshl_b32 s29, s29, 5")
        e.salu("s_add_u32 s29, s29, s22")
        e.salu("s_lshl_b32 s29, s29, 8")
        e.salu("s_add_u32 s29, s29, 0x1000000")
        e.ins("v_lshlrev_b32 v6, 2, v1", "valu", V(1), V(6))
    for hg in range(8):
        if BFP == 2:
            e.ins("buffer_load_dword v%d, v6, s[12:15], s29 offen" % (96 + hg), "vload", V(6), V(96 + hg), tag=("p", hg))
            e.salu("s_add_u32 s29, s29, 1024")
        for rr in range(2):
            d = base + (hg * 2 + rr) * 4
            e.ins("buffer_load_dwordx4 %s, v3, s[12:15], s25 offen offset:%d" % (vr(d, 4), rr * 1024), "vload", V(3), V(d, 4), tag=("p", hg))
        if hg < 7:
            e.salu("s_add_u32 s25, s25, 0x10000")
    accb = 8
    if BFP == 2:
        for k in range(16):
            e.ins("v_mov_b32 v%d, 0" % (accb + k), "valu", (), V(accb + k))
    for hg in range(8):
        e.wait_vm(("p", hg))
        for rr in range(2):
            for q in range(4):
                s_ = base + (hg * 2 + rr) * 4 + q
                a0 = accb + rr * 8 + 2 * q
                if BFP == 2:
                    e.ins("v_fma_mix_f32 v%d, v%d, v%d, v%d op_sel_hi:[1,0,0]" % (a0, s_, 96 + hg, a0), "valu", V(s_) + V(96 + hg) + V(a0), V(a0))
                    e.ins("v_fma_mix_f32 v%d, v%d, v%d, v%d op_sel:[1,0,0] op_sel_hi:[1,0,0]" % (a0 + 1, s_, 96 + hg, a0 + 1), "valu", V(s_) + V(96 + hg) + V(a0 + 1), V(a0 + 1))
                elif hg == 0:
                    e.ins("v_lshlrev_b32 v%d, 16, v%d" % (a0, s_), "valu", V(s_), V(a0))
                    e.ins("v_and_b32 v%d, s28, v%d" % (a0 + 1, s_), "valu", V(s_), V(a0 + 1))
                else:
                    e.ins("v_lshlrev_b32 v24, 16, v%d" % s_, "valu", V(s_), V(24))
                    e.ins("v_and_b32 v25, s28, v%d" % s_, "valu", V(s_), V(25))
                    e.ins("v_pk_add_f32 %s, %s, v[24:25]" % (vr(a0, 2), vr(a0, 2)), "valu", V(a0, 2) + V(24, 2), V(a0, 2))
    for rr in range(2):
        d = 24 + rr * 4
        for q in range(4):
            a0 = accb + rr * 8 + 2 * q
            e.ins("v_cvt_pk_bf16_f32 v%d, v%d, v%d" % (d + q, a0, a0 + 1), "valu", V(a0, 2), V(d + q))
        e.ins("buffer_store_dwordx4 %s, v4, s[8:11], s27 offen offset:%d" % (vr(d, 4), rr * 16), "vstore", V(d, 4) + V(4), (), tag="o")
    e.label("reduce_done")
    e.salu("s_endpgm")
    return e.lines


HEADER = """; Fused two-branch attention block: Q-proj + attention + out-proj partials, then a reduce kernel.
; @launch kernel=main_kernel grid=(256,1,1) block=(256,1,1) lds=132096
; @launch kernel=reduce_kernel grid=(256,1,1) block=(256,1,1) lds=0
.amdgcn_target "amdgcn-amd-amdhsa--gfx950"
.text
"""


def main():
    hdr = HEADER
    kernels = [("main_kernel", gen_main()), ("reduce_kernel", gen_reduce_bf() if BFP else gen_reduce())]
    if FUSE:
        hdr = hdr.replace("; @launch kernel=reduce_kernel grid=(256,1,1) block=(256,1,1) lds=0\n", "")
        kernels = kernels[:1]
    rl = OPT.get("rl", "").replace("+", " ")
    ro = OPT.get("ro", "").replace("+", " ")
    if rl or ro:
        nk = []
        for name, lines in kernels:
            if name == "reduce_kernel":
                lines = [(l + " " + rl) if ("buffer_load_dwordx4" in l and rl) else ((l + " " + ro) if ("buffer_store" in l and ro) else l) for l in lines]
            nk.append((name, lines))
        kernels = nk
    out = [hdr]
    for name, lines in kernels:
        out.append(".globl %s\n.p2align 8\n.type %s,@function\n" % (name, name))
        out.append("\n".join(lines) + "\n")
    out.append('.section .rodata,"a"\n')
    out.append(kd("main_kernel", 512, 102, 256))
    if not FUSE:
        out.append(kd("reduce_kernel", 144, 32, 144))
    text = "".join(out)
    path = sys.argv[1] if len(sys.argv) > 1 else "cdna_kernels/%s.s" % NAME
    open(path, "w").write(text)
    print("wrote", path, len(text), "bytes")


if __name__ == "__main__":
    main()
```
